```python
import torch

def _softmax(x, axis=-1):
    return torch.softmax(x, dim=axis)
def _gelu(x):
    return torch.nn.functional.gelu(x, approximate="tanh")
def _silu(x):
    return torch.nn.functional.silu(x)
def _sigmoid(x):
    return torch.sigmoid(x)
def _layernorm(x, axis=-1, eps=1e-5):
    m = x.mean(dim=axis, keepdim=True)
    v = x.var(dim=axis, keepdim=True, unbiased=False)
    return (x - m) / torch.sqrt(v + eps)
def _scatter_add(tgt, idx, src, axis=0):
    return tgt.clone().index_add_(axis, idx, src)
def _segment_sum(src, seg, n):
    out = torch.zeros((n,) + src.shape[1:], dtype=src.dtype)
    return out.index_add_(0, seg, src)
def _pad(x, pw):
    flat = tuple(v for pair in reversed(pw) for v in pair)
    return torch.nn.functional.pad(x, flat)

kernel_name = 'concat_heads__gqa_block_cached__mha_block_cached__near_ridge'

def setup_inputs():

    _w = (lambda a: (lambda t: t.to(torch.bfloat16) if t.is_floating_point() else t)(torch.as_tensor(a)))
    def _A_setup():
        B, Sq, D = 16, 160, 512
        Hq, Hkv, Sk, Dh = 32, 32, 512, 128
        assert Hq % Hkv == 0, (Hq, Hkv)
        return {
            "x": _w((lambda *s: torch.randn(*s, dtype=torch.bfloat16) * 0.8)(B, Sq, D)),
            "k_cache": _w((lambda *s: torch.randn(*s, dtype=torch.bfloat16) * 0.8)(B, Hkv, Sk, Dh)),
            "v_cache": _w((lambda *s: torch.randn(*s, dtype=torch.bfloat16) * 0.05)(B, Hkv, Sk, Dh)),
            "wq": _w((lambda *s: torch.randn(*s, dtype=torch.bfloat16) * 0.8)(D, Hq * Dh) * (D ** -0.5)),
            "wo": _w((lambda *s: torch.randn(*s, dtype=torch.bfloat16) * 0.05)(Hq * Dh, D) * ((Hq * Dh) ** -0.5)),
        }
    _A_in = _A_setup()

    def _B_setup():
        B, Sq, D = 16, 160, 512
        H, Sk, Dh = 32, 512, 128
        return {
            "x": _w((lambda *s: torch.randn(*s, dtype=torch.bfloat16) * 0.8)(B, Sq, D)),
            "k_cache": _w((lambda *s: torch.randn(*s, dtype=torch.bfloat16) * 0.8)(B, H, Sk, Dh)),
            "v_cache": _w((lambda *s: torch.randn(*s, dtype=torch.bfloat16) * 0.05)(B, H, Sk, Dh)),
            "wq": _w((lambda *s: torch.randn(*s, dtype=torch.bfloat16) * 0.8)(D, H * Dh) * (D ** -0.5)),
            "wo": _w((lambda *s: torch.randn(*s, dtype=torch.bfloat16) * 0.05)(H * Dh, D) * ((H * Dh) ** -0.5)),
        }
    _B_in = _B_setup()

    return {
        "A_x": _A_in["x"],
        "A_k_cache": _A_in["k_cache"],
        "A_v_cache": _A_in["v_cache"],
        "A_wq": _A_in["wq"],
        "A_wo": _A_in["wo"],
        "B_x": _B_in["x"],
        "B_k_cache": _B_in["k_cache"],
        "B_v_cache": _B_in["v_cache"],
        "B_wq": _B_in["wq"],
        "B_wo": _B_in["wo"],
    }

def reference(A_x, A_k_cache, A_v_cache, A_wq, A_wo, B_x, B_k_cache, B_v_cache, B_wq, B_wo):
    def _A_ref(x, k_cache, v_cache, wq, wo):
        B, Sq, D = x.shape
        Hq, Dh = 32, 128
        Hkv = k_cache.shape[1]
        rep = Hq // Hkv
        q = (lambda x, *d: x.permute(*d))((x @ wq).reshape(B, Sq, Hq, Dh), 0, 2, 1, 3)
        k = (lambda x, n, axis: torch.repeat_interleave(x, n, dim=axis))(k_cache, rep, axis=1)
        v = (lambda x, n, axis: torch.repeat_interleave(x, n, dim=axis))(v_cache, rep, axis=1)
        scores = torch.einsum("bhqd,bhkd->bhqk", q, k) * (Dh ** -0.5)
        p = _softmax(scores, axis=-1)
        o = torch.einsum("bhqk,bhkd->bhqd", p, v)
        return (lambda x, *d: x.permute(*d))(o, 0, 2, 1, 3).reshape(B, Sq, Hq * Dh) @ wo

    def _B_ref(x, k_cache, v_cache, wq, wo):
        B, Sq, D = x.shape
        H, Dh = 32, 128
        q = (lambda x, *d: x.permute(*d))((x @ wq).reshape(B, Sq, H, Dh), 0, 2, 1, 3)
        scores = torch.einsum("bhqd,bhkd->bhqk", q, k_cache) * (Dh ** -0.5)
        p = _softmax(scores, axis=-1)
        o = torch.einsum("bhqk,bhkd->bhqd", p, v_cache)
        return (lambda x, *d: x.permute(*d))(o, 0, 2, 1, 3).reshape(B, Sq, H * Dh) @ wo

    a = _A_ref(A_x, A_k_cache, A_v_cache, A_wq, A_wo)
    b = _B_ref(B_x, B_k_cache, B_v_cache, B_wq, B_wo)
    return torch.concatenate([a, b], axis=-1)
```

```python
import re

def regs_of(tok):
    tok = tok.strip()
    tok = re.sub(r'^(neg|abs)\((.*)\)$', r'\2', tok)
    tok = tok.lstrip('-').strip('|')
    m = re.fullmatch(r'([vas])(\d+)', tok)
    if m: return [tok]
    m = re.fullmatch(r'([vas])\[(\d+):(\d+)\]', tok)
    if m: return [f"{m.group(1)}{i}" for i in range(int(m.group(2)), int(m.group(3)) + 1)]
    if tok in ('m0', 'vcc', 'exec', 'scc'): return [tok]
    if tok in ('vcc_lo', 'vcc_hi'): return ['vcc']
    if tok in ('exec_lo', 'exec_hi'): return ['exec']
    return []

TRANS = ('v_exp_f32', 'v_log_f32', 'v_rcp_f32', 'v_rsq_f32', 'v_sqrt_f32', 'v_sin_f32', 'v_cos_f32')
SCC_W = ('s_add_', 's_sub_', 's_addc', 's_subb', 's_and_', 's_or_', 's_xor_', 's_lshl', 's_lshr', 's_ashr', 's_cmp', 's_min', 's_max', 's_andn2', 's_not', 's_bfe', 's_addk', 's_cmpk')

class I:
    __slots__ = ('text', 'op', 'kind', 'rd', 'wr', 'srcC', 'lgkm', 'vm', 'nop', 'pos', 'tag', 'passes', 'lds_rd', 'lds_wr')
    def __init__(self, text, pos=None, tag=None):
        self.text = text.strip(); self.pos = pos; self.tag = tag
        self.lgkm = None; self.vm = None; self.nop = 0; self.srcC = []; self.passes = 0
        self.lds_rd = None; self.lds_wr = None
        t = self.text.split(';')[0].strip()
        if t.endswith(':') or t == '' or t.startswith('.'):
            self.op = 'label'; self.kind = 'label'; self.rd = []; self.wr = []; return
        sp = t.split(None, 1); op = sp[0]; self.op = op
        rest = sp[1] if len(sp) > 1 else ''
        ops = [o.strip() for o in rest.split(',')] if rest else []
        mods = []
        if ops:
            l = ops[-1].split()
            ops[-1] = l[0] if l else ''
            mods = l[1:]
        R = lambda k: regs_of(ops[k]) if k < len(ops) else []
        allfrom = lambda k: [r for o in ops[k:] for r in regs_of(o)]
        rd = []; wr = []
        if op.startswith('v_mfma'):
            self.kind = 'mfma'; wr = R(0); rd = R(1) + R(2) + R(3); self.srcC = R(3)
            self.passes = 4 if '16x16x32' in op else 8
        elif op.startswith('ds_read'):
            self.kind = 'dsr'; wr = R(0); rd = R(1)
        elif op.startswith('ds_write'):
            self.kind = 'dsw'; rd = allfrom(0)
        elif op.startswith('buffer_load'):
            if 'lds' in mods:
                self.kind = 'dma'; rd = allfrom(0) + ['m0']
            else:
                self.kind = 'vld'; wr = R(0); rd = allfrom(1)
        elif op.startswith('buffer_store'):
            self.kind = 'vst'; rd = allfrom(0)
        elif op.startswith('s_load') or op in ('s_memtime', 's_memrealtime'):
            self.kind = 'smem'; wr = R(0); rd = allfrom(1)
        elif op in ('s_waitcnt', 's_nop', 's_barrier', 's_endpgm', 's_setprio', 's_sleep'):
            self.kind = op[2:]
        elif op.startswith('s_cbranch') or op in ('s_branch', 's_call_b64', 's_setpc_b64'):
            self.kind = 'branch'
            if 'scc' in op: rd = ['scc']
            if 'vcc' in op: rd = ['vcc']
            if 'exec' in op: rd = ['exec']
        elif op.startswith('s_cmp'):
            self.kind = 'salu'; rd = allfrom(0); wr = ['scc']
        elif op.startswith('s_'):
            self.kind = 'salu'; wr = R(0); rd = allfrom(1)
            if op.startswith(SCC_W): wr = wr + ['scc']
            if op.startswith(('s_cselect', 's_addc', 's_subb')): rd = rd + ['scc']
            if op.startswith(('s_addk', 's_mulk')): rd = rd + R(0)
        elif op.startswith('v_'):
            self.kind = 'trans' if op.split('_e')[0] in TRANS or op in TRANS else 'valu'
            if op.startswith('v_permlane') and 'swap' in op:
                rd = R(0) + R(1); wr = R(0) + R(1); self.kind = 'perm'
            elif op.startswith('v_cmp'):
                wr = R(0); rd = allfrom(1)
            elif op.startswith(('v_fmac', 'v_dot2c')):
                wr = R(0); rd = allfrom(0)
            elif op.startswith(('v_add_co', 'v_sub_co', 'v_addc_co')):
                wr = R(0) + R(1); rd = allfrom(2)
            else:
                wr = R(0); rd = allfrom(1)
        else:
            raise ValueError("unknown op " + text)
        self.rd = rd; self.wr = wr
    def is_valu(self): return self.kind in ('valu', 'trans', 'perm')
    def __repr__(self): return self.text

def mk(lines, pos=None, tag=None):
    if isinstance(lines, str): lines = lines.strip().split('\n')
    return [I(l, pos, tag) for l in lines if l.strip() and not l.strip().startswith(';')]

def analyze_trace(trace):
    for _ in range(3):
        changed = _pass(trace)
        if not changed: break

def _pass(trace):
    changed = False
    ds = []
    vm = []
    hist = []
    ws = 0
    HL = 24
    since = 0
    for ins in trace:
        if ins.tag == 'vmreset': since = 0
        if ins.kind == 'label': continue
        touched = set(ins.rd) | set(ins.wr)
        if ins.tag == 'barwait':
            n = min(since, 63)
            if ins.vm is None or n < ins.vm: ins.vm = n; changed = True
            if ins.lgkm != 0: ins.lgkm = 0; changed = True
            since = 0
        if ins.kind in ('vld', 'dma', 'vst'): since += 1
        if ins.kind == 'waitcnt':
            m = re.search(r'lgkmcnt\((\d+)\)', ins.text)
            if m:
                n = int(m.group(1)); ds = ds[len(ds) - n:] if n < len(ds) else ds
                if n == 0: ds = []
            m = re.search(r'vmcnt\((\d+)\)', ins.text)
            if m:
                n = int(m.group(1)); vm = vm[len(vm) - n:] if n < len(vm) else vm
                if n == 0: vm = []
        need = None
        for k in range(len(ds) - 1, -1, -1):
            if ds[k] & touched:
                need = len(ds) - 1 - k; break
        if need is not None:
            need = min(need, 15)
            if ins.lgkm is None or need < ins.lgkm: ins.lgkm = need; changed = True
        needv = None
        for k in range(len(vm) - 1, -1, -1):
            if vm[k] & touched:
                needv = len(vm) - 1 - k; break
        if needv is not None:
            needv = min(needv, 63)
            if ins.vm is None or needv < ins.vm: ins.vm = needv; changed = True
        if ins.lgkm is not None:
            n = ins.lgkm; ds = ds[len(ds) - n:] if 0 < n < len(ds) else ([] if n == 0 else ds)
        if ins.vm is not None:
            n = ins.vm; vm = vm[len(vm) - n:] if 0 < n < len(vm) else ([] if n == 0 else vm)
        pre = 1 if (ins.lgkm is not None or ins.vm is not None) else 0
        req = 0
        rdS = set(ins.rd); wrS = set(ins.wr)
        for (p, pws) in hist[-HL:]:
            dist = ws + pre - pws - 1
            need_ws = hazard(p, ins, rdS, wrS)
            if need_ws > dist: req = max(req, need_ws - dist)
        if req > ins.nop: ins.nop = req; changed = True
        ws += pre + ins.nop
        hist.append((ins, ws))
        if len(hist) > 64: hist = hist[-HL:]
        if ins.kind == 'nop':
            ws += int(ins.text.split()[1]) + 1
        else:
            ws += 1
        if ins.kind == 'dsr': ds.append(set(ins.wr))
        elif ins.kind == 'dsw': ds.append(set())
        elif ins.kind == 'vld': vm.append(set(ins.wr))
        elif ins.kind in ('dma', 'vst'): vm.append(set())
        elif ins.kind == 'smem': ds.append(set(ins.wr)); ds.append(set(ins.wr))
    return changed

def hazard(p, c, rdS, wrS):
    n = 0
    pw = set(p.wr)
    if p.kind == 'mfma':
        big = {4: 8, 8: 12}[p.passes]; ovl = {4: 6, 8: 10}[p.passes]; war = {4: 3, 8: 7}[p.passes]
        if c.kind == 'mfma':
            cC = set(c.srcC)
            ab = rdS - cC if not (set(c.rd[:len(c.rd) - len(c.srcC)]) & cC) else set(c.rd[:len(c.rd) - len(c.srcC)])
            if pw & ab: n = max(n, big)
            if pw & cC:
                if not (list(p.wr) == list(c.srcC) and p.passes == c.passes): n = max(n, ovl)
            elif pw & wrS: n = max(n, ovl)
        else:
            if pw & (rdS | wrS): n = max(n, big)
            if c.is_valu() and (set(p.srcC) & wrS): n = max(n, war)
    elif p.is_valu():
        vw = {r for r in pw if r[0] in 'va' and r != 'vcc'}
        sw = pw - vw
        if c.kind == 'mfma' and (vw & rdS): n = max(n, 2)
        if c.kind == 'perm' and (vw & rdS): n = max(n, 2)
        if p.kind == 'trans' and c.is_valu() and c.kind != 'trans' and (vw & rdS): n = max(n, 1)
        if c.op.startswith(('v_readfirstlane', 'v_readlane')) and (vw & rdS): n = max(n, 1)
        if sw:
            if c.is_valu() and (sw & rdS): n = max(n, 2)
            if c.kind in ('vld', 'vst', 'dma') and (sw & rdS): n = max(n, 5)
            if c.kind in ('salu', 'branch') and (sw & rdS): n = max(n, 1)
    elif p.kind == 'salu':
        if 'm0' in pw and c.kind == 'dma': n = max(n, 1)
    elif p.kind == 'vst':
        if ('x4' in p.op or 'x3' in p.op):
            data = set(regs_of(p.text.split(None, 1)[1].split(',')[0]))
            if data & wrS: n = max(n, 2)
    return n

def emit(seq):
    out = []
    for ins in seq:
        if ins.kind == 'label':
            out.append(ins.text); continue
        w = []
        if ins.vm is not None: w.append(f"vmcnt({ins.vm})")
        if ins.lgkm is not None: w.append(f"lgkmcnt({ins.lgkm})")
        if w: out.append("  s_waitcnt " + " ".join(w))
        n = ins.nop
        while n > 0:
            k = min(n, 16); out.append(f"  s_nop {k-1}"); n -= k
        out.append("  " + ins.text)
    return "\n".join(out)

def merge(mf, fillers):
    fl = sorted(enumerate(fillers), key=lambda e: (e[1].pos, e[0]))
    out = []; j = 0
    for k, m in enumerate(mf):
        while j < len(fl) and fl[j][1].pos <= k:
            out.append(fl[j][1]); j += 1
        out.append(m)
    while j < len(fl):
        out.append(fl[j][1]); j += 1
    return out

def at(instrs, p0, p1=None):
    n = len(instrs)
    if p1 is None: p1 = p0
    for i, ins in enumerate(instrs):
        ins.pos = p0 + (p1 - p0) * i / max(n, 1)
    return instrs
```

```python
import sys, struct, math
from asmlib import *

NAME = "concat_heads__gqa_block_cached__mha_block_cached__near_ridge"
OPT = dict(lead=10, kvnt=" nt", ont="", rot=1, k2ont="", epi_periods=5, thresh=1024.0, k1only=0, k2only=0)
for kv in sys.argv[2:]:
    k, v = kv.split("="); OPT[k] = type(OPT[k])(v.replace("_", " ") if isinstance(OPT[k], str) else v)
LEAD = OPT['lead']
def f2h(x): return "0x%08x" % struct.unpack("<I", struct.pack("<f", x))[0]
MF = "v_mfma_f32_16x16x32_bf16"
def vr(b, n=4): return f"v[{b}:{b+n-1}]"
def ar(b, n=4): return f"a[{b}:{b+n-1}]"

STAGE = 53248; SLOTA = 0; SLOTB = 16384; XOFF = 32768
sX, sW, sK, sV, sO = 8, 12, 16, 20, 24
sWv, sRd, sWr, sMw, sMx = 28, 29, 30, 31, 32
sKVb, sKi, sVi, sWo, sXo, sOo = 33, 34, 35, 36, 37, 38
sT0, sT1, sC, sTh, sCnt, sRound = 39, 40, 41, 42, 43, 44
sRet = 46
sT2, sT3 = 48, 49
def srd(b): return f"s[{b}:{b+3}]"
vKb, vV0b, vV1b, vWb, vXb = 1, 2, 3, 4, 5
vA0, vA1, vA2 = 6, 7, 8
vDkv0, vDkv1 = 9, 10
vDw = [11, 12, 13, 14]
vDx = [15, 16, 17, 18]
vSt = 19
vRl = [20, 21, 22, 23, 0]
BLK = 24
def blk(c): return BLK + 32 * c
def acc(t, c): return blk(c) + 4 * t
def Sreg(par, kt, c): return blk(c) + 8 * par + 4 * kt
def Preg(par, c): return blk(c) + 16 + 4 * par
def Mreg(c): return blk(c) + 24
def Lreg(c): return blk(c) + 28
def Treg(c): return blk(c) + 29
POOL = 184
NPOOL = 4
XF = 208
TMP = 248
ET = 208
def Oreg(t, c): return (t * 5 + c) * 4
def Qreg(s, c): return 160 + (s * 5 + c) * 4

class Period:
    def __init__(self): self.m = []; self.f = []; self.dma = []; self.addr = []

pool_ctr = [0]
def next_frag():
    r = POOL + 4 * (pool_ctr[0] % NPOOL); pool_ctr[0] += 1
    return r

def rdK(P, k0, slot, kt, s):
    r = next_frag()
    P.f += at(mk(f"ds_read_b128 {vr(r)}, v{vA0} offset:{slot + kt*4096 + s*256}", tag='rd'), k0 - LEAD)
    return r
def rdV(P, k0, slot, t):
    r = next_frag(); a = vA1 if t % 2 == 0 else vA2
    P.f += at(mk([f"ds_read_b64_tr_b16 {vr(r,2)}, v{a} offset:{slot + (t//2)*256}",
                  f"ds_read_b64_tr_b16 {vr(r+2,2)}, v{a} offset:{slot + (t//2)*256 + 4096}"], tag='rd'), k0 - LEAD, k0 - LEAD + 2)
    return r
def rdW(P, k0, slot, t):
    r = next_frag(); s, e = t // 2, t % 2
    P.f += at(mk([f"ds_read_b64_tr_b16 {vr(r,2)}, v{vA0} offset:{slot + s*256 + e*8}",
                  f"ds_read_b64_tr_b16 {vr(r+2,2)}, v{vA0} offset:{slot + s*256 + e*8 + 1024}"], tag='rd'), k0 - LEAD, k0 - LEAD + 2)
    return r

def grpQK(P, slot, par, kt, s, cinit):
    k0 = len(P.m); r = rdK(P, k0, slot, kt, s)
    for c in range(5):
        D = vr(Sreg(par, kt, c))
        C = D if s > 0 else ("0" if cinit == 'zero' else vr(Mreg(c)))
        P.m += mk(f"{MF} {D}, {vr(r)}, {ar(Qreg(s,c))}, {C}")
def grpPV(P, slot, par, t, first):
    k0 = len(P.m); r = rdV(P, k0, slot, t)
    for c in range(5):
        D = ar(Oreg(t, c))
        P.m += mk(f"{MF} {D}, {vr(r)}, {vr(Preg(par,c))}, {'0' if first else D}")

def softmax_ops(par, et=ET):
    ops = []; tc = [0]
    def tmp2():
        r = et + 2 * (tc[0] % 8); tc[0] += 1; return r
    pend = []
    for kt in range(2):
        for c in range(5):
            for h in range(2):
                e = tmp2(); s = Sreg(par, kt, c) + 2 * h
                cur = [f"v_exp_f32 v{e}, v{s}", f"v_exp_f32 v{e+1}, v{s+1}"]
                post = [f"v_cvt_pk_bf16_f32 v{Preg(par,c)+2*kt+h}, v{e}, v{e+1}"]
                if kt == 0 and h == 0:
                    post += [f"v_add_f32 v{Treg(c)}, v{e}, v{e+1}"]
                else:
                    post += [f"v_add_f32 v{Treg(c)}, v{Treg(c)}, v{e}", f"v_add_f32 v{Treg(c)}, v{Treg(c)}, v{e+1}"]
                ops += [cur[0]] + pend[:1] + [cur[1]] + pend[1:]
                pend = post
    ops += pend
    return ops

def cost(t):
    return 2.0 if t.startswith(('v_exp', 'v_rcp')) else 1.0
def spread(lines, p0, p1, tag=None):
    ins = mk(lines, tag=tag); tot = sum(cost(i.text) for i in ins); a = 0
    for i in ins:
        i.pos = p0 + (p1 - p0) * a / tot; a += cost(i.text)
    return ins

chk_ctr = [0]
def check_ops(par):
    return [f"v_max3_f32 v{TMP}, v{Treg(0)}, v{Treg(1)}, v{Treg(2)}",
            f"v_max3_f32 v{TMP}, v{TMP}, v{Treg(3)}, v{Treg(4)}",
            f"v_cmp_nge_f32 vcc, s{sTh}, v{TMP}",
            f"s_cbranch_vccnz RARE{par}_@",
            f"RET_@:"]
def ladd_ops(first=False):
    if first: return [f"v_mov_b32 v{Lreg(c)}, v{Treg(c)}" for c in range(5)]
    return [f"v_add_f32 v{Lreg(c)}, v{Lreg(c)}, v{Treg(c)}" for c in range(5)]

def colmax_ops(par, c, d, t2):
    s = Sreg(par, 0, c)
    return [f"v_max3_f32 v{d}, v{s}, v{s+1}, v{s+2}",
            f"v_max3_f32 v{t2}, v{s+3}, v{s+4}, v{s+5}",
            f"v_max3_f32 v{d}, v{d}, v{s+6}, v{s+7}",
            f"v_max_f32 v{d}, v{d}, v{t2}",
            f"v_mov_b32 v{t2}, v{d}",
            f"v_permlane16_swap_b32 v{d}, v{t2}",
            f"v_max_f32 v{d}, v{d}, v{t2}",
            f"v_mov_b32 v{t2}, v{d}",
            f"v_permlane32_swap_b32 v{d}, v{t2}",
            f"v_max_f32 v{d}, v{d}, v{t2}"]
def interleave(lists):
    out = []
    for i in range(max(len(l) for l in lists)):
        for l in lists:
            if i < len(l): out.append(l[i])
    return out

def dma_kv(slot, which):
    sd, si = (sK, sKi) if which == 'K' else (sV, sVi)
    t = sT0 if slot == SLOTA else sT1
    L = [f"s_add_u32 s{t}, s{sKVb}, s{si}",
         f"s_add_u32 s{si}, s{si}, 0x2000",
         f"s_and_b32 s{si}, s{si}, 0x1ffff",
         f"s_add_u32 m0, s{sWr}, {slot}" if slot else f"s_mov_b32 m0, s{sWr}"]
    D = [f"buffer_load_dwordx4 v{vDkv0 if j%2==0 else vDkv1}, {srd(sd)}, s{t} offen offset:{j*1024}{OPT['kvnt']} lds" for j in range(4)]
    return [L + D[:1]] + [[d] for d in D[1:]]
def dma_qp():
    G = []
    for slot in (SLOTA, SLOTB):
        L = [f"s_add_u32 m0, s{sWr}, {slot}" if slot else f"s_mov_b32 m0, s{sWr}"]
        if slot: L = [f"s_add_u32 s{sWo}, s{sWo}, 0x40000"] + L
        D = [f"buffer_load_dwordx4 v{vDw[j]}, {srd(sW)}, s{sWo} offen offset:{j*1024} lds" for j in range(4)]
        G += [L + D[:1]] + [[d] for d in D[1:]]
    G[-1] = G[-1] + [f"s_add_u32 s{sWo}, s{sWo}, 0x40000"]
    L = [f"s_add_u32 m0, s{sWr}, s{sMx}"]
    D = [f"buffer_load_dwordx4 v{vDx[j]}, {srd(sX)}, s{sXo} offen offset:{j*1024} lds" for j in range(4)]
    G += [L + D[:1]] + [[d] for d in D[1:]]
    G += [[f"s_add_u32 m0, m0, 0x1000", f"s_add_u32 s{sT0}, s{sXo}, 0x8000",
           f"buffer_load_dwordx4 v{vDx[0]}, {srd(sX)}, s{sT0} offen lds", f"s_add_u32 s{sXo}, s{sXo}, 128"]]
    return G
def next_round_ops():
    return [[f"s_add_u32 s{sKVb}, s{sKVb}, 0x100000",
             f"s_sub_u32 s{sWo}, s{sWo}, {8*0x80000 - 8*256}",
             f"s_sub_u32 s{sXo}, s{sXo}, 1024",
             f"s_cmp_eq_u32 s{sRound}, 0",
             f"s_cselect_b32 s{sT0}, 0, 0x40000000",
             f"s_add_u32 s{sWo}, s{sWo}, s{sT0}",
             f"s_add_u32 s{sXo}, s{sXo}, s{sT0}"]]

def addr_att(): return [f"v_add_u32 v{vA0}, s{sRd}, v{vKb}", f"v_add_u32 v{vA1}, s{sRd}, v{vV0b}", f"v_add_u32 v{vA2}, s{sRd}, v{vV1b}"]
def addr_qp(): return [f"v_add_u32 v{vA0}, s{sRd}, v{vWb}", f"v_add_u32 v{vA1}, s{sRd}, v{vXb}"]

def qfin_ops(s):
    ops = []
    for c in range(5):
        a = acc(2 * s, c)
        o = [f"v_mul_f32 v{a+i}, s{sC}, v{a+i}" for i in range(8)]
        o += [f"v_cvt_pk_bf16_f32 v{a+2*i}, v{a+2*i}, v{a+2*i+1}" for i in range(4)]
        o += [f"v_accvgpr_write_b32 a{Qreg(s,c)+i}, v{a+2*i}" for i in range(4)]
        ops += o
    return ops

def per_qp(m):
    P = Period(); P.addr = addr_qp()
    for ks in range(2):
        slot = SLOTA if ks == 0 else SLOTB
        k0 = len(P.m)
        xr = [XF + 4 * (ks * 5 + c) for c in range(5)]
        xl = mk([f"ds_read_b128 {vr(xr[c])}, v{vA1} offset:{c*2048 + ks*256}" for c in range(5)], tag='rd')
        if ks == 0: P.f += at(xl, -LEAD + 0.5, -LEAD + 5.5)
        else: P.f += at(xl, 8, 28)
        for t in range(8):
            k0 = len(P.m); r = rdW(P, k0, slot, t)
            for c in range(5):
                D = vr(acc(t, c))
                P.m += mk(f"{MF} {D}, {vr(r)}, {vr(xr[c])}, {'0' if (m == 0 and ks == 0) else D}")
    if m == 7:
        P.f += spread(qfin_ops(0), 53, 66)
        P.f += spread(qfin_ops(1), 66, 80)
    return P

def per_a0():
    P = Period(); P.addr = addr_att()
    for s in range(4):
        for kt in range(2): grpQK(P, SLOTB, 0, kt, s, 'zero')
    P.f += spread(qfin_ops(2), 0.5, 19.5)
    P.f += spread(qfin_ops(3), 19.6, 29.5)
    mx = interleave([colmax_ops(0, c, ET + 2 * c, ET + 2 * c + 1) +
                     [f"v_sub_f32 v{Mreg(c)+i}, 0, v{ET+2*c}" for i in range(4)] for c in range(5)])
    P.f += at(mk(mx), 40)
    for kt in range(2):
        for s in range(4): grpQK(P, SLOTA, 1, kt, s, 'negm')
    sub = [f"v_add_f32 v{Sreg(0,kt,c)+i}, v{Sreg(0,kt,c)+i}, v{Mreg(c)}" for kt in range(2) for c in range(5) for i in range(4)]
    P.f += spread(sub + softmax_ops(0) + ladd_ops(True), 40.5, 80)
    return P

def per_att(i):
    P = Period(); P.addr = addr_att()
    par = i % 2
    for g in range(8):
        grpPV(P, SLOTB, par ^ 1, g, i == 1)
        grpQK(P, SLOTA, par ^ 1, g // 4, g % 4, 'negm')
    P.f += spread(softmax_ops(par), 2.5, 78.5)
    P.f += at(mk(check_ops(par)), 80)
    P.f += at(mk(ladd_ops()), 80.5, 82.4)
    return P

def rl_ops():
    L = []
    for c in range(5):
        d = Lreg(c); t2 = Treg(c)
        L.append([f"v_mov_b32 v{t2}, v{d}", f"v_permlane16_swap_b32 v{d}, v{t2}", f"v_add_f32 v{d}, v{d}, v{t2}",
                  f"v_mov_b32 v{t2}, v{d}", f"v_permlane32_swap_b32 v{d}, v{t2}", f"v_add_f32 v{d}, v{d}, v{t2}",
                  f"v_rcp_f32 v{vRl[c]}, v{d}"])
    return interleave(L)

def per_a15():
    P = Period(); P.addr = addr_att()
    for g in range(8): grpPV(P, SLOTB, 0, g, False)
    P.f += spread(softmax_ops(1), 2.5, 39.5)
    P.f += at(mk(check_ops(1)), 40)
    for g in range(8): grpPV(P, SLOTA, 1, g, False)
    P.f += spread(ladd_ops() + rl_ops(), 40.5, 62)
    return P

def epi_ops():
    out = []
    for u in range(4):
        for c in range(5):
            k = u * 5 + c
            o = []
            if k % 4 == 0:
                o += [f"s_add_u32 s{sT2}, s{sOo}, {k*1024}"]
            o += [f"v_accvgpr_read_b32 v{TMP+i}, a{Oreg(2*u + i//4, c) + i%4}" for i in range(8)]
            o += [f"v_mul_f32 v{TMP+i}, v{vRl[c]}, v{TMP+i}" for i in range(8)]
            o += [f"v_cvt_pk_bf16_f32 v{TMP+i}, v{TMP+2*i}, v{TMP+2*i+1}" for i in range(4)]
            o += [f"buffer_store_dwordx4 {vr(TMP)}, v{vSt}, {srd(sO)}, s{sT2} offen offset:{(k%4)*1024}{OPT['ont']}"]
            out.append(o)
    out[-1] += [f"s_add_u32 s{sOo}, s{sOo}, {8*20480}"]
    return out

def build_k1():
    periods = []
    for r in range(2):
        for m in range(8): periods.append(per_qp(m))
        periods.append(per_a0())
        for i in range(1, 15): periods.append(per_att(i))
        periods.append(per_a15())
        assert pool_ctr[0] % NPOOL == 0
    def dma_for(j):
        if j < 8: return (next_round_ops() if j == 0 else []) + dma_qp()
        if j == 8: return dma_kv(SLOTB, 'K') + dma_kv(SLOTA, 'K')
        if j == 23: return dma_kv(SLOTB, 'V') + dma_kv(SLOTA, 'V')
        return dma_kv(SLOTB, 'V') + dma_kv(SLOTA, 'K')
    M = []; F = []
    for n, P in enumerate(periods):
        base = 80 * n
        assert len(P.m) == 80
        M += P.m
        for i in P.f: i.pos += base; F.append(i)
        b0 = base - LEAD - 0.5
        pre = [f"s_add_u32 s{sWr}, s{sRd}, s{sMw}",
               f"s_add_u32 s{sRd}, s{sRd}, {STAGE}",
               f"s_cmp_eq_u32 s{sRd}, {3*STAGE}",
               f"s_cselect_b32 s{sRd}, 0, s{sRd}"] + P.addr
        F += at(mk(pre), b0 - 1.2, b0 - 0.1)
        F += at(mk("s_barrier", tag='barwait'), b0)
        G = dma_for((n + 2) % 24)
        for gi, g in enumerate(G):
            F += at(mk(g), b0 + 3 + gi * 60.0 / len(G))
    E = epi_ops(); ep = OPT['epi_periods']
    flat = [x for ch in E for x in ch]
    F += spread(flat, 80 * 24 + 2, 80 * (24 + ep) - LEAD - 4)
    E = epi_ops()
    base = 80 * 47
    for k, ch in enumerate(E):
        u = k // 5
        F += at(mk(ch), base + max(62.5, 40 + 10 * (u + 1) + 2.5) + 0.01 * k if u < 3 else base + 81 + 0.01 * k)
    shift = LEAD + 4
    for i in F: i.pos += 0
    seq = merge_global(M, F)
    segs = [[]]
    for i in seq:
        if i.kind == 'barrier': segs.append([])
        segs[-1].append(i)
    return segs

def merge_global(M, F):
    fl = sorted(enumerate(F), key=lambda e: (e[1].pos, e[0]))
    out = []; j = 0
    for k, m in enumerate(M):
        while j < len(fl) and fl[j][1].pos <= k:
            out.append(fl[j][1]); j += 1
        out.append(m)
    out += [e[1] for e in fl[j:]]
    return out

def k1_setup():
    cexp = math.log2(math.e) / math.sqrt(128.0)
    return mk(f"""
s_cmp_ge_u32 s2, 256
s_cbranch_scc1 K1_END
s_and_b32 s3, s2, 7
s_lshr_b32 s4, s3, 2
s_mul_i32 s4, s4, 40
s_add_u32 s6, s0, s4
s_addc_u32 s7, s1, 0
s_load_dwordx8 s[52:59], s[6:7], 0
s_load_dwordx2 s[60:61], s[0:1], 96
v_lshrrev_b32 v20, 6, v0
v_and_b32 v0, 63, v0
v_readfirstlane_b32 s{sWv}, v20
v_lshrrev_b32 v20, 4, v0
v_bfe_u32 v21, v0, 2, 2
v_and_b32 v22, 3, v0
s_lshr_b32 s5, s2, 3
s_bfe_u32 s62, s3, 0x10001
s_and_b32 s63, s3, 1
s_lshr_b32 s64, s5, 2
s_lshl_b32 s62, s62, 3
s_add_u32 s64, s64, s62
s_and_b32 s65, s5, 3
s_lshl_b32 s65, s65, 1
s_lshl_b32 s63, s63, 4
s_add_u32 s65, s65, s63
s_lshr_b32 s66, s{sWv}, 1
s_and_b32 s67, s{sWv}, 1
s_add_u32 s65, s65, s66
s_lshl_b32 s{sMw}, s{sWv}, 12
s_mul_i32 s{sMx}, s{sWv}, 1024
s_add_u32 s{sMx}, s{sMx}, {XOFF}
s_lshl_b32 s68, s64, 5
s_add_u32 s68, s68, s65
s_lshl_b32 s{sKVb}, s68, 17
s_lshl_b32 s68, s67, 12
s_add_u32 s{sKVb}, s{sKVb}, s68
s_mul_i32 s{sKi}, s2, {OPT['rot']*0x2000*5}
s_lshr_b32 s68, s2, 4
s_mul_i32 s68, s68, {OPT['rot']*0x2000*3}
s_add_u32 s{sKi}, s{sKi}, s68
s_and_b32 s{sKi}, s{sKi}, 0x1ffff
s_mov_b32 s{sVi}, s{sKi}
s_lshl_b32 s{sWo}, s65, 8
s_lshl_b32 s68, s67, 17
s_add_u32 s{sWo}, s{sWo}, s68
s_mul_i32 s{sXo}, s64, 163840
s_mul_i32 s68, s{sWv}, 40960
s_add_u32 s{sXo}, s{sXo}, s68
s_lshr_b32 s68, s3, 2
s_lshl_b32 s68, s68, 4
s_add_u32 s68, s68, s64
s_lshl_b32 s68, s68, 1
s_add_u32 s68, s68, s67
s_mul_i32 s{sOo}, s68, 655360
s_mul_i32 s68, s65, 20480
s_add_u32 s{sOo}, s{sOo}, s68
s_mov_b32 s{sC}, {f2h(cexp)}
s_mov_b32 s{sTh}, {f2h(OPT['thresh'])}
s_mov_b32 s{sRound}, 0
s_lshl_b32 s69, s66, 13
s_mul_i32 s70, s67, 10240
s_add_u32 s70, s70, {XOFF}
v_and_b32 v23, 1, v21
v_lshlrev_b32 v23, 1, v23
v_xor_b32 v23, v23, v20
v_lshlrev_b32 v23, 4, v23
v_lshl_add_u32 v23, v22, 6, v23
v_lshl_add_u32 v{vKb}, v21, 10, v23
v_add_u32 v{vKb}, s69, v{vKb}
v_lshl_add_u32 v{vXb}, v21, 9, v23
v_add_u32 v{vXb}, s70, v{vXb}
v_and_b32 v23, 1, v20
v_lshlrev_b32 v23, 5, v23
v_lshlrev_b32 v24, 3, v22
v_xor_b32 v23, v23, v24
v_lshl_add_u32 v23, v21, 6, v23
v_lshl_add_u32 v23, v20, 10, v23
v_add_u32 v{vV0b}, s69, v23
v_xor_b32 v{vV1b}, 32, v{vV0b}
v_lshlrev_b32 v23, 4, v22
v_lshl_add_u32 v23, v21, 6, v23
v_lshl_add_u32 v23, v20, 11, v23
v_add_u32 v{vWb}, s69, v23
v_lshlrev_b32 v23, 4, v22
v_lshl_add_u32 v23, v20, 6, v23
v_lshl_add_u32 v{vDkv0}, v21, 8, v23
v_xor_b32 v{vDkv1}, 32, v{vDkv0}
v_lshl_add_u32 v{vDw[0]}, v21, 13, v23
v_add_u32 v{vDw[1]}, {31744}, v{vDw[0]}
v_add_u32 v{vDw[2]}, {2*31744}, v{vDw[0]}
v_add_u32 v{vDw[3]}, {3*31744}, v{vDw[0]}
v_lshrrev_b32 v24, 5, v0
v_lshlrev_b32 v25, 1, v24
v_xor_b32 v25, v25, v22
v_lshlrev_b32 v25, 4, v25
v_and_b32 v23, 1, v20
v_lshl_add_u32 v25, v23, 6, v25
v_lshl_add_u32 v25, v21, 10, v25
v_lshl_add_u32 v{vDx[0]}, v24, 12, v25
v_add_u32 v{vDx[1]}, 7168, v{vDx[0]}
v_add_u32 v{vDx[2]}, {2*7168}, v{vDx[0]}
v_add_u32 v{vDx[3]}, {3*7168}, v{vDx[0]}
v_lshlrev_b32 v{vSt}, 4, v0
s_waitcnt lgkmcnt(0)
s_mov_b32 s{sX}, s52
s_mov_b32 s{sX+1}, s53
s_mov_b32 s{sX+2}, 2621440
s_mov_b32 s{sX+3}, 0x20000
s_mov_b32 s{sK}, s54
s_mov_b32 s{sK+1}, s55
s_mov_b32 s{sK+2}, 67108864
s_mov_b32 s{sK+3}, 0x20000
s_mov_b32 s{sV}, s56
s_mov_b32 s{sV+1}, s57
s_mov_b32 s{sV+2}, 67108864
s_mov_b32 s{sV+3}, 0x20000
s_mov_b32 s{sW}, s58
s_mov_b32 s{sW+1}, s59
s_mov_b32 s{sW+2}, 4194304
s_mov_b32 s{sW+3}, 0x20000
s_mov_b32 s{sO}, s60
s_mov_b32 s{sO+1}, s61
s_mov_b32 s{sO+2}, 41943040
s_mov_b32 s{sO+3}, 0x20000
s_mov_b32 s{sWr}, s{sMw}
""") + mk([x for g in dma_qp() for x in g]) + mk(f"s_add_u32 s{sWr}, s{sMw}, {STAGE}", tag='vmreset') + \
        mk([x for g in dma_qp() for x in g]) + mk(f"s_mov_b32 s{sRd}, {2*STAGE}")

def rare(par):
    L = [f"RARE{par}:", "s_nop 15"]
    d, t2, f = TMP, TMP + 1, TMP + 2
    for c in range(5):
        L += colmax_ops(par, c, d, t2)
        L += [f"v_max_f32 v{d}, 0, v{d}", f"v_exp_f32 v{f}, -v{d}"]
        L += [f"v_sub_f32 v{Mreg(c)+i}, v{Mreg(c)+i}, v{d}" for i in range(4)]
        L += [f"v_sub_f32 v{blk(c)+i}, v{blk(c)+i}, v{d}" for i in range(16)]
        L += [f"v_mul_f32 v{Lreg(c)}, v{Lreg(c)}, v{f}"]
        for t in range(8):
            L += [f"v_accvgpr_read_b32 v{TMP+4+i}, a{Oreg(t,c)+i}" for i in range(4)]
            L += [f"v_mul_f32 v{TMP+4+i}, v{TMP+4+i}, v{f}" for i in range(4)]
            L += [f"v_accvgpr_write_b32 a{Oreg(t,c)+i}, v{TMP+4+i}" for i in range(4)]
    L += softmax_ops(par)
    L += ["s_nop 3", f"s_setpc_b64 s[{sRet}:{sRet+1}]"]
    seq = mk(L); analyze_trace(seq)
    return seq

def segtext(s): return "\n".join(i.text for i in s)

def emit_k1():
    segs = build_k1()
    pre = segs[0]; S = segs[1:]
    assert len(S) == 48
    T = [segtext(s) for s in S]
    k0 = 23
    while k0 > 0 and T[k0 - 1] == T[k0 - 1 + 24]: k0 -= 1
    prog = []; trace = []
    lab = [0]; stubs = []
    def fixlabels(seq):
        for i in seq:
            if '@' in i.text:
                if i.kind == 'branch':
                    lab[0] += 1
                    tgt = i.text.split()[1].split('_')[0]
                    stubs.append((tgt, lab[0]))
                i.text = i.text.replace('@', str(lab[0]))
    def fold(lo, hi):
        p = []; t = []; k = lo
        while k < hi:
            done = False
            for L in (1, 2):
                n = 1
                while k + (n + 1) * L <= hi and all(T[k + j] == T[k + n * L + j] for j in range(L)): n += 1
                if n >= 2:
                    body = [i for j in range(L) for i in S[k + j]]
                    fixlabels(body)
                    lab[0] += 1; ln = f"LP{lab[0]}"
                    init = mk(f"s_mov_b32 s{sCnt}, {n}")
                    tail = mk([f"s_sub_u32 s{sCnt}, s{sCnt}, 1", f"s_cmp_lg_u32 s{sCnt}, 0", f"s_cbranch_scc1 {ln}"])
                    p += init + mk(ln + ":") + body + tail
                    t += init + (body + tail) * min(n, 3)
                    print(f"  loop segs {k}..{k+n*L-1} L={L} n={n}", file=sys.stderr)
                    k += n * L; done = True; break
            if not done:
                fixlabels(S[k]); p += S[k]; t += S[k]; k += 1
        return p, t
    setup = k1_setup()
    p1, t1 = fold(0, k0)
    p2, t2 = fold(k0, 23)
    p3, t3 = fold(23, 24 + k0)
    p4, t4 = fold(47, 48)
    br = mk([f"s_cmp_lg_u32 s{sRound}, 0", "s_cbranch_scc1 K1_FINAL"])
    back = mk([f"s_mov_b32 s{sRound}, 1", "s_branch K1_OUTER"])
    prog = setup + pre + p1 + mk("K1_OUTER:") + p2 + br + p3 + back + mk("K1_FINAL:") + p4 + mk(["K1_END:", "s_endpgm"])
    trace = setup + pre + t1 + t2 + br + t3 + back + t2 + br + t4
    analyze_trace(trace)
    out = emit(prog) + "\n"
    for tgt, n in stubs:
        out += f"{tgt}_{n}:\n  s_call_b64 s[{sRet}:{sRet+1}], {tgt}\n  s_branch RET_{n}\n"
    out += emit(rare(0)) + "\n" + emit(rare(1)) + "\n"
    print(f"  k0={k0}", file=sys.stderr)
    return out

def emit_k2():
    NS = 4
    sOs, sWs, sOut = 8, 12, 16
    sWv, sOo, sWo, sM, sCnt, sT, sT2 = 20, 21, 22, 23, 24, 25, 26
    vE, vOd, vL, vL2 = 1, 2, 3, 4
    vD = [5, 6, 7, 8]
    vWr, vRdd, vOut = 9, 10, 11
    PO = 32; NP = 8
    AC = 96
    def ac(t, c): return AC + (t * 5 + c) * 4
    def Of(st, c): return (st * 5 + c) * 4
    setup = mk(f"""
s_cmp_ge_u32 s2, 256
s_cbranch_scc1 K2_END
s_and_b32 s3, s2, 7
s_lshr_b32 s4, s3, 2
s_mul_i32 s5, s4, 40
s_add_u32 s6, s0, s5
s_addc_u32 s7, s1, 0
s_load_dwordx2 s[30:31], s[6:7], 32
s_load_dwordx2 s[32:33], s[0:1], 80
s_load_dwordx2 s[34:35], s[0:1], 96
v_lshrrev_b32 v20, 6, v0
v_and_b32 v0, 63, v0
v_readfirstlane_b32 s{sWv}, v20
v_lshrrev_b32 v20, 4, v0
v_bfe_u32 v21, v0, 2, 2
v_and_b32 v22, 3, v0
s_lshr_b32 s5, s2, 3
s_lshl_b32 s36, s3, 3
s_lshr_b32 s37, s5, 2
s_add_u32 s36, s36, s37
s_and_b32 s37, s5, 3
s_mul_i32 s{sOo}, s36, 655360
s_mul_i32 s38, s{sWv}, 163840
s_add_u32 s{sOo}, s{sOo}, s38
s_lshl_b32 s{sWo}, s{sWv}, 20
s_lshl_b32 s38, s37, 8
s_add_u32 s{sWo}, s{sWo}, s38
s_lshl_b32 s{sM}, s{sWv}, 15
v_and_b32 v23, 1, v20
v_lshlrev_b32 v23, 5, v23
v_lshlrev_b32 v24, 3, v22
v_xor_b32 v23, v23, v24
v_lshl_add_u32 v23, v21, 6, v23
v_lshl_add_u32 v23, v20, 10, v23
v_add_u32 v{vE}, s{sM}, v23
v_xor_b32 v{vOd}, 32, v{vE}
v_lshlrev_b32 v{vL}, 4, v0
v_add_u32 v{vL2}, 4096, v{vL}
v_lshlrev_b32 v23, 4, v22
v_lshl_add_u32 v23, v20, 6, v23
v_lshl_add_u32 v{vD[0]}, v21, 10, v23
v_xor_b32 v24, 32, v{vD[0]}
v_add_u32 v{vD[1]}, 3072, v24
v_add_u32 v{vD[2]}, 6144, v{vD[0]}
v_add_u32 v{vD[3]}, 9216, v24
v_add_u32 v{vWr}, s{sM}, v{vL}
s_mul_i32 s38, s{sWv}, 10240
v_add_u32 v{vRdd}, s38, v{vL}
v_and_b32 v23, 15, v0
v_lshlrev_b32 v23, 11, v23
v_lshl_add_u32 v{vOut}, v20, 3, v23
s_and_b32 s39, s36, 31
s_mul_i32 s39, s39, {80*2048}
s_lshl_b32 s38, s4, 10
s_add_u32 s39, s39, s38
s_lshl_b32 s38, s37, 8
s_add_u32 s39, s39, s38
s_lshl_b32 s38, s{sWv}, 6
s_add_u32 s39, s39, s38
s_waitcnt lgkmcnt(0)
s_mov_b32 s{sOs}, s34
s_mov_b32 s{sOs+1}, s35
s_mov_b32 s{sOs+2}, 41943040
s_mov_b32 s{sOs+3}, 0x20000
s_mov_b32 s{sWs}, s30
s_mov_b32 s{sWs+1}, s31
s_mov_b32 s{sWs+2}, 4194304
s_mov_b32 s{sWs+3}, 0x20000
s_mov_b32 s{sOut}, s32
s_mov_b32 s{sOut+1}, s33
s_mov_b32 s{sOut+2}, 5242880
s_mov_b32 s{sOut+3}, 0x20000
""")
    def loads(st):
        G = []
        for half in range(2):
            L = [f"s_add_u32 m0, s{sM}, {st*8192 + half*4096}"]
            if half: L = [f"s_add_u32 s{sWo}, s{sWo}, 16384"] + L
            D = [f"buffer_load_dwordx4 v{vD[j]}, {srd(sWs)}, s{sWo} offen offset:{j*1024} lds" for j in range(4)]
            G += [L + D[:1]] + [[d] for d in D[1:]]
        G[-1] += [f"s_add_u32 s{sWo}, s{sWo}, 16384"]
        for c in range(5):
            G.append([f"buffer_load_dwordx4 {ar(Of(st,c))}, v{vL if c<4 else vL2}, {srd(sOs)}, s{sOo} offen offset:{(c%4)*1024}{OPT['k2ont']}"])
        G[-1] += [f"s_add_u32 s{sOo}, s{sOo}, 5120"]
        return G
    M = []; F = []; pc = 0
    LD = 12
    for j in range(32):
        st = j % NS; base = 40 * j
        for t in range(8):
            r = PO + 4 * (pc % NP); pc += 1
            a = vE if t % 2 == 0 else vOd
            rd = mk([f"ds_read_b64_tr_b16 {vr(r,2)}, v{a} offset:{st*8192 + (t//2)*256}",
                     f"ds_read_b64_tr_b16 {vr(r+2,2)}, v{a} offset:{st*8192 + (t//2)*256 + 4096}"])
            if t == 0: rd[0].rd = rd[0].rd + [f"a{Of(st,0)}"]
            F += at(rd, base + 5 * t - LD, base + 5 * t - LD + 2)
            for c in range(5):
                D = vr(ac(t, c))
                M += mk(f"{MF} {D}, {vr(r)}, {ar(Of(st,c))}, {'0' if j == 0 else D}")
        F += at(mk(f"SEG{j}:"), base - 0.01)
        if j + 3 < 32:
            G = loads((j + 3) % NS)
            for gi, g in enumerate(G): F += at(mk(g), base + 0.5 + gi * 26.0 / len(G))
    seq = merge_global(M, F)
    segs = [[]]
    for i in seq:
        if i.kind == 'label': segs.append([]); continue
        segs[-1].append(i)
    pro = [x for st in range(3) for g in loads(st) for x in mk(g)]
    pre = segs[0]; S = segs[1:]
    T = [segtext(s) for s in S]
    for k in range(5, 29): assert T[k] == T[k - 4], k
    body = [i for k in range(1, 5) for i in S[k]]
    init = mk(f"s_mov_b32 s{sCnt}, 7")
    tail = mk([f"s_sub_u32 s{sCnt}, s{sCnt}, 1", f"s_cmp_lg_u32 s{sCnt}, 0", "s_cbranch_scc1 K2_LOOP"])
    rest = [i for k in range(29, 32) for i in S[k]]
    epi = ["s_barrier"]
    epi += [f"s_mul_i32 s38, s{sWv}, 40960", f"v_add_u32 v{vWr}, s38, v{vL}"]
    for t in range(8):
        for c in range(5):
            epi.append(f"ds_write_b128 v{vWr}, {vr(ac(t,c))} offset:{(t*5+c)*1024}")
    epi += ["s_waitcnt lgkmcnt(0)", "s_barrier"]
    epi += [f"v_add_u32 v12, {2*40960}, v{vRdd}"]
    R = 96
    for k in range(10):
        for w in range(4):
            a = vRdd if w < 2 else 12
            epi.append(f"ds_read_b128 {vr(R + (k*4+w)*4)}, v{a} offset:{(w%2)*40960 + k*1024}")
    for k in range(10):
        b = R + k * 16; tt, c = k // 5, k % 5
        epi += [f"v_add_f32 v{b+i}, v{b+i}, v{b+4+i}" for i in range(4)]
        epi += [f"v_add_f32 v{b+8+i}, v{b+8+i}, v{b+12+i}" for i in range(4)]
        epi += [f"v_add_f32 v{b+i}, v{b+i}, v{b+8+i}" for i in range(4)]
        epi += [f"v_cvt_pk_bf16_f32 v{b}, v{b}, v{b+1}", f"v_cvt_pk_bf16_f32 v{b+1}, v{b+2}, v{b+3}"]
        epi += [f"s_add_u32 s38, s39, {c*16*2048}",
                f"buffer_store_dwordx2 {vr(b,2)}, v{vOut}, {srd(sOut)}, s38 offen offset:{tt*32}"]
    epi = mk(epi)
    prog = setup + pro + pre + S[0] + init + mk("K2_LOOP:") + body + tail + rest + epi + mk(["K2_END:", "s_endpgm"])
    trace = setup + pro + pre + S[0] + init + (body + tail) * 3 + rest + epi
    analyze_trace(trace)
    return emit(prog) + "\n"

def kd(name, vg=512, acc=256):
    return f""".amdhsa_kernel {name}
  .amdhsa_next_free_vgpr {vg}
  .amdhsa_next_free_sgpr 96
  .amdhsa_accum_offset {acc}
  .amdhsa_group_segment_fixed_size 0
  .amdhsa_kernarg_size 104
  .amdhsa_user_sgpr_count 2
  .amdhsa_user_sgpr_kernarg_segment_ptr 1
  .amdhsa_system_sgpr_workgroup_id_x 1
.end_amdhsa_kernel
"""

K1 = NAME + "_kernel"; K2 = "oproj_kernel"
hdr = open("cdna_kernels/" + NAME + ".s.ref").read().split("; Override launch")[0]
o = hdr
if not OPT['k2only']: o += f"; @launch kernel={K1} grid=(256,1,1) block=(256,1,1) lds={3*STAGE}\n"
if not OPT['k1only']: o += f"; @launch kernel={K2} grid=(256,1,1) block=(256,1,1) lds=163840\n"
o += '.amdgcn_target "amdgcn-amd-amdhsa--gfx950"\n.text\n'
o += f".globl {K1}\n.p2align 8\n.type {K1},@function\n{K1}:\n" + emit_k1()
o += f".globl {K2}\n.p2align 8\n.type {K2},@function\n{K2}:\n" + emit_k2()
o += '.section .rodata,"a"\n.p2align 6\n' + kd(K1) + ".p2align 6\n" + kd(K2)
open(sys.argv[1], "w").write(o)
```

```python
import re

def regs_of(tok):
    tok = tok.strip()
    tok = re.sub(r'^(neg|abs)\((.*)\)$', r'\2', tok)
    tok = tok.lstrip('-').strip('|')
    m = re.fullmatch(r'([vas])(\d+)', tok)
    if m: return [tok]
    m = re.fullmatch(r'([vas])\[(\d+):(\d+)\]', tok)
    if m: return [f"{m.group(1)}{i}" for i in range(int(m.group(2)), int(m.group(3)) + 1)]
    if tok in ('m0', 'vcc', 'exec', 'scc'): return [tok]
    if tok in ('vcc_lo', 'vcc_hi'): return ['vcc']
    if tok in ('exec_lo', 'exec_hi'): return ['exec']
    return []

TRANS = ('v_exp_f32', 'v_log_f32', 'v_rcp_f32', 'v_rsq_f32', 'v_sqrt_f32', 'v_sin_f32', 'v_cos_f32')
SCC_W = ('s_add_', 's_sub_', 's_addc', 's_subb', 's_and_', 's_or_', 's_xor_', 's_lshl', 's_lshr', 's_ashr', 's_cmp', 's_min', 's_max', 's_andn2', 's_not', 's_bfe', 's_addk', 's_cmpk')

class I:
    __slots__ = ('text', 'op', 'kind', 'rd', 'wr', 'srcC', 'lgkm', 'vm', 'nop', 'pos', 'tag', 'passes', 'lds_rd', 'lds_wr')
    def __init__(self, text, pos=None, tag=None):
        self.text = text.strip(); self.pos = pos; self.tag = tag
        self.lgkm = None; self.vm = None; self.nop = 0; self.srcC = []; self.passes = 0
        self.lds_rd = None; self.lds_wr = None
        t = self.text.split(';')[0].strip()
        if t.endswith(':') or t == '' or t.startswith('.'):
            self.op = 'label'; self.kind = 'label'; self.rd = []; self.wr = []; return
        sp = t.split(None, 1); op = sp[0]; self.op = op
        rest = sp[1] if len(sp) > 1 else ''
        ops = [o.strip() for o in rest.split(',')] if rest else []
        mods = []
        if ops:
            l = ops[-1].split()
            ops[-1] = l[0] if l else ''
            mods = l[1:]
        R = lambda k: regs_of(ops[k]) if k < len(ops) else []
        allfrom = lambda k: [r for o in ops[k:] for r in regs_of(o)]
        rd = []; wr = []
        if op.startswith('v_mfma'):
            self.kind = 'mfma'; wr = R(0); rd = R(1) + R(2) + R(3); self.srcC = R(3)
            self.passes = 4 if '16x16x32' in op else 8
        elif op.startswith('ds_read'):
            self.kind = 'dsr'; wr = R(0); rd = R(1)
        elif op.startswith('ds_write'):
            self.kind = 'dsw'; rd = allfrom(0)
        elif op.startswith('buffer_load'):
            if 'lds' in mods:
                self.kind = 'dma'; rd = allfrom(0) + ['m0']
            else:
                self.kind = 'vld'; wr = R(0); rd = allfrom(1)
        elif op.startswith('global_load'):
            self.kind = 'vld'; wr = R(0); rd = allfrom(1)
        elif op.startswith('buffer_store'):
            self.kind = 'vst'; rd = allfrom(0)
        elif op.startswith('s_load') or op in ('s_memtime', 's_memrealtime'):
            self.kind = 'smem'; wr = R(0); rd = allfrom(1)
        elif op in ('s_waitcnt', 's_nop', 's_barrier', 's_endpgm', 's_setprio', 's_sleep'):
            self.kind = op[2:]
            if op == 's_barrier': wr = ['scc']
        elif op.startswith('s_cbranch') or op in ('s_branch', 's_call_b64', 's_setpc_b64'):
            self.kind = 'branch'
            if 'scc' in op: rd = ['scc']
            if 'vcc' in op: rd = ['vcc']
            if 'exec' in op: rd = ['exec']
        elif op.startswith('s_cmp'):
            self.kind = 'salu'; rd = allfrom(0); wr = ['scc']
        elif op.startswith('s_'):
            self.kind = 'salu'; wr = R(0); rd = allfrom(1)
            if op.startswith(SCC_W): wr = wr + ['scc']
            if op.startswith(('s_cselect', 's_addc', 's_subb')): rd = rd + ['scc']
            if op.startswith(('s_addk', 's_mulk')): rd = rd + R(0)
        elif op.startswith('v_'):
            self.kind = 'trans' if op.split('_e')[0] in TRANS or op in TRANS else 'valu'
            if op.startswith('v_permlane') and 'swap' in op:
                rd = R(0) + R(1); wr = R(0) + R(1); self.kind = 'perm'
            elif op.startswith('v_cmp'):
                wr = R(0); rd = allfrom(1)
            elif op.startswith(('v_fmac', 'v_dot2c', 'v_writelane')):
                wr = R(0); rd = allfrom(0)
            elif op.startswith(('v_add_co', 'v_sub_co', 'v_addc_co')):
                wr = R(0) + R(1); rd = allfrom(2)
            else:
                wr = R(0); rd = allfrom(1)
        else:
            raise ValueError("unknown op " + text)
        self.rd = rd; self.wr = wr
    def is_valu(self): return self.kind in ('valu', 'trans', 'perm')
    def __repr__(self): return self.text

def mk(lines, pos=None, tag=None):
    if isinstance(lines, str): lines = lines.strip().split('\n')
    return [I(l, pos, tag) for l in lines if l.strip() and not l.strip().startswith(';')]

def analyze_trace(trace):
    for _ in range(3):
        changed = _pass(trace)
        if not changed: break

def _pass(trace):
    changed = False
    ds = []
    vm = []
    hist = []
    ws = 0
    HL = 24
    nvm = 0; lastdma = -1; mark = -1
    for ins in trace:
        if ins.tag == 'vmreset': mark = lastdma
        if ins.kind == 'label': continue
        touched = set(ins.rd) | set(ins.wr)
        if ins.tag == 'barwait':
            n = min(nvm - 1 - mark, 63)
            if ins.vm is None or n < ins.vm: ins.vm = n; changed = True
            if ins.lgkm != 0: ins.lgkm = 0; changed = True
            mark = lastdma
        if ins.kind in ('vld', 'dma', 'vst') and not ins.text.endswith('; nc'):
            if ins.kind == 'dma' and not ins.text.endswith('; pf'): lastdma = nvm
            nvm += 1
        if ins.kind == 'waitcnt':
            m = re.search(r'lgkmcnt\((\d+)\)', ins.text)
            if m:
                n = int(m.group(1)); ds = ds[len(ds) - n:] if n < len(ds) else ds
                if n == 0: ds = []
            m = re.search(r'vmcnt\((\d+)\)', ins.text)
            if m:
                n = int(m.group(1)); vm = vm[len(vm) - n:] if n < len(vm) else vm
                if n == 0: vm = []
        need = None
        for k in range(len(ds) - 1, -1, -1):
            if ds[k] & touched:
                need = len(ds) - 1 - k; break
        if need is not None:
            if any('SMEM' in e for e in ds): need = 0
            need = min(need, 15)
            if ins.lgkm is None or need < ins.lgkm: ins.lgkm = need; changed = True
        needv = None
        for k in range(len(vm) - 1, -1, -1):
            if vm[k] & touched:
                needv = len(vm) - 1 - k; break
        if needv is not None:
            needv = min(needv, 63)
            if ins.vm is None or needv < ins.vm: ins.vm = needv; changed = True
        if ins.lgkm is not None:
            n = ins.lgkm; ds = ds[len(ds) - n:] if 0 < n < len(ds) else ([] if n == 0 else ds)
        if ins.vm is not None:
            n = ins.vm; vm = vm[len(vm) - n:] if 0 < n < len(vm) else ([] if n == 0 else vm)
        pre = 1 if (ins.lgkm is not None or ins.vm is not None) else 0
        req = 0
        rdS = set(ins.rd); wrS = set(ins.wr)
        for (p, pws) in (hist[-HL:] if ins.kind != 'wait' else []):
            dist = ws + pre - pws - 1
            need_ws = hazard(p, ins, rdS, wrS)
            if need_ws > dist: req = max(req, need_ws - dist)
        if req > ins.nop: ins.nop = req; changed = True
        ws += pre + ins.nop
        hist.append((ins, ws))
        if len(hist) > 64: hist = hist[-HL:]
        if ins.kind == 'nop':
            ws += int(ins.text.split()[1]) + 1
        elif ins.kind == 'wait':
            hist.pop()
        else:
            ws += 1
        if ins.kind == 'dsr': ds.append(set(ins.wr))
        elif ins.kind == 'dsw': ds.append(set())
        elif ins.kind == 'vld': vm.append(set(ins.wr))
        elif ins.kind in ('dma', 'vst') and not ins.text.endswith('; nc'): vm.append(set(ins.wr))
        elif ins.kind == 'smem': ds.append(set(ins.wr) | {'SMEM'})
    return changed

def hazard(p, c, rdS, wrS):
    n = 0
    pw = set(p.wr)
    if p.kind == 'mfma':
        big = {4: 8, 8: 12}[p.passes]; ovl = {4: 6, 8: 10}[p.passes]; war = {4: 3, 8: 7}[p.passes]
        if c.kind == 'mfma':
            cC = set(c.srcC)
            ab = rdS - cC if not (set(c.rd[:len(c.rd) - len(c.srcC)]) & cC) else set(c.rd[:len(c.rd) - len(c.srcC)])
            if pw & ab: n = max(n, big)
            if pw & cC:
                if not (list(p.wr) == list(c.srcC) and p.passes == c.passes): n = max(n, ovl)
            elif pw & wrS: n = max(n, ovl)
        else:
            if pw & (rdS | wrS): n = max(n, big)
            if c.is_valu() and (set(p.srcC) & wrS): n = max(n, war)
    elif p.is_valu():
        vw = {r for r in pw if r[0] in 'va' and r != 'vcc'}
        sw = pw - vw
        if c.kind == 'mfma' and (vw & rdS): n = max(n, 2)
        if c.kind == 'perm' and (vw & rdS): n = max(n, 2)
        if p.kind == 'trans' and c.is_valu() and c.kind != 'trans' and (vw & rdS): n = max(n, 1)
        if c.op.startswith(('v_readfirstlane', 'v_readlane')) and (vw & rdS): n = max(n, 1)
        if sw:
            if c.is_valu() and (sw & rdS): n = max(n, 2)
            if c.kind in ('vld', 'vst', 'dma') and (sw & rdS): n = max(n, 5)
            if c.kind in ('salu', 'branch') and (sw & rdS): n = max(n, 1)
    elif p.kind == 'salu':
        if 'm0' in pw and c.kind == 'dma': n = max(n, 1)
    elif p.kind == 'vst':
        if ('x4' in p.op or 'x3' in p.op):
            data = set(regs_of(p.text.split(None, 1)[1].split(',')[0]))
            if data & wrS: n = max(n, 2)
    return n

def emit(seq):
    out = []
    for ins in seq:
        if ins.kind == 'label':
            out.append(ins.text); continue
        w = []
        if ins.vm is not None: w.append(f"vmcnt({ins.vm})")
        if ins.lgkm is not None: w.append(f"lgkmcnt({ins.lgkm})")
        if w: out.append("  s_waitcnt " + " ".join(w))
        n = ins.nop
        while n > 0:
            k = min(n, 16); out.append(f"  s_nop {k-1}"); n -= k
        if ins.kind != 'wait': out.append("  " + ins.text)
    return "\n".join(out)

def merge(mf, fillers):
    fl = sorted(enumerate(fillers), key=lambda e: (e[1].pos, e[0]))
    out = []; j = 0
    for k, m in enumerate(mf):
        while j < len(fl) and fl[j][1].pos <= k:
            out.append(fl[j][1]); j += 1
        out.append(m)
    while j < len(fl):
        out.append(fl[j][1]); j += 1
    return out

def at(instrs, p0, p1=None):
    n = len(instrs)
    if p1 is None: p1 = p0
    for i, ins in enumerate(instrs):
        ins.pos = p0 + (p1 - p0) * i / max(n, 1)
    return instrs

def W(regs, pos=None):
    i = I("s_nop 0", pos); i.text = "; wait " + ",".join(regs[:1]); i.kind = 'wait'; i.op = 'wait'; i.rd = list(regs); i.wr = []
    return i

MEMK = ('dsr', 'dsw', 'dma', 'vld', 'vst')
def build_deps(ref):
    n = len(ref); preds = [set() for _ in range(n)]
    lastw = {}; readers = {}
    last = {'ds': None, 'vm': None, 'fenceM': None, 'fenceV': None, 'mfma': None}
    since_fM = []; since_fV = []
    for k, i in enumerate(ref):
        P = preds[k]
        for r in i.rd:
            if r in lastw: P.add(lastw[r])
        for r in i.wr:
            if r in lastw: P.add(lastw[r])
            for q in readers.get(r, ()): P.add(q)
        for r in i.rd: readers.setdefault(r, []).append(k)
        for r in i.wr: lastw[r] = k; readers[r] = []
        isds = i.kind in ('dsr', 'dsw', 'smem'); isvm = i.kind in ('dma', 'vld', 'vst')
        if isds:
            if last['ds'] is not None: P.add(last['ds'])
            last['ds'] = k
        if isvm:
            if last['vm'] is not None: P.add(last['vm'])
            last['vm'] = k
        isV = i.is_valu() or i.kind == 'mfma'
        if i.kind in ('barrier', 'waitcnt'):
            P.update(since_fM); since_fM = []
            if last['fenceM'] is not None: P.add(last['fenceM'])
            last['fenceM'] = k
        elif isds or isvm or i.kind == 'wait':
            if last['fenceM'] is not None: P.add(last['fenceM'])
            since_fM.append(k)
        if i.kind in ('branch', 'label'):
            P.update(since_fV); since_fV = []
            if last['fenceV'] is not None: P.add(last['fenceV'])
            last['fenceV'] = k
        elif isV:
            if last['fenceV'] is not None: P.add(last['fenceV'])
            since_fV.append(k)
        P.discard(k)
    return preds

def icost(i, first):
    k = i.kind
    if k == 'trans': return 8
    if k in ('valu', 'perm'): return 4
    if k in ('dsr', 'dsw'): return 8 if first else 12
    if k in ('dma', 'vld', 'vst'): return 12 if first else 16
    if k == 'label': return 0
    return 4

def gap_schedule(M, F, early=3.0, late=2.0, gap=16):
    fl = [e[1] for e in sorted(enumerate(F), key=lambda e: (e[1].pos, e[0]))]
    ref = []; j = 0; midx = []
    for k, m in enumerate(M):
        while j < len(fl) and fl[j].pos <= k: ref.append(fl[j]); j += 1
        m.pos = k; midx.append(len(ref)); ref.append(m)
    ref += fl[j:]
    for k, i in enumerate(ref):
        if 'scc' in i.rd:
            q = k - 1
            while 'scc' not in ref[q].wr: q -= 1
            assert ref[q].op.startswith('s_cmp'), (ref[q].text, i.text)
    preds = build_deps(ref)
    n = len(ref); done = [False] * n; when = [None] * n
    out = []
    cur = {'g': -1}
    def place(k):
        done[k] = True; when[k] = (cur['g'], len(out)); out.append(ref[k])
    def force(k):
        st = [k]; order = []
        seen = set()
        def rec(x):
            if done[x] or x in seen: return
            seen.add(x)
            for p in sorted(preds[x]): rec(p)
            order.append(x)
        rec(k)
        for x in sorted(order): place(x)
    def ready(k):
        i = ref[k]
        for p in preds[k]:
            if not done[p]: return False
            q = ref[p]
            if q.kind == 'mfma' and (set(q.wr) & (set(i.rd) | set(i.wr))) and cur['g'] - when[p][0] < 4: return False
            if q.kind == 'trans' and i.is_valu() and (set(q.wr) & set(i.rd)) and len(out) - when[p][1] < 2: return False
            if q.is_valu() and i.kind == 'perm' and len(out) - when[p][1] < 3: return False
            if q.kind == 'salu' and 'm0' in q.wr and i.kind == 'dma' and len(out) - when[p][1] < 2: return False
            if q.kind == 'dsr' and i.kind == 'wait' and cur['g'] - when[p][0] < 5 and (set(q.wr) & set(i.rd)): return False
        return True
    lo = 0
    import sys
    sys.setrecursionlimit(100000)
    total = 0
    for g, mk_ in enumerate(midx):
        while lo < n and done[lo]: lo += 1
        k = lo
        while k < n and ref[k].pos <= g - late + 1e-9:
            if not done[k] and ref[k].kind != 'mfma': force(k)
            k += 1
        force(mk_)
        cur['g'] = g
        when[mk_] = (g, when[mk_][1])
        def cands():
            k = lo; r = []
            while k < n and ref[k].pos <= g + 1 + early:
                if not done[k] and ref[k].kind != 'mfma' and ready(k): r.append(k)
                k += 1
            return r
        budget = gap - 4
        c = cands()
        nv = [k for k in c if not ref[k].is_valu() and ref[k].pos <= g + 1 + (0.0 if ref[k].kind in MEMK + ('barrier', 'branch', 'label', 'wait') else early)]
        if nv:
            mem = [k for k in nv if ref[k].kind in MEMK]
            k = (mem or nv)[0]
            if nv[0] != k and ref[nv[0]].pos <= g - late + 1.5: k = nv[0]
            budget -= icost(ref[k], True); place(k)
            if ref[k].kind == 'branch':
                for q in range(k + 1, min(n, k + 4)):
                    if ref[q].kind == 'label' and not done[q]: place(q); break
        else:
            budget -= 4
        while budget > 0:
            c = cands()
            v = [k for k in c if ref[k].is_valu()]
            pick = None
            if budget >= 8:
                t = [k for k in v if ref[k].kind == 'trans']
                o = [k for k in v if ref[k].kind != 'trans']
                if t and (not o or ref[t[0]].pos <= ref[o[0]].pos + 2.0): pick = t[0]
                elif o: pick = o[0]
            else:
                o = [k for k in v if ref[k].kind != 'trans']
                if o: pick = o[0]
            if pick is None:
                s = [k for k in c if ref[k].kind in ('salu',) or (ref[k].kind == 'wait' and ref[k].pos <= g + 1)]
                if s: pick = s[0]
            if pick is None: break
            budget -= icost(ref[pick], False); place(pick)
    cur['g'] = len(midx) + 10
    for k in range(n):
        if not done[k]: force(k)
    return out

def model_cycles(seq, gap=16):
    tot = 0; cur = None; first = False
    def add(kind_cost, isv):
        pass
    g = 0; started = False
    for i in seq:
        items = []
        if i.kind == 'label': continue
        if i.vm is not None or i.lgkm is not None: items.append('s')
        for _ in range(i.nop): items.append('s')
        if i.kind != 'wait': items.append(i)
        for it in items:
            if it != 's' and it.kind == 'mfma':
                if started: tot += max(gap, g)
                started = True; g = 4; first = True; continue
            if it == 's': c = 4
            else:
                c = icost(it, first)
                if first and it.is_valu(): c += 4
            g += c; first = False
    tot += max(gap, g)
    return tot
```

```python
import sys, struct, math
from asmlib import *

NAME = "concat_heads__gqa_block_cached__mha_block_cached__near_ridge"
OPT = dict(trickle=1, wopf='47,48', wopfnt='', play=1, lead=15, kvpf='', wxpf=0, pfd=2, sched=1, early=3.0, late=2.0, k2pf=3, pfnt=' nt', wxpfnt='', kvnt=" nt", ont=" nt", rot=1, k2ont=" nt", epi_periods=5, thresh=1024.0, k1only=0, k2only=0, stamp=0, stamp2=0, k2wnt='', k2depth=3, k2drop='', drop='', wnt=' nt', xnt=' nt')
for kv in sys.argv[2:]:
    k, v = kv.split("="); OPT[k] = type(OPT[k])(v.replace("_", " ") if isinstance(OPT[k], str) else v)
LEAD = OPT['lead']
def f2h(x): return "0x%08x" % struct.unpack("<I", struct.pack("<f", x))[0]
MF = "v_mfma_f32_16x16x32_bf16"
def vr(b, n=4): return f"v[{b}:{b+n-1}]"
def ar(b, n=4): return f"a[{b}:{b+n-1}]"

STAGE = 53248; SLOTA = 0; SLOTB = 16384; XOFF = 32768
sX, sW, sK, sV, sO = 8, 12, 16, 20, 24
sWv, sRd, sWr, sMw, sMx = 28, 29, 30, 31, 32
sKVb, sKi, sVi, sWo, sXo, sOo = 33, 34, 35, 36, 37, 38
sT0, sT1, sC, sTh, sCnt, sRound = 39, 40, 41, 42, 43, 44
sRet = 46
sT2, sT3 = 48, 49
def srd(b): return f"s[{b}:{b+3}]"
vKb, vV0b, vV1b, vWb, vXb = 1, 2, 3, 4, 5
vA0, vA1, vA2 = 6, 7, 8
vDkv0, vDkv1 = 9, 10
vDw = [11, 12, 13, 14]
vDx = [15, 16, 17, 18]
vSt = 19
vRl = [20, 21, 22, 23, 0]
BLK = 24
def blk(c): return BLK + 32 * c
def acc(t, c): return blk(c) + 4 * t
def Sreg(par, kt, c): return blk(c) + 8 * par + 4 * kt
def Preg(par, c): return blk(c) + 16 + 4 * par
def Mreg(c): return blk(c) + 24
def Lreg(c): return blk(c) + 28
def Treg(c): return blk(c) + 29
POOL = 184
NPOOL = 8
XF = 200
TMP = 248
ET = 216
vPF, vPK, vDum, vStamp = 232, 233, 234, 235
sPF, sPK = 80, 84
sPFo, sPFs, sPFr, sPb, sPi, sRot = 88, 89, 90, 91, 92, 93
def Oreg(t, c): return (t * 5 + c) * 4
def Qreg(s, c): return 160 + (s * 5 + c) * 4

vXo0, vXo2, vXp0, vXp2 = 236, 237, 238, 239
vOb = 244
PK3 = [('a', 240), ('a', 244), ('a', 248), ('a', 252), ('v', 240)]
sWoS = 96 - 28
sOp, sOpd, sPo = 94, 95, 38
def rr(f): return f"{f[0]}[{f[1]}:{f[1]+3}]"
def Bfrag(hh, u, c):
    if hh == 0: return ('a', 160 + (u * 5 + c) * 4) if u < 3 else PK3[c]
    if hh == 1: return ('v', blk(c) + 16 + 4 * u) if u < 3 else ('a', 220 + 4 * c)
    if hh == 2: return ('a', Oreg(2 * u, c))
    return ('a', Oreg(2 * u + 1, c))
def xarea(k, c, own):
    if k < 2: return (vXo0 if own else vXp0), k * STAGE + c * 1024
    return (vXo2 if own else vXp2), c * 1024
def xrd(dst, k, c, own):
    a, o = xarea(k, c, own); return f"ds_read_b128 {rr(dst)}, v{a} offset:{o}"
def xwr(src, k, c):
    a, o = xarea(k, c, True); return f"ds_write_b128 v{a}, {rr(src)} offset:{o}"

class Period:
    def __init__(self): self.m = []; self.f = []; self.dma = []; self.addr = []

pool_ctr = [0]
def next_frag():
    r = POOL + 4 * (pool_ctr[0] % NPOOL); pool_ctr[0] += 1
    return r

def rpos(k0):
    p = k0 - LEAD + 1
    if k0 == 70: p -= 3
    if k0 == 75: p -= 5
    return p
def fwait(P, k0, r):
    P.f.append(W([f"v{r+i}" for i in range(4)], k0))
def rdK(P, k0, slot, kt, s):
    r = next_frag()
    P.f += at(mk(f"ds_read_b128 {vr(r)}, v{vA0} offset:{slot + kt*4096 + s*256}", tag='rd'), rpos(k0))
    fwait(P, k0, r)
    return r
def rdV(P, k0, slot, t):
    r = next_frag(); a = vA1 if t % 2 == 0 else vA2
    P.f += at(mk([f"ds_read_b64_tr_b16 {vr(r,2)}, v{a} offset:{slot + (t//2)*256}",
                  f"ds_read_b64_tr_b16 {vr(r+2,2)}, v{a} offset:{slot + (t//2)*256 + 4096}"], tag='rd'), rpos(k0), rpos(k0) + 2)
    fwait(P, k0, r)
    return r
def rdW(P, k0, slot, t):
    r = next_frag(); s, e = t // 2, t % 2
    P.f += at(mk([f"ds_read_b64_tr_b16 {vr(r,2)}, v{vA0} offset:{slot + s*256 + e*8}",
                  f"ds_read_b64_tr_b16 {vr(r+2,2)}, v{vA0} offset:{slot + s*256 + e*8 + 1024}"], tag='rd'), rpos(k0), rpos(k0) + 2)
    fwait(P, k0, r)
    return r

def grpQK(P, slot, par, kt, s, cinit):
    k0 = len(P.m); r = rdK(P, k0, slot, kt, s)
    for c in range(5):
        D = vr(Sreg(par, kt, c))
        C = D if s > 0 else ("0" if cinit == 'zero' else vr(Mreg(c)))
        P.m += mk(f"{MF} {D}, {vr(r)}, {ar(Qreg(s,c))}, {C}")
def grpPV(P, slot, par, t, first):
    k0 = len(P.m); r = rdV(P, k0, slot, t)
    for c in range(5):
        D = ar(Oreg(t, c))
        P.m += mk(f"{MF} {D}, {vr(r)}, {vr(Preg(par,c))}, {'0' if first else D}")

def softmax_ops(par, et=ET):
    ops = []; tc = [0]
    def tmp2():
        r = et + 2 * (tc[0] % 8); tc[0] += 1; return r
    pend = []
    for kt in range(2):
        for c in range(5):
            for h in range(2):
                e = tmp2(); s = Sreg(par, kt, c) + 2 * h
                cur = [f"v_exp_f32 v{e}, v{s}", f"v_exp_f32 v{e+1}, v{s+1}"]
                post = [f"v_cvt_pk_bf16_f32 v{Preg(par,c)+2*kt+h}, v{e}, v{e+1}"]
                if kt == 0 and h == 0:
                    post += [f"v_add_f32 v{Treg(c)}, v{e}, v{e+1}"]
                else:
                    post += [f"v_add_f32 v{Treg(c)}, v{Treg(c)}, v{e}", f"v_add_f32 v{Treg(c)}, v{Treg(c)}, v{e+1}"]
                ops += [cur[0]] + pend[:1] + [cur[1]] + pend[1:]
                pend = post
    ops += pend
    return ops

def cost(t):
    return 2.0 if t.startswith(('v_exp', 'v_rcp')) else 1.0
def spread(lines, p0, p1, tag=None):
    ins = mk(lines, tag=tag); tot = sum(cost(i.text) for i in ins); a = 0
    for i in ins:
        i.pos = p0 + (p1 - p0) * a / tot; a += cost(i.text)
    return ins

chk_ctr = [0]
def check_ops(par):
    return [f"v_max3_f32 v{TMP}, v{Treg(0)}, v{Treg(1)}, v{Treg(2)}",
            f"v_max3_f32 v{TMP}, v{TMP}, v{Treg(3)}, v{Treg(4)}",
            f"v_cmp_nge_f32 vcc, s{sTh}, v{TMP}",
            f"s_cbranch_vccnz RARE{par}_@",
            f"RET_@:"]
def ladd_ops(first=False):
    if first: return [f"v_mov_b32 v{Lreg(c)}, v{Treg(c)}" for c in range(5)]
    return [f"v_add_f32 v{Lreg(c)}, v{Lreg(c)}, v{Treg(c)}" for c in range(5)]

def colmax_ops(par, c, d, t2):
    s = Sreg(par, 0, c)
    return [f"v_max3_f32 v{d}, v{s}, v{s+1}, v{s+2}",
            f"v_max3_f32 v{t2}, v{s+3}, v{s+4}, v{s+5}",
            f"v_max3_f32 v{d}, v{d}, v{s+6}, v{s+7}",
            f"v_max_f32 v{d}, v{d}, v{t2}",
            f"v_mov_b32 v{t2}, v{d}",
            f"v_permlane16_swap_b32 v{d}, v{t2}",
            f"v_max_f32 v{d}, v{d}, v{t2}",
            f"v_mov_b32 v{t2}, v{d}",
            f"v_permlane32_swap_b32 v{d}, v{t2}",
            f"v_max_f32 v{d}, v{d}, v{t2}"]
def interleave(lists):
    out = []
    for i in range(max(len(l) for l in lists)):
        for l in lists:
            if i < len(l): out.append(l[i])
    return out

def dma_kv(slot, which):
    sd, si = (sK, sKi) if which == 'K' else (sV, sVi)
    t = sT0 if slot == SLOTA else sT1
    L = [f"s_add_u32 s{t}, s{sKVb}, s{si}",
         f"s_add_u32 s{si}, s{si}, 0x2000",
         f"s_and_b32 s{si}, s{si}, 0x1ffff",
         f"s_add_u32 m0, s{sWr}, {slot}" if slot else f"s_mov_b32 m0, s{sWr}"]
    D = [f"buffer_load_dwordx4 v{vDkv0 if j%2==0 else vDkv1}, {srd(sd)}, s{t} offen offset:{j*1024}{OPT['kvnt']} lds" for j in range(4)]
    return [L + D[:1]] + [[d] for d in D[1:]]
def dma_qp():
    G = []
    for slot in (SLOTA, SLOTB):
        L = [f"s_add_u32 m0, s{sWr}, {slot}" if slot else f"s_mov_b32 m0, s{sWr}"]
        if slot: L = [f"s_add_u32 s{sWo}, s{sWo}, 0x40000"] + L
        D = [f"buffer_load_dwordx4 v{vDw[j]}, {srd(sW)}, s{sWo} offen offset:{j*1024}{OPT['wnt']} lds" for j in range(4)]
        G += [L + D[:1]] + [[d] for d in D[1:]]
    G[-1] = G[-1] + [f"s_add_u32 s{sWo}, s{sWo}, 0x40000"]
    L = [f"s_add_u32 m0, s{sWr}, s{sMx}"]
    D = [f"buffer_load_dwordx4 v{vDx[j]}, {srd(sX)}, s{sXo} offen offset:{j*1024}{OPT['xnt']} lds" for j in range(4)]
    G += [L + D[:1]] + [[d] for d in D[1:]]
    G += [[f"s_add_u32 m0, m0, 0x1000", f"s_add_u32 s{sT0}, s{sXo}, 0x8000",
           f"buffer_load_dwordx4 v{vDx[0]}, {srd(sX)}, s{sT0} offen{OPT['xnt']} lds", f"s_add_u32 s{sXo}, s{sXo}, 128"]]
    return G
def next_round_ops():
    return [[f"s_add_u32 s{sKVb}, s{sKVb}, 0x100000",
             f"s_add_u32 s{sPb}, s{sPb}, 0x100000",
             f"s_sub_u32 s{sWo}, s{sWo}, {8*0x80000 - 8*256}",
             f"s_sub_u32 s{sXo}, s{sXo}, 1024"]]

def place_groups(G, slots, lo):
    out = []; prev = lo + 0.1
    for g, p in zip(G, slots):
        ins = mk(g); seen = False
        for q, i in enumerate(ins):
            if i.kind in MEMK: i.pos = p; seen = True
            else: i.pos = (p + 0.25) if seen else (p - 2.5)
            i.pos = max(i.pos, prev + 1.0 / 64); prev = i.pos
        out += ins
    return out

def pf_wx(newround):
    L = []
    if newround:
        L = [f"s_add_u32 s{sPFo}, s{sPFo}, s{sPFr}"]
    return [L + [f"buffer_load_dword v{vDum}, v{vPF}, {srd(sPF)}, s{sPFo} offen{OPT['wxpfnt']}", f"s_add_u32 s{sPFo}, s{sPFo}, s{sPFs}"]]
def pf_kv(first):
    L = [f"s_mov_b32 s{sPi}, s{sRot}"] if first else []
    return [L + [f"s_add_u32 s{sT3}, s{sPb}, s{sPi}", f"buffer_load_dword v{vDum}, v{vPK}, {srd(sPK)}, s{sT3} offen{OPT['pfnt']}",
             f"s_add_u32 s{sPi}, s{sPi}, 0x2000", f"s_and_b32 s{sPi}, s{sPi}, 0x1ffff"]]

def addr_att(): return [f"v_add_u32 v{vA0}, s{sRd}, v{vKb}", f"v_add_u32 v{vA1}, s{sRd}, v{vV0b}", f"v_add_u32 v{vA2}, s{sRd}, v{vV1b}"]
def addr_qp(): return [f"v_add_u32 v{vA0}, s{sRd}, v{vWb}", f"v_add_u32 v{vA1}, s{sRd}, v{vXb}"]

def qfin_ops(s):
    ops = []
    for c in range(5):
        a = acc(2 * s, c)
        o = [f"v_mul_f32 v{a+i}, s{sC}, v{a+i}" for i in range(8)]
        o += [f"v_cvt_pk_bf16_f32 v{a+2*i}, v{a+2*i}, v{a+2*i+1}" for i in range(4)]
        o += [f"v_accvgpr_write_b32 a{Qreg(s,c)+i}, v{a+2*i}" for i in range(4)]
        ops += o
    return ops

def per_qp(m):
    P = Period(); P.addr = addr_qp()
    for ks in range(2):
        slot = SLOTA if ks == 0 else SLOTB
        k0 = len(P.m)
        xr = [XF + 4 * (ks * 5 + c) for c in range(5)]
        xl = mk([f"ds_read_b128 {ar(xr[c])}, v{vA1} offset:{c*2048 + ks*256}" for c in range(5)], tag='rd')
        xp = [-LEAD + 3, -LEAD + 4, -LEAD + 5, -LEAD + 8, -LEAD + 9] if ks == 0 else [3, 8, 13, 18, 23]
        for i, p in zip(xl, xp): i.pos = p
        P.f += xl
        P.f.append(W([f"a{xr[c]+i}" for c in range(5) for i in range(4)], k0 - 0.5))
        for t in range(8):
            k0 = len(P.m); r = rdW(P, k0, slot, t)
            for c in range(5):
                D = vr(acc(t, c))
                P.m += mk(f"{MF} {D}, {vr(r)}, {ar(xr[c])}, {'0' if (m == 0 and ks == 0) else D}")
    if m == 7:
        P.f += spread(qfin_ops(0), 53, 66)
        P.f += spread(qfin_ops(1), 66, 80)
    return P

def per_a0():
    P = Period(); P.addr = addr_att()
    for s in range(4):
        for kt in range(2): grpQK(P, SLOTB, 0, kt, s, 'zero')
    P.f += spread(qfin_ops(2), 0.5, 19.5)
    P.f += spread(qfin_ops(3), 19.6, 29.5)
    mx = interleave([colmax_ops(0, c, ET + 2 * c, ET + 2 * c + 1) +
                     [f"v_sub_f32 v{Mreg(c)+i}, 0, v{ET+2*c}" for i in range(4)] for c in range(5)])
    P.f += at(mk(mx), 40)
    for kt in range(2):
        for s in range(4): grpQK(P, SLOTA, 1, kt, s, 'negm')
    sub = [f"v_add_f32 v{Sreg(0,kt,c)+i}, v{Sreg(0,kt,c)+i}, v{Mreg(c)}" for kt in range(2) for c in range(5) for i in range(4)]
    P.f += spread(sub + softmax_ops(0) + ladd_ops(True), 40.5, 80)
    return P

def per_att(i):
    P = Period(); P.addr = addr_att()
    par = i % 2
    for g in range(8):
        grpPV(P, SLOTB, par ^ 1, g, i == 1)
        grpQK(P, SLOTA, par ^ 1, g // 4, g % 4, 'negm')
    P.f += spread(softmax_ops(par), 2.5, 78.5)
    P.f += at(mk(check_ops(par)), 80)
    P.f += at(mk(ladd_ops()), 80.5, 82.4)
    return P

def rl_ops():
    L = []
    for c in range(5):
        d = Lreg(c); t2 = Treg(c)
        L.append([f"v_mov_b32 v{t2}, v{d}", f"v_permlane16_swap_b32 v{d}, v{t2}", f"v_add_f32 v{d}, v{d}, v{t2}",
                  f"v_mov_b32 v{t2}, v{d}", f"v_permlane32_swap_b32 v{d}, v{t2}", f"v_add_f32 v{d}, v{d}, v{t2}",
                  f"v_rcp_f32 v{vRl[c]}, v{d}"])
    return interleave(L)

def per_a15():
    P = Period(); P.addr = addr_att()
    for g in range(8): grpPV(P, SLOTB, 0, g, False)
    P.f += spread(softmax_ops(1), 2.5, 39.5)
    P.f += at(mk(check_ops(1)), 40)
    for g in range(8): grpPV(P, SLOTA, 1, g, False)
    P.f += spread(ladd_ops() + rl_ops(), 40.5, 62)
    return P

def epi_ops():
    out = []
    for u in range(4):
        for c in range(5):
            k = u * 5 + c
            o = []
            if k % 4 == 0:
                o += [f"s_add_u32 s{sT2}, s{sOo}, {k*1024}"]
            o += [f"v_accvgpr_read_b32 v{TMP+i}, a{Oreg(2*u + i//4, c) + i%4}" for i in range(8)]
            o += [f"v_mul_f32 v{TMP+i}, v{vRl[c]}, v{TMP+i}" for i in range(8)]
            o += [f"v_cvt_pk_bf16_f32 v{TMP+i}, v{TMP+2*i}, v{TMP+2*i+1}" for i in range(4)]
            o += [f"buffer_store_dwordx4 {vr(TMP)}, v{vSt}, {srd(sO)}, s{sT2} offen offset:{(k%4)*1024}{OPT['ont']}"]
            out.append(o)
    out[-1] += [f"s_add_u32 s{sOo}, s{sOo}, {8*20480}"]
    return out

def norm_ops(u, c, dst, xk=None):
    o = [f"v_accvgpr_read_b32 v{TMP+i}, a{Oreg(2*u + i//4, c) + i%4}" for i in range(8)]
    o += [f"v_mul_f32 v{TMP+i}, v{vRl[c]}, v{TMP+i}" for i in range(8)]
    pk = ET + 4 * ((u * 5 + c) % 4) if dst[0] == 'a' else dst[1]
    o += [f"v_cvt_pk_bf16_f32 v{pk+i}, v{TMP+2*i}, v{TMP+2*i+1}" for i in range(4)]
    if dst[0] == 'a': o += [f"v_accvgpr_write_b32 a{dst[1]+i}, v{pk+i}" for i in range(4)]
    return o

def per_op(ch, hh, umajor=False):
    P = Period(); P.addr = [f"v_add_u32 v{vA0}, s{sRd}, v{vOb}"]
    order = [(u, t) for u in range(4) for t in range(4)] if umajor else [(u, 2 * sp + e) for sp in range(2) for u in range(4) for e in range(2)]
    for (u, t) in order:
        k0 = len(P.m); r = next_frag(); o = u * 4096 + (t // 2) * 256 + (t % 2) * 8
        P.f += at(mk([f"ds_read_b64_tr_b16 {vr(r,2)}, v{vA0} offset:{o}",
                      f"ds_read_b64_tr_b16 {vr(r+2,2)}, v{vA0} offset:{o + 2048}"], tag='rd'), rpos(k0), rpos(k0) + 2)
        fwait(P, k0, r)
        for c in range(5):
            D = vr(acc(t, c))
            P.m += mk(f"{MF} {D}, {vr(r)}, {rr(Bfrag(hh,u,c))}, {'0' if (hh == 0 and u == 0) else D}")
    if hh == 3:
        HOLD = [blk(c) + 28 for c in range(5)] + [ET, ET + 4, ET + 8, ET + 12, TMP]
        last = (ch == 3) or not OPT['trickle']
        for sp in range(2):
            L = []; S = []
            for c in range(5):
                a = acc(2 * sp, c); pk = HOLD[sp * 5 + c]
                L += [f"v_cvt_pk_bf16_f32 v{pk+i}, v{a+2*i}, v{a+2*i+1}" for i in range(4)]
                st = [f"buffer_store_dwordx4 {vr(pk)}, v{vSt}, {srd(sO)}, s{sPo} offen{OPT['ont']}", f"s_add_u32 s{sPo}, s{sPo}, {8192 if OPT['play'] == 0 else 1024}"]
                if last: L += st
                else: S.append(st)
            P.f += spread(L, 45 + 40 * sp, (75 if last else 65) + 40 * sp)
            for c, st in enumerate(S):
                P.f += at(mk(st), 73 + 30 * (sp * 5 + c), 73.5 + 30 * (sp * 5 + c))
    return P

def dma_op(j):
    hh = j % 4
    D = [f"buffer_load_dwordx4 v{vDx[i%4]}, {srd(sWoS)}, s{sOp if i < 4 else sT0} offen offset:{(i%4)*1024}{OPT['wnt']} lds" for i in range(8)]
    G = [[f"s_add_u32 m0, s{sWr}, s{sMw}", D[0]], [D[1]], [D[2]], [D[3]],
         [f"s_add_u32 m0, m0, 0x1000", f"s_add_u32 s{sT0}, s{sOp}, 0x8000", D[4]], [D[5]], [D[6]], [D[7]]]
    if hh % 2 == 0: adv = [f"s_add_u32 s{sOp}, s{sOp}, s{sOpd}"]
    else:
        adv = [f"s_sub_u32 s{sOp}, s{sOp}, s{sOpd}",
               f"s_add_u32 s{sOp}, s{sOp}, 0x100000" if hh == 1 else f"s_sub_u32 s{sOp}, s{sOp}, {0x100000 - 128}"]
    G[-1] = G[-1] + adv
    return G

def build_k1():
    periods = []
    for r in range(2):
        for m in range(8): periods.append(per_qp(m))
        periods.append(per_a0())
        for i in range(1, 15): periods.append(per_att(i))
        periods.append(per_a15())
        assert pool_ctr[0] % NPOOL == 0
    for j in range(16): periods.append(per_op(j // 4, j % 4, umajor=(j in (1, 2))))
    def dma_for(n2):
        if n2 >= 64: return []
        if n2 >= 48: return dma_op(n2 - 48)
        j = n2 % 24
        if j < 8:
            G = dma_qp()
            if j == 0: G[0] = next_round_ops()[0] + G[0]
            return G
        if j == 8: return dma_kv(SLOTB, 'K') + dma_kv(SLOTA, 'K')
        if j == 23: return dma_kv(SLOTB, 'V') + dma_kv(SLOTA, 'V')
        return dma_kv(SLOTB, 'V') + dma_kv(SLOTA, 'K')
    M = []; F = []
    for n, P in enumerate(periods):
        base = 80 * n
        assert len(P.m) == 80
        M += P.m
        for i in P.f: i.pos = round(i.pos * 256) / 256.0 + base; F.append(i)
        b0 = base - LEAD
        pre = [f"s_add_u32 s{sWr}, s{sRd}, s{sMw}",
               f"s_add_u32 s{sRd}, s{sRd}, {STAGE}",
               f"s_cmp_eq_u32 s{sRd}, {3*STAGE}",
               f"s_cselect_b32 s{sRd}, 0, s{sRd}"] + P.addr
        pi = at(mk(pre), b0 - 5, b0 - 0.1); pi[3].pos = pi[2].pos
        F += pi
        if OPT['stamp']: F += at(mk("s_memtime s[50:51]"), b0 - 0.05)
        F += at(mk("s_barrier", tag='barwait'), b0)
        if OPT['stamp']: F += at(mk(["s_mov_b32 m0, s45", "s_add_u32 s45, s45, 1", "v_writelane_b32 v235, s50, m0"]), b0 + 0.01)
        G = dma_for(n + 2)
        j = n % 24
        if OPT['wxpf'] and (24 <= n + 2 + OPT['pfd'] < 32):
            G = G + pf_wx(n + 2 + OPT['pfd'] == 24)
        if n < 48 and j in [int(x) for x in OPT['kvpf'].split(',') if x != '']:
            G = G + pf_kv(j == int(OPT['kvpf'].split(',')[0]))
        wo = [int(x) for x in OPT['wopf'].split(',') if x != '']
        if n in wo:
            G = G + [[f"buffer_load_dword v{vDum}, v{vPK}, {srd(sWoS)}, s{sPb} offen{OPT['wopfnt']}", f"s_add_u32 s{sPb}, s{sPb}, 8192"]]
            if n == wo[0]: G[-1] = [f"s_mov_b32 s{sPb}, s{sPi}"] + G[-1]
        if not G: continue
        slots = [b0 + 4 + 5 * q for q in range(13)] if len(G) <= 13 else [b0 + 3 + 5 * (q // 2) + (q % 2) for q in range(26)]
        step = len(slots) / len(G)
        F += place_groups(G, [slots[int(gi * step)] for gi in range(len(G))], b0)
    def B0(n): return 80 * n - LEAD
    def mem_at(lines, p0, step=5):
        ins = mk(lines)
        for q, i in enumerate(ins): i.pos = p0 + step * q if isinstance(step, (int, float)) else step[q]
        return ins
    flat = [x for u in (2, 0, 1, 3) for c in range(5) for x in norm_ops(u, c, ('a', Oreg(2 * u, c)) if u < 3 else PK3[c])]
    F += spread(flat, 80 * 24 + 5, 80 * 30 - LEAD)
    for n, k in ((30, 2), (31, 0), (32, 1)):
        F += mem_at([xwr(('a', Oreg(2 * k, c)), k, c) for c in range(5)], B0(n) + 20, 5)
    rd47 = [xrd(Bfrag(0, u, c), u, c, True) for u in range(3) for c in range(5)]
    F += mem_at(rd47, 80 * 47 + 3, [80 * 47 + 3 + 5 * (q // 2) + (q % 2) for q in range(15)])
    rd47b = [xrd(Bfrag(1, u, c), u, c, False) for u in (2, 0) for c in range(5)]
    F += mem_at(rd47b, 0, [80 * 47 + 43 + 5 * (q // 3) + (q % 3) for q in range(10)])
    F.append(W([f"a{160+i}" for i in range(60)], 80 * 48 - 0.5))
    F += mem_at([xrd(Bfrag(1, 1, c), 1, c, False) for c in range(5)], 80 * 48 + 5)
    F += mem_at([xwr(PK3[c], 0, c) for c in range(5)], B0(48) + 5)
    nrm = lambda u: [x for c in range(5) for x in norm_ops(u, c, Bfrag(2, u, c))]
    F += spread(nrm(0), 80 * 47 + 63, 80 * 48 + 35)
    F += mem_at([xwr(Bfrag(2, 0, c), 2, c) for c in range(5)], 80 * 48 + 38, 4)
    F += spread(nrm(1), 80 * 48 + 35, 80 * 49 + 10)
    F += mem_at([xrd(Bfrag(1, 3, c), 0, c, False) for c in range(5)] + [xrd(Bfrag(3, 0, c), 2, c, False) for c in range(5)], B0(49) + 5)
    F += mem_at([xwr(Bfrag(2, 1, c), 1, c) for c in range(5)], 80 * 49 + 38, 4)
    F += spread(nrm(2), 80 * 49 + 10, 80 * 49 + 65)
    F += spread(nrm(3), 80 * 49 + 65, 80 * 50 + 35)
    F += mem_at([xrd(Bfrag(3, 1, c), 1, c, False) for c in range(5)] + [xwr(Bfrag(2, 2, c), 0, c) for c in range(5)], B0(50) + 5)
    F += mem_at([xwr(Bfrag(2, 3, c), 2, c) for c in range(5)], 80 * 50 + 38, 4)
    F += mem_at([xrd(Bfrag(3, 2, c), 0, c, False) for c in range(5)] + [xrd(Bfrag(3, 3, c), 2, c, False) for c in range(5)], 0,
                [B0(51) + 3 + 5 * (q // 3) + (q % 3) for q in range(10)])
    dr = OPT['drop']
    if 'D' in dr: F = [i for i in F if i.kind != 'dma']
    if 'E' in dr: F = [i for i in F if i.kind != 'trans']
    if 'V' in dr: F = [i for i in F if not (i.kind == 'valu' and i.op in ('v_add_f32', 'v_cvt_pk_bf16_f32'))]
    if 'R' in dr: F = [i for i in F if i.kind != 'dsr']
    if 'S' in dr: F = [i for i in F if i.kind != 'vst']
    if 'C' in dr: F = [i for i in F if not (i.kind == 'branch' or i.kind == 'label')]
    for i in F:
        i.pos = round(i.pos * 256) / 256.0
        if i.kind == 'vld' and i.wr == [f"v{vDum}"]: i.wr = []
    seq = gap_schedule(M, F, OPT['early'], OPT['late']) if OPT['sched'] else merge_global(M, F)
    segs = [[]]
    for i in seq:
        if i.kind == 'barrier': segs.append([])
        segs[-1].append(i)
    return segs

def merge_global(M, F):
    fl = sorted(enumerate(F), key=lambda e: (e[1].pos, e[0]))
    out = []; j = 0
    for k, m in enumerate(M):
        while j < len(fl) and fl[j][1].pos <= k:
            out.append(fl[j][1]); j += 1
        out.append(m)
    out += [e[1] for e in fl[j:]]
    return out

def k1_setup():
    cexp = math.log2(math.e) / math.sqrt(128.0)
    A = mk(f"""
s_cmp_ge_u32 s2, 256
s_cbranch_scc1 K1_END
s_and_b32 s3, s2, 7
s_lshr_b32 s4, s3, 2
s_mul_i32 s4, s4, 40
s_add_u32 s6, s0, s4
s_addc_u32 s7, s1, 0
s_load_dwordx8 s[52:59], s[6:7], 0
s_load_dwordx2 s[60:61], s[0:1], 96
s_load_dwordx2 s[78:79], s[6:7], 32
v_lshrrev_b32 v20, 6, v0
v_and_b32 v0, 63, v0
v_readfirstlane_b32 s{sWv}, v20
v_lshrrev_b32 v20, 4, v0
v_bfe_u32 v21, v0, 2, 2
v_and_b32 v22, 3, v0
s_lshr_b32 s5, s2, 3
s_bfe_u32 s62, s3, 0x10001
s_and_b32 s63, s3, 1
s_lshr_b32 s71, s5, 2
s_lshl_b32 s62, s62, 3
s_add_u32 s64, s71, s62
s_and_b32 s4, s5, 3
s_lshl_b32 s65, s4, 1
s_lshl_b32 s63, s63, 4
s_add_u32 s63, s65, s63
s_lshr_b32 s66, s{sWv}, 1
s_and_b32 s67, s{sWv}, 1
s_add_u32 s65, s63, s66
s_lshl_b32 s{sMw}, s{sWv}, 12
s_lshl_b32 s{sMx}, s{sWv}, 10
s_add_u32 s{sMx}, s{sMx}, {XOFF}
s_lshl_b32 s{sWo}, s65, 8
s_lshl_b32 s68, s67, 17
s_add_u32 s{sWo}, s{sWo}, s68
s_mul_i32 s69, s64, 163840
s_mul_i32 s68, s{sWv}, 40960
s_add_u32 s{sXo}, s69, s68
s_lshl_b32 s71, s71, 16
s_lshl_b32 s68, s67, 15
s_add_u32 s71, s71, s68
s_lshl_b32 s68, s63, 8
s_add_u32 s71, s71, s68
s_mul_i32 s4, s4, 40960
s_add_u32 s69, s69, s4
s_mul_i32 s68, s67, 20480
s_add_u32 s69, s69, s68
s_movk_i32 s{sPFs}, 128
s_movk_i32 s{sPFr}, -1024
s_mov_b32 s{sPF+2}, 2621440
s_cmp_eq_u32 s66, 0
s_cselect_b32 s{sPFo}, s71, s69
s_cselect_b32 s{sPFs}, 0x80000, s{sPFs}
s_cselect_b32 s{sPFr}, {(-(8*0x80000) + 2048) & 0xffffffff}, s{sPFr}
s_cselect_b32 s{sPF+2}, 4194304, s{sPF+2}
s_cselect_b32 s70, 16, 20
s_mov_b32 s{sPF+3}, 0x20000
s_cselect_b64 vcc, -1, 0
v_lshrrev_b32 v23, 2, v0
v_lshlrev_b32 v23, 13, v23
v_lshl_add_u32 v23, v22, 7, v23
v_lshlrev_b32 v24, 10, v0
v_cndmask_b32 v23, v24, v23, vcc
v_mov_b32 v24, 0x7f000000
v_cmp_gt_u32 vcc, s70, v0
v_lshlrev_b32 v25, 4, v22
v_lshl_add_u32 v25, v20, 6, v25
v_cndmask_b32 v{vPF}, v24, v23, vcc
v_lshl_add_u32 v{vDkv0}, v21, 8, v25
v_xor_b32 v{vDkv1}, 32, v{vDkv0}
v_lshl_add_u32 v{vDw[0]}, v21, 13, v25
v_add_u32 v{vDw[1]}, {31744}, v{vDw[0]}
v_add_u32 v{vDw[2]}, {2*31744}, v{vDw[0]}
v_add_u32 v{vDw[3]}, {3*31744}, v{vDw[0]}
v_lshrrev_b32 v24, 5, v0
v_lshlrev_b32 v25, 1, v24
v_xor_b32 v25, v25, v22
v_lshlrev_b32 v25, 4, v25
v_and_b32 v23, 1, v20
v_lshl_add_u32 v25, v23, 6, v25
v_lshl_add_u32 v25, v21, 10, v25
v_lshl_add_u32 v{vDx[0]}, v24, 12, v25
v_add_u32 v{vDx[1]}, 7168, v{vDx[0]}
v_add_u32 v{vDx[2]}, {2*7168}, v{vDx[0]}
v_add_u32 v{vDx[3]}, {3*7168}, v{vDx[0]}
s_mov_b32 s{sX+2}, 2621440
s_mov_b32 s{sX+3}, 0x20000
s_mov_b32 s{sW+2}, 4194304
s_mov_b32 s{sW+3}, 0x20000
s_mov_b32 s{sWr}, s{sMw}
s_waitcnt lgkmcnt(0)
s_cselect_b32 s{sPF}, s58, s52
s_cselect_b32 s{sPF+1}, s59, s53
s_mov_b32 s{sX}, s52
s_mov_b32 s{sX+1}, s53
s_mov_b32 s{sW}, s58
s_mov_b32 s{sW+1}, s59
""")
    pf = []
    if OPT['wxpf']:
        pf = mk([x for _ in range(8) for g in pf_wx(False) for x in g])
        for i in pf:
            if i.kind == 'vld': i.wr = []
    D0 = mk([x for g in dma_qp() for x in g])
    D1 = mk(f"s_add_u32 s{sWr}, s{sMw}, {STAGE}", tag='vmreset') + mk([x for g in dma_qp() for x in g])
    B = mk(f"""
s_mov_b32 s{sRd}, {2*STAGE}
s_lshl_b32 s68, s64, 5
s_add_u32 s68, s68, s65
s_lshl_b32 s{sPb}, s68, 17
s_lshl_b32 s68, s67, 12
s_add_u32 s{sKVb}, s{sPb}, s68
s_mul_i32 s{sKi}, s2, {OPT['rot']*0x2000*5}
s_lshr_b32 s68, s2, 4
s_mul_i32 s68, s68, {OPT['rot']*0x2000*3}
s_add_u32 s{sKi}, s{sKi}, s68
s_and_b32 s{sKi}, s{sKi}, 0x1ffff
s_mov_b32 s{sVi}, s{sKi}
s_mov_b32 s{sRot}, s{sKi}
s_lshr_b32 s68, s5, 2
s_lshr_b32 s4, s68, 2
s_lshl_b32 s4, s4, 20
s_and_b32 s68, s68, 3
s_lshl_b32 s68, s68, 16
s_add_u32 s4, s4, s68
s_lshl_b32 s68, s63, 17
s_add_u32 s4, s4, s68
s_lshl_b32 s68, s{sWv}, 14
s_add_u32 s{sPi}, s4, s68
s_lshr_b32 s68, s3, 2
s_lshl_b32 s68, s68, 4
s_add_u32 s68, s68, s64
s_lshl_b32 s68, s68, 1
s_add_u32 s68, s68, s67
s_lshl_b32 s68, s68, 1
s_add_u32 s68, s68, s66
s_mul_i32 s{sPo}, s68, {8*5*8*1024}
s_and_b32 s68, s3, 1
s_lshl_b32 s68, s68, 2
s_and_b32 s4, s5, 3
s_add_u32 s68, s68, s4
s_mul_i32 s68, s68, {1024 if OPT['play'] == 0 else 40960}
s_add_u32 s{sPo}, s{sPo}, s68
s_lshl_b32 s{sOp}, s65, 17
s_lshl_b32 s68, s67, 16
s_add_u32 s{sOp}, s{sOp}, s68
s_lshl_b32 s68, s66, 9
s_add_u32 s{sOp}, s{sOp}, s68
s_lshl_b32 s68, s66, 18
s_sub_u32 s{sOpd}, 0x20000, s68
s_mov_b32 s{sC}, {f2h(cexp)}
s_mov_b32 s{sTh}, {f2h(OPT['thresh'])}
s_mov_b32 s{sRound}, 0
s_lshl_b32 s69, s66, 13
s_mul_i32 s70, s67, 10240
s_add_u32 s70, s70, {XOFF}
v_and_b32 v23, 1, v21
v_lshlrev_b32 v23, 1, v23
v_xor_b32 v23, v23, v20
v_lshlrev_b32 v23, 4, v23
v_lshl_add_u32 v23, v22, 6, v23
v_lshl_add_u32 v{vKb}, v21, 10, v23
v_add_u32 v{vKb}, s69, v{vKb}
v_lshl_add_u32 v{vXb}, v21, 9, v23
v_add_u32 v{vXb}, s70, v{vXb}
v_and_b32 v23, 1, v20
v_lshlrev_b32 v23, 5, v23
v_lshlrev_b32 v24, 3, v22
v_xor_b32 v23, v23, v24
v_lshl_add_u32 v23, v21, 6, v23
v_lshl_add_u32 v23, v20, 10, v23
v_add_u32 v{vV0b}, s69, v23
v_xor_b32 v{vV1b}, 32, v{vV0b}
v_lshlrev_b32 v23, 4, v22
v_lshl_add_u32 v23, v21, 6, v23
v_lshl_add_u32 v23, v20, 11, v23
v_add_u32 v{vWb}, s69, v23
v_lshlrev_b32 v{vSt}, 4, v0
v_lshlrev_b32 v{vPK}, 7, v0
v_and_b32 v23, 1, v20
v_lshlrev_b32 v23, 1, v23
v_xor_b32 v23, v23, v22
v_lshlrev_b32 v23, 4, v23
v_lshl_add_u32 v23, v21, 6, v23
v_lshl_add_u32 v23, v20, 9, v23
s_lshl_b32 s69, s66, 14
v_add_u32 v{vOb}, s69, v23
s_mul_i32 s69, s{sWv}, 5120
s_add_u32 s69, s69, {XOFF}
v_add_u32 v{vXo0}, s69, v{vSt}
v_add_u32 v{vXo2}, {2*STAGE}, v{vXo0}
s_xor_b32 s69, s{sWv}, 2
s_mul_i32 s69, s69, 5120
s_add_u32 s69, s69, {XOFF}
v_add_u32 v{vXp0}, s69, v{vSt}
v_add_u32 v{vXp2}, {2*STAGE}, v{vXp0}
s_mov_b32 s{sWoS}, s78
s_mov_b32 s{sWoS+1}, s79
s_mov_b32 s{sWoS+2}, 4194304
s_mov_b32 s{sWoS+3}, 0x20000
s_mov_b32 s{sK}, s54
s_mov_b32 s{sK+1}, s55
s_mov_b32 s{sK+2}, 67108864
s_mov_b32 s{sK+3}, 0x20000
s_mov_b32 s{sV}, s56
s_mov_b32 s{sV+1}, s57
s_mov_b32 s{sV+2}, 67108864
s_mov_b32 s{sV+3}, 0x20000
s_mov_b32 s{sO}, s60
s_mov_b32 s{sO+1}, s61
s_mov_b32 s{sO+2}, 41943040
s_mov_b32 s{sO+3}, 0x20000
s_cmp_eq_u32 s67, 0
s_cselect_b32 s{sPK}, s54, s56
s_cselect_b32 s{sPK+1}, s55, s57
s_mov_b32 s{sPK+2}, 67108864
s_mov_b32 s{sPK+3}, 0x20000
""")
    return A + pf + D0 + D1 + B

def rare(par):
    L = [f"RARE{par}:", "s_nop 15"]
    d, t2, f = TMP, TMP + 1, TMP + 2
    for c in range(5):
        L += colmax_ops(par, c, d, t2)
        L += [f"v_max_f32 v{d}, 0, v{d}", f"v_exp_f32 v{f}, -v{d}"]
        L += [f"v_sub_f32 v{Mreg(c)+i}, v{Mreg(c)+i}, v{d}" for i in range(4)]
        L += [f"v_sub_f32 v{blk(c)+i}, v{blk(c)+i}, v{d}" for i in range(16)]
        L += [f"v_mul_f32 v{Lreg(c)}, v{Lreg(c)}, v{f}"]
        for t in range(8):
            L += [f"v_accvgpr_read_b32 v{TMP+4+i}, a{Oreg(t,c)+i}" for i in range(4)]
            L += [f"v_mul_f32 v{TMP+4+i}, v{TMP+4+i}, v{f}" for i in range(4)]
            L += [f"v_accvgpr_write_b32 a{Oreg(t,c)+i}, v{TMP+4+i}" for i in range(4)]
    L += softmax_ops(par)
    L += ["s_nop 3", f"s_setpc_b64 s[{sRet}:{sRet+1}]"]
    seq = mk(L); analyze_trace(seq)
    return seq

def segtext(s): return "\n".join(i.text for i in s)

def emit_k1():
    segs = build_k1()
    pre = segs[0]; S = segs[1:]
    assert len(S) == 64
    T = [segtext(s) for s in S]
    k1 = 20
    while k1 < 24 and T[k1] == T[k1 + 24]: k1 += 1
    k0 = 20
    while k0 > 0 and T[k0 - 1] == T[k0 - 1 + 24]: k0 -= 1
    prog = []; trace = []
    lab = [0]; stubs = []
    def fixlabels(seq):
        for i in seq:
            if '@' in i.text:
                if i.kind == 'branch':
                    lab[0] += 1
                    tgt = i.text.split()[1].split('_')[0]
                    stubs.append((tgt, lab[0]))
                i.text = i.text.replace('@', str(lab[0]))
    def fold(lo, hi):
        p = []; t = []; k = lo
        while k < hi:
            done = False
            for L in (1, 2, 4):
                n = 1
                while k + (n + 1) * L <= hi and all(T[k + j] == T[k + n * L + j] for j in range(L)): n += 1
                if n >= 2:
                    body = [i for j in range(L) for i in S[k + j]]
                    fixlabels(body)
                    lab[0] += 1; ln = f"LP{lab[0]}"
                    init = mk(f"s_mov_b32 s{sCnt}, {n}")
                    tail = mk([f"s_sub_u32 s{sCnt}, s{sCnt}, 1", f"s_cmp_lg_u32 s{sCnt}, 0", f"s_cbranch_scc1 {ln}"])
                    p += init + mk(ln + ":") + body + tail
                    t += init + (body + tail) * min(n, 3)
                    print(f"  loop segs {k}..{k+n*L-1} L={L} n={n}", file=sys.stderr)
                    k += n * L; done = True; break
            if not done:
                fixlabels(S[k]); p += S[k]; t += S[k]; k += 1
        return p, t
    setup = k1_setup()
    p1, t1 = fold(0, k0)
    p2, t2 = fold(k0, k1)
    p3, t3 = fold(k1, 24 + k0)
    p4, t4 = fold(24 + k1, 64)
    br = mk([f"s_cmp_lg_u32 s{sRound}, 0", "s_cbranch_scc1 K1_FINAL"])
    back = mk([f"s_mov_b32 s{sRound}, 1", "s_branch K1_OUTER"])
    if OPT['stamp']:
        st0 = mk(["s_memtime s[72:73]", "s_memrealtime s[74:75]", "s_mov_b32 s45, 0", "v_mov_b32 v235, 0", "v_mov_b32 v246, 0"])
        setup = setup[:2] + st0 + setup[2:]
        st1 = mk(["s_memtime s[50:51]", "s_waitcnt lgkmcnt(0)", "v_writelane_b32 v246, s50, 0", "s_waitcnt vmcnt(0)", "s_memtime s[50:51]", "s_memrealtime s[76:77]", "s_waitcnt lgkmcnt(0)",
                  "v_writelane_b32 v246, s50, 1", "v_writelane_b32 v246, s72, 60", "v_writelane_b32 v246, s74, 61", "v_writelane_b32 v246, s76, 62",
                  f"s_lshl_b32 s50, s2, 2", f"s_add_u32 s50, s50, s{sWv}", "s_lshl_b32 s50, s50, 9", f"s_add_u32 s50, s50, {48<<20}",
                  f"v_lshrrev_b32 v245, 2, v{vSt}", f"s_mov_b32 s{sO+2}, {64<<20}",
                  f"buffer_store_dword v235, v245, {srd(sO)}, s50 offen", f"buffer_store_dword v246, v245, {srd(sO)}, s50 offen offset:256"])
        p4 += st1; t4 += st1
    prog = setup + pre + p1 + mk("K1_OUTER:") + p2 + br + p3 + back + mk("K1_FINAL:") + p4 + mk(["K1_END:", "s_endpgm"])
    trace = setup + pre + t1 + t2 + br + t3 + back + t2 + br + t4
    analyze_trace(trace)
    out = emit(prog) + "\n"
    for tgt, n in stubs:
        out += f"{tgt}_{n}:\n  s_call_b64 s[{sRet}:{sRet+1}], {tgt}\n  s_branch RET_{n}\n"
    out += emit(rare(0)) + "\n" + emit(rare(1)) + "\n"
    print(f"  k0={k0} k1={k1}", file=sys.stderr)
    print("  model cycles/seg:", [model_cycles(x) for x in S], file=sys.stderr)
    return out

def emit_k2():
    sP, sOut = 8, 12
    L = f"""
s_cmp_ge_u32 s2, 256
s_cbranch_scc1 K2_END
s_load_dwordx2 s[4:5], s[0:1], 96
s_load_dwordx2 s[6:7], s[0:1], 80
v_lshrrev_b32 v1, 6, v0
v_and_b32 v0, 63, v0
v_readfirstlane_b32 s20, v1
v_lshlrev_b32 v1, 4, v0
v_add_u32 v2, 4096, v1
s_lshl_b32 s21, s2, 2
s_add_u32 s21, s21, s20
{"s_mul_i32 s22, s21, 40960" if OPT['play'] == 0 else "s_lshr_b32 s22, s21, 3"}
{"s_nop 0" if OPT['play'] == 0 else "s_mul_i32 s22, s22, 327680"}
{"s_nop 0" if OPT['play'] == 0 else "s_and_b32 s23, s21, 7"}
{"s_nop 0" if OPT['play'] == 0 else "s_mul_i32 s23, s23, 5120"}
{"s_nop 0" if OPT['play'] == 0 else "s_add_u32 s22, s22, s23"}
s_mov_b32 s{sP+2}, 41943040
s_mov_b32 s{sP+3}, 0x20000
s_mov_b32 s{sOut+2}, 5242880
s_mov_b32 s{sOut+3}, 0x20000
s_waitcnt lgkmcnt(0)
s_mov_b32 s{sP}, s4
s_mov_b32 s{sP+1}, s5
""".strip().split("\n")
    R = 16
    if OPT['play'] == 0:
      for c in range(5):
        for k in range(8):
            r = R + (c * 8 + k) * 4
            L.append(f"buffer_load_dwordx4 {vr(r)}, v{1 if k < 4 else 2}, {srd(sP)}, s22 offen offset:{(k%4)*1024}{OPT['k2ont']}")
        L.append("s_add_u32 s22, s22, 8192")
    else:
      for k in range(8):
        for c in range(5):
            r = R + (c * 8 + k) * 4
            L.append(f"buffer_load_dwordx4 {vr(r)}, v{1 if c < 4 else 2}, {srd(sP)}, s22 offen offset:{(c%4)*1024}{OPT['k2ont']}")
        L.append("s_add_u32 s22, s22, 40960")
    L += f"""
s_mov_b32 s{sOut}, s6
s_mov_b32 s{sOut+1}, s7
s_and_b32 s23, s21, 15
s_lshl_b32 s23, s23, 6
s_lshr_b32 s24, s21, 4
s_and_b32 s25, s24, 31
s_mul_i32 s25, s25, {80*2048}
s_add_u32 s23, s23, s25
s_lshr_b32 s24, s24, 5
s_lshl_b32 s24, s24, 10
s_add_u32 s23, s23, s24
v_and_b32 v3, 15, v0
v_lshlrev_b32 v3, 11, v3
v_lshrrev_b32 v4, 4, v0
v_lshl_add_u32 v3, v4, 4, v3
s_mov_b32 s26, 0xffff0000
""".strip().split("\n")
    for c in range(5):
        A = 8
        for k in range(8):
            r = R + (c * 8 + k) * 4
            for i in range(4):
                if k == 0:
                    L += [f"v_lshlrev_b32 v{A+2*i}, 16, v{r+i}", f"v_and_b32 v{A+2*i+1}, s26, v{r+i}"]
                else:
                    L += [f"v_lshlrev_b32 v{4+i}, 16, v{r+i}", f"v_and_b32 v{r+i}, s26, v{r+i}"]
            if k:
                for i in range(4):
                    L += [f"v_add_f32 v{A+2*i}, v{A+2*i}, v{4+i}", f"v_add_f32 v{A+2*i+1}, v{A+2*i+1}, v{r+i}"]
        r = R + c * 32
        L += [f"v_cvt_pk_bf16_f32 v{r+i}, v{A+2*i}, v{A+2*i+1}" for i in range(4)]
        L += [f"buffer_store_dwordx4 {vr(r)}, v3, {srd(sOut)}, s23 offen", f"s_add_u32 s23, s23, {16*2048}"]
    L += ["K2_END:", "s_endpgm"]
    prog = mk(L); analyze_trace(prog)
    return emit(prog) + "\n"

def kd(name, vg=512, acc=256):
    return f""".amdhsa_kernel {name}
  .amdhsa_next_free_vgpr {vg}
  .amdhsa_next_free_sgpr 96
  .amdhsa_accum_offset {acc}
  .amdhsa_group_segment_fixed_size 0
  .amdhsa_kernarg_size 104
  .amdhsa_user_sgpr_count 2
  .amdhsa_user_sgpr_kernarg_segment_ptr 1
  .amdhsa_system_sgpr_workgroup_id_x 1
.end_amdhsa_kernel
"""

K1 = NAME + "_kernel"; K2 = "oproj_kernel"
hdr = open("cdna_kernels/" + NAME + ".s.ref").read().split("; Override launch")[0]
o = hdr
if not OPT['k2only']: o += f"; @launch kernel={K1} grid=(256,1,1) block=(256,1,1) lds={3*STAGE}\n"
if not OPT['k1only']: o += f"; @launch kernel={K2} grid=(256,1,1) block=(256,1,1) lds=0\n"
o += '.amdgcn_target "amdgcn-amd-amdhsa--gfx950"\n.text\n'
o += f".globl {K1}\n.p2align 8\n.type {K1},@function\n{K1}:\n" + emit_k1()
o += f".globl {K2}\n.p2align 8\n.type {K2},@function\n{K2}:\n" + emit_k2()
o += '.section .rodata,"a"\n.p2align 6\n' + kd(K1) + ".p2align 6\n" + kd(K2, 176, 176)
open(sys.argv[1], "w").write(o)
```

```python
import sys, struct, math
from asmlib import *

NAME = "concat_heads__gqa_block_cached__mha_block_cached__near_ridge"
OPT = dict(dbg=0, trickle=1, wopf='47,48', wopfnt='', play=1, lead=15, kvpf='', wxpf=0, pfd=2, sched=1, early=3.0, late=2.0, k2pf=3, pfnt=' nt', wxpfnt='', kvnt=" nt", ont=" nt", rot=1, k2ont=" nt", epi_periods=5, thresh=1024.0, k1only=0, k2only=0, stamp=0, stamp2=0, k2wnt='', k2depth=3, k2drop='', drop='', wnt=' nt', xnt=' nt')
for kv in sys.argv[2:]:
    k, v = kv.split("="); OPT[k] = type(OPT[k])(v.replace("_", " ") if isinstance(OPT[k], str) else v)
LEAD = OPT['lead']
def f2h(x): return "0x%08x" % struct.unpack("<I", struct.pack("<f", x))[0]
MF = "v_mfma_f32_16x16x32_bf16"
def vr(b, n=4): return f"v[{b}:{b+n-1}]"
def ar(b, n=4): return f"a[{b}:{b+n-1}]"

STAGE = 53248; SLOTA = 0; SLOTB = 16384; XOFF = 32768
sX, sW, sK, sV, sO = 8, 12, 16, 20, 24
sWv, sRd, sWr, sMw, sMx = 28, 29, 30, 31, 32
sKVb, sKi, sVi, sWo, sXo, sOo = 33, 34, 35, 36, 37, 38
sT0, sT1, sC, sTh, sCnt, sRound = 39, 40, 41, 42, 43, 44
sRet = 46
sT2, sT3 = 48, 49
def srd(b): return f"s[{b}:{b+3}]"
vKb, vV0b, vV1b, vWb, vXb = 1, 2, 3, 4, 5
vA0, vA1, vA2 = 6, 7, 8
vDkv0, vDkv1 = 9, 10
vDw = [11, 12, 13, 14]
vDx = [15, 16, 17, 18]
vSt = 19
vRl = [20, 21, 22, 23, 0]
BLK = 24
def blk(c): return BLK + 32 * c
def acc(t, c): return blk(c) + 4 * t
def Sreg(par, kt, c): return blk(c) + 8 * par + 4 * kt
def Preg(par, c): return blk(c) + 16 + 4 * par
def Mreg(c): return blk(c) + 24
def Lreg(c): return blk(c) + 28
def Treg(c): return blk(c) + 29
POOL = 184
NPOOL = 8
XF = 200
TMP = 248
ET = 216
vPF, vPK, vDum, vStamp = 232, 233, 234, 235
sPF, sPK = 80, 84
sPFo, sPFs, sPFr, sPb, sPi, sRot = 88, 89, 90, 91, 92, 93
def Oreg(t, c): return (t * 5 + c) * 4
def Qreg(s, c): return 160 + (s * 5 + c) * 4

vXo0, vXo2, vXp0, vXp2 = 236, 237, 238, 239
vOb = 244
PK3 = [('a', 240), ('a', 244), ('a', 248), ('a', 252), ('v', 240)]
sWoS = 96 - 28
sOp, sOpd, sPo = 94, 95, 38
def rr(f): return f"{f[0]}[{f[1]}:{f[1]+3}]"
def Bfrag(hh, u, c):
    if hh == 0: return ('a', 160 + (u * 5 + c) * 4) if u < 3 else PK3[c]
    if hh == 1: return ('v', blk(c) + 16 + 4 * u) if u < 3 else ('a', 220 + 4 * c)
    if hh == 2: return ('a', Oreg(2 * u, c))
    return ('a', Oreg(2 * u + 1, c))
def xarea(k, c, own):
    if k < 2: return (vXo0 if own else vXp0), k * STAGE + c * 1024
    return (vXo2 if own else vXp2), c * 1024
def xrd(dst, k, c, own):
    a, o = xarea(k, c, own); return f"ds_read_b128 {rr(dst)}, v{a} offset:{o}"
def xwr(src, k, c):
    a, o = xarea(k, c, True); return f"ds_write_b128 v{a}, {rr(src)} offset:{o}"

class Period:
    def __init__(self): self.m = []; self.f = []; self.dma = []; self.addr = []

pool_ctr = [0]
def next_frag():
    r = POOL + 4 * (pool_ctr[0] % NPOOL); pool_ctr[0] += 1
    return r

def rpos(k0):
    p = k0 - LEAD + 1
    if k0 == 70: p -= 3
    if k0 == 75: p -= 5
    return p
def fwait(P, k0, r):
    P.f.append(W([f"v{r+i}" for i in range(4)], k0))
def rdK(P, k0, slot, kt, s):
    r = next_frag()
    P.f += at(mk(f"ds_read_b128 {vr(r)}, v{vA0} offset:{slot + kt*4096 + s*256}", tag='rd'), rpos(k0))
    fwait(P, k0, r)
    return r
def rdV(P, k0, slot, t):
    r = next_frag(); a = vA1 if t % 2 == 0 else vA2
    P.f += at(mk([f"ds_read_b64_tr_b16 {vr(r,2)}, v{a} offset:{slot + (t//2)*256}",
                  f"ds_read_b64_tr_b16 {vr(r+2,2)}, v{a} offset:{slot + (t//2)*256 + 4096}"], tag='rd'), rpos(k0), rpos(k0) + 2)
    fwait(P, k0, r)
    return r
def rdW(P, k0, slot, t):
    r = next_frag(); s, e = t // 2, t % 2
    P.f += at(mk([f"ds_read_b64_tr_b16 {vr(r,2)}, v{vA0} offset:{slot + s*256 + e*8}",
                  f"ds_read_b64_tr_b16 {vr(r+2,2)}, v{vA0} offset:{slot + s*256 + e*8 + 1024}"], tag='rd'), rpos(k0), rpos(k0) + 2)
    fwait(P, k0, r)
    return r

def grpQK(P, slot, par, kt, s, cinit):
    k0 = len(P.m); r = rdK(P, k0, slot, kt, s)
    for c in range(5):
        D = vr(Sreg(par, kt, c))
        C = D if s > 0 else ("0" if cinit == 'zero' else vr(Mreg(c)))
        P.m += mk(f"{MF} {D}, {vr(r)}, {ar(Qreg(s,c))}, {C}")
def grpPV(P, slot, par, t, first):
    k0 = len(P.m); r = rdV(P, k0, slot, t)
    for c in range(5):
        D = ar(Oreg(t, c))
        P.m += mk(f"{MF} {D}, {vr(r)}, {vr(Preg(par,c))}, {'0' if first else D}")

def softmax_ops(par, et=ET):
    ops = []; tc = [0]
    def tmp2():
        r = et + 2 * (tc[0] % 8); tc[0] += 1; return r
    pend = []
    for kt in range(2):
        for c in range(5):
            for h in range(2):
                e = tmp2(); s = Sreg(par, kt, c) + 2 * h
                cur = [f"v_exp_f32 v{e}, v{s}", f"v_exp_f32 v{e+1}, v{s+1}"]
                post = [f"v_cvt_pk_bf16_f32 v{Preg(par,c)+2*kt+h}, v{e}, v{e+1}"]
                if kt == 0 and h == 0:
                    post += [f"v_add_f32 v{Treg(c)}, v{e}, v{e+1}"]
                else:
                    post += [f"v_add_f32 v{Treg(c)}, v{Treg(c)}, v{e}", f"v_add_f32 v{Treg(c)}, v{Treg(c)}, v{e+1}"]
                ops += [cur[0]] + pend[:1] + [cur[1]] + pend[1:]
                pend = post
    ops += pend
    return ops

def cost(t):
    return 2.0 if t.startswith(('v_exp', 'v_rcp')) else 1.0
def spread(lines, p0, p1, tag=None):
    ins = mk(lines, tag=tag); tot = sum(cost(i.text) for i in ins); a = 0
    for i in ins:
        i.pos = p0 + (p1 - p0) * a / tot; a += cost(i.text)
    return ins

chk_ctr = [0]
def check_ops(par):
    return [f"v_max3_f32 v{TMP}, v{Treg(0)}, v{Treg(1)}, v{Treg(2)}",
            f"v_max3_f32 v{TMP}, v{TMP}, v{Treg(3)}, v{Treg(4)}",
            f"v_cmp_nge_f32 vcc, s{sTh}, v{TMP}",
            f"s_cbranch_vccnz RARE{par}_@",
            f"RET_@:"]
def ladd_ops(first=False):
    if first: return [f"v_mov_b32 v{Lreg(c)}, v{Treg(c)}" for c in range(5)]
    return [f"v_add_f32 v{Lreg(c)}, v{Lreg(c)}, v{Treg(c)}" for c in range(5)]

def colmax_ops(par, c, d, t2):
    s = Sreg(par, 0, c)
    return [f"v_max3_f32 v{d}, v{s}, v{s+1}, v{s+2}",
            f"v_max3_f32 v{t2}, v{s+3}, v{s+4}, v{s+5}",
            f"v_max3_f32 v{d}, v{d}, v{s+6}, v{s+7}",
            f"v_max_f32 v{d}, v{d}, v{t2}",
            f"v_mov_b32 v{t2}, v{d}",
            f"v_permlane16_swap_b32 v{d}, v{t2}",
            f"v_max_f32 v{d}, v{d}, v{t2}",
            f"v_mov_b32 v{t2}, v{d}",
            f"v_permlane32_swap_b32 v{d}, v{t2}",
            f"v_max_f32 v{d}, v{d}, v{t2}"]
def interleave(lists):
    out = []
    for i in range(max(len(l) for l in lists)):
        for l in lists:
            if i < len(l): out.append(l[i])
    return out

def dma_kv(slot, which):
    sd, si = (sK, sKi) if which == 'K' else (sV, sVi)
    t = sT0 if slot == SLOTA else sT1
    L = [f"s_add_u32 s{t}, s{sKVb}, s{si}",
         f"s_add_u32 s{si}, s{si}, 0x2000",
         f"s_and_b32 s{si}, s{si}, 0x1ffff",
         f"s_add_u32 m0, s{sWr}, {slot}" if slot else f"s_mov_b32 m0, s{sWr}"]
    D = [f"buffer_load_dwordx4 v{vDkv0 if j%2==0 else vDkv1}, {srd(sd)}, s{t} offen offset:{j*1024}{OPT['kvnt']} lds" for j in range(4)]
    return [L + D[:1]] + [[d] for d in D[1:]]
def dma_qp():
    G = []
    for slot in (SLOTA, SLOTB):
        L = [f"s_add_u32 m0, s{sWr}, {slot}" if slot else f"s_mov_b32 m0, s{sWr}"]
        if slot: L = [f"s_add_u32 s{sWo}, s{sWo}, 0x40000"] + L
        D = [f"buffer_load_dwordx4 v{vDw[j]}, {srd(sW)}, s{sWo} offen offset:{j*1024}{OPT['wnt']} lds" for j in range(4)]
        G += [L + D[:1]] + [[d] for d in D[1:]]
    G[-1] = G[-1] + [f"s_add_u32 s{sWo}, s{sWo}, 0x40000"]
    L = [f"s_add_u32 m0, s{sWr}, s{sMx}"]
    D = [f"buffer_load_dwordx4 v{vDx[j]}, {srd(sX)}, s{sXo} offen offset:{j*1024}{OPT['xnt']} lds" for j in range(4)]
    G += [L + D[:1]] + [[d] for d in D[1:]]
    G += [[f"s_add_u32 m0, m0, 0x1000", f"s_add_u32 s{sT0}, s{sXo}, 0x8000",
           f"buffer_load_dwordx4 v{vDx[0]}, {srd(sX)}, s{sT0} offen{OPT['xnt']} lds", f"s_add_u32 s{sXo}, s{sXo}, 128"]]
    return G
def next_round_ops():
    return [[f"s_add_u32 s{sKVb}, s{sKVb}, 0x100000",
             f"s_add_u32 s{sPb}, s{sPb}, 0x100000",
             f"s_sub_u32 s{sWo}, s{sWo}, {8*0x80000 - 8*256}",
             f"s_sub_u32 s{sXo}, s{sXo}, 1024"]]

def place_groups(G, slots, lo):
    out = []; prev = lo + 0.1
    for g, p in zip(G, slots):
        ins = mk(g); seen = False
        for q, i in enumerate(ins):
            if i.kind in MEMK: i.pos = p; seen = True
            else: i.pos = (p + 0.25) if seen else (p - 2.5)
            i.pos = max(i.pos, prev + 1.0 / 64); prev = i.pos
        out += ins
    return out

def pf_wx(newround):
    L = []
    if newround:
        L = [f"s_add_u32 s{sPFo}, s{sPFo}, s{sPFr}"]
    return [L + [f"buffer_load_dword v{vDum}, v{vPF}, {srd(sPF)}, s{sPFo} offen{OPT['wxpfnt']}", f"s_add_u32 s{sPFo}, s{sPFo}, s{sPFs}"]]
def pf_kv(first):
    L = [f"s_mov_b32 s{sPi}, s{sRot}"] if first else []
    return [L + [f"s_add_u32 s{sT3}, s{sPb}, s{sPi}", f"buffer_load_dword v{vDum}, v{vPK}, {srd(sPK)}, s{sT3} offen{OPT['pfnt']}",
             f"s_add_u32 s{sPi}, s{sPi}, 0x2000", f"s_and_b32 s{sPi}, s{sPi}, 0x1ffff"]]

def addr_att(): return [f"v_add_u32 v{vA0}, s{sRd}, v{vKb}", f"v_add_u32 v{vA1}, s{sRd}, v{vV0b}", f"v_add_u32 v{vA2}, s{sRd}, v{vV1b}"]
def addr_qp(): return [f"v_add_u32 v{vA0}, s{sRd}, v{vWb}", f"v_add_u32 v{vA1}, s{sRd}, v{vXb}"]

def qfin_ops(s):
    ops = []
    for c in range(5):
        a = acc(2 * s, c)
        o = [f"v_mul_f32 v{a+i}, s{sC}, v{a+i}" for i in range(8)]
        o += [f"v_cvt_pk_bf16_f32 v{a+2*i}, v{a+2*i}, v{a+2*i+1}" for i in range(4)]
        o += [f"v_accvgpr_write_b32 a{Qreg(s,c)+i}, v{a+2*i}" for i in range(4)]
        ops += o
    return ops

def per_qp(m):
    P = Period(); P.addr = addr_qp()
    for ks in range(2):
        slot = SLOTA if ks == 0 else SLOTB
        k0 = len(P.m)
        xr = [XF + 4 * (ks * 5 + c) for c in range(5)]
        xl = mk([f"ds_read_b128 {ar(xr[c])}, v{vA1} offset:{c*2048 + ks*256}" for c in range(5)], tag='rd')
        xp = [-LEAD + 3, -LEAD + 4, -LEAD + 5, -LEAD + 8, -LEAD + 9] if ks == 0 else [3, 8, 13, 18, 23]
        for i, p in zip(xl, xp): i.pos = p
        P.f += xl
        P.f.append(W([f"a{xr[c]+i}" for c in range(5) for i in range(4)], k0 - 0.5))
        for t in range(8):
            k0 = len(P.m); r = rdW(P, k0, slot, t)
            for c in range(5):
                D = vr(acc(t, c))
                P.m += mk(f"{MF} {D}, {vr(r)}, {ar(xr[c])}, {'0' if (m == 0 and ks == 0) else D}")
    if m == 7:
        P.f += spread(qfin_ops(0), 53, 66)
        P.f += spread(qfin_ops(1), 66, 80)
    return P

def per_a0():
    P = Period(); P.addr = addr_att()
    for s in range(4):
        for kt in range(2): grpQK(P, SLOTB, 0, kt, s, 'zero')
    P.f += spread(qfin_ops(2), 0.5, 19.5)
    P.f += spread(qfin_ops(3), 19.6, 29.5)
    mx = interleave([colmax_ops(0, c, ET + 2 * c, ET + 2 * c + 1) +
                     [f"v_sub_f32 v{Mreg(c)+i}, 0, v{ET+2*c}" for i in range(4)] for c in range(5)])
    P.f += at(mk(mx), 40)
    for kt in range(2):
        for s in range(4): grpQK(P, SLOTA, 1, kt, s, 'negm')
    sub = [f"v_add_f32 v{Sreg(0,kt,c)+i}, v{Sreg(0,kt,c)+i}, v{Mreg(c)}" for kt in range(2) for c in range(5) for i in range(4)]
    P.f += spread(sub + softmax_ops(0) + ladd_ops(True), 40.5, 80)
    return P

def per_att(i):
    P = Period(); P.addr = addr_att()
    par = i % 2
    for g in range(8):
        grpPV(P, SLOTB, par ^ 1, g, i == 1)
        grpQK(P, SLOTA, par ^ 1, g // 4, g % 4, 'negm')
    P.f += spread(softmax_ops(par), 2.5, 78.5)
    P.f += at(mk(check_ops(par)), 80)
    P.f += at(mk(ladd_ops()), 80.5, 82.4)
    return P

def rl_ops():
    L = []
    for c in range(5):
        d = Lreg(c); t2 = Treg(c)
        L.append([f"v_mov_b32 v{t2}, v{d}", f"v_permlane16_swap_b32 v{d}, v{t2}", f"v_add_f32 v{d}, v{d}, v{t2}",
                  f"v_mov_b32 v{t2}, v{d}", f"v_permlane32_swap_b32 v{d}, v{t2}", f"v_add_f32 v{d}, v{d}, v{t2}",
                  f"v_rcp_f32 v{vRl[c]}, v{d}"])
    return interleave(L)

def per_a15():
    P = Period(); P.addr = addr_att()
    for g in range(8): grpPV(P, SLOTB, 0, g, False)
    P.f += spread(softmax_ops(1), 2.5, 39.5)
    P.f += at(mk(check_ops(1)), 40)
    for g in range(8): grpPV(P, SLOTA, 1, g, False)
    P.f += spread(ladd_ops() + rl_ops(), 40.5, 62)
    return P

def epi_ops():
    out = []
    for u in range(4):
        for c in range(5):
            k = u * 5 + c
            o = []
            if k % 4 == 0:
                o += [f"s_add_u32 s{sT2}, s{sOo}, {k*1024}"]
            o += [f"v_accvgpr_read_b32 v{TMP+i}, a{Oreg(2*u + i//4, c) + i%4}" for i in range(8)]
            o += [f"v_mul_f32 v{TMP+i}, v{vRl[c]}, v{TMP+i}" for i in range(8)]
            o += [f"v_cvt_pk_bf16_f32 v{TMP+i}, v{TMP+2*i}, v{TMP+2*i+1}" for i in range(4)]
            o += [f"buffer_store_dwordx4 {vr(TMP)}, v{vSt}, {srd(sO)}, s{sT2} offen offset:{(k%4)*1024}{OPT['ont']}"]
            out.append(o)
    out[-1] += [f"s_add_u32 s{sOo}, s{sOo}, {8*20480}"]
    return out

def norm_ops(u, c, dst, xk=None):
    o = [f"v_accvgpr_read_b32 v{TMP+i}, a{Oreg(2*u + i//4, c) + i%4}" for i in range(8)]
    o += [f"v_mul_f32 v{TMP+i}, v{vRl[c]}, v{TMP+i}" for i in range(8)]
    pk = ET + 4 * ((u * 5 + c) % 4) if dst[0] == 'a' else dst[1]
    o += [f"v_cvt_pk_bf16_f32 v{pk+i}, v{TMP+2*i}, v{TMP+2*i+1}" for i in range(4)]
    if dst[0] == 'a': o += [f"v_accvgpr_write_b32 a{dst[1]+i}, v{pk+i}" for i in range(4)]
    return o

def per_op(ch, hh, umajor=False):
    P = Period(); P.addr = [f"v_add_u32 v{vA0}, s{sRd}, v{vOb}"]
    order = [(u, t) for u in range(4) for t in range(4)] if umajor else [(u, 2 * sp + e) for sp in range(2) for u in range(4) for e in range(2)]
    for (u, t) in order:
        k0 = len(P.m); r = next_frag(); o = u * 4096 + (t // 2) * 256 + (t % 2) * 8
        P.f += at(mk([f"ds_read_b64_tr_b16 {vr(r,2)}, v{vA0} offset:{o}",
                      f"ds_read_b64_tr_b16 {vr(r+2,2)}, v{vA0} offset:{o + 2048}"], tag='rd'), rpos(k0), rpos(k0) + 2)
        fwait(P, k0, r)
        for c in range(5):
            D = vr(acc(t, c))
            P.m += mk(f"{MF} {D}, {vr(r)}, {rr(Bfrag(hh,u,c))}, {'0' if (hh == 0 and u == 0) else D}")
    if hh == 3:
        HOLD = [blk(c) + 28 for c in range(5)] + [ET, ET + 4, ET + 8, ET + 12, TMP]
        last = (ch == 3) or not OPT['trickle']
        for sp in range(2):
            L = []; S = []
            for c in range(5):
                a = acc(2 * sp, c); pk = HOLD[sp * 5 + c]
                L += [f"v_cvt_pk_bf16_f32 v{pk+i}, v{a+2*i}, v{a+2*i+1}" for i in range(4)]
                st = [f"buffer_store_dwordx4 {vr(pk)}, v{vSt}, {srd(sO)}, s{sPo} offen{OPT['ont']}", f"s_add_u32 s{sPo}, s{sPo}, {8192 if OPT['play'] == 0 else 1024}"]
                if last: L += st
                else: S.append(st)
            P.f += spread(L, 45 + 40 * sp, (75 if last else 65) + 40 * sp)
            for c, st in enumerate(S):
                P.f += at(mk(st), 73 + 30 * (sp * 5 + c), 73.5 + 30 * (sp * 5 + c))
    return P

def dma_op(j):
    hh = j % 4
    D = [f"buffer_load_dwordx4 v{vDx[i%4]}, {srd(sWoS)}, s{sOp if i < 4 else sT0} offen offset:{(i%4)*1024}{OPT['wnt']} lds" for i in range(8)]
    G = [[f"s_add_u32 m0, s{sWr}, s{sMw}", D[0]], [D[1]], [D[2]], [D[3]],
         [f"s_add_u32 m0, m0, 0x1000", f"s_add_u32 s{sT0}, s{sOp}, 0x8000", D[4]], [D[5]], [D[6]], [D[7]]]
    if hh % 2 == 0: adv = [f"s_add_u32 s{sOp}, s{sOp}, s{sOpd}"]
    else:
        adv = [f"s_sub_u32 s{sOp}, s{sOp}, s{sOpd}",
               f"s_add_u32 s{sOp}, s{sOp}, 0x100000" if hh == 1 else f"s_sub_u32 s{sOp}, s{sOp}, {0x100000 - 128}"]
    G[-1] = G[-1] + adv
    return G

def build_k1():
    periods = []
    for r in range(2):
        for m in range(8): periods.append(per_qp(m))
        periods.append(per_a0())
        for i in range(1, 15): periods.append(per_att(i))
        periods.append(per_a15())
        assert pool_ctr[0] % NPOOL == 0
    for j in range(16): periods.append(per_op(j // 4, j % 4, umajor=(j in (1, 2))))
    def dma_for(n2):
        if n2 >= 64: return []
        if n2 >= 48: return dma_op(n2 - 48)
        j = n2 % 24
        if j < 8:
            G = dma_qp()
            if j == 0: G[0] = next_round_ops()[0] + G[0]
            return G
        if j == 8: return dma_kv(SLOTB, 'K') + dma_kv(SLOTA, 'K')
        if j == 23: return dma_kv(SLOTB, 'V') + dma_kv(SLOTA, 'V')
        return dma_kv(SLOTB, 'V') + dma_kv(SLOTA, 'K')
    M = []; F = []
    for n, P in enumerate(periods):
        base = 80 * n
        assert len(P.m) == 80
        M += P.m
        for i in P.f: i.pos = round(i.pos * 256) / 256.0 + base; F.append(i)
        b0 = base - LEAD
        pre = [f"s_add_u32 s{sWr}, s{sRd}, s{sMw}",
               f"s_add_u32 s{sRd}, s{sRd}, {STAGE}",
               f"s_cmp_eq_u32 s{sRd}, {3*STAGE}",
               f"s_cselect_b32 s{sRd}, 0, s{sRd}"] + P.addr
        pi = at(mk(pre), b0 - 5, b0 - 0.1); pi[3].pos = pi[2].pos
        F += pi
        if OPT['stamp']: F += at(mk("s_memtime s[50:51]"), b0 - 0.05)
        F += at(mk("s_barrier", tag='barwait'), b0)
        if OPT['stamp']: F += at(mk(["s_mov_b32 m0, s45", "s_add_u32 s45, s45, 1", "v_writelane_b32 v235, s50, m0"]), b0 + 0.01)
        G = dma_for(n + 2)
        j = n % 24
        if OPT['wxpf'] and (24 <= n + 2 + OPT['pfd'] < 32):
            G = G + pf_wx(n + 2 + OPT['pfd'] == 24)
        if n < 48 and j in [int(x) for x in OPT['kvpf'].split(',') if x != '']:
            G = G + pf_kv(j == int(OPT['kvpf'].split(',')[0]))
        wo = [int(x) for x in OPT['wopf'].split(',') if x != '']
        if n in wo:
            G = G + [[f"buffer_load_dword v{vDum}, v{vPK}, {srd(sWoS)}, s{sPb} offen{OPT['wopfnt']}", f"s_add_u32 s{sPb}, s{sPb}, 8192"]]
            if n == wo[0]: G[-1] = [f"s_mov_b32 s{sPb}, s{sPi}"] + G[-1]
        if not G: continue
        slots = [b0 + 4 + 5 * q for q in range(13)] if len(G) <= 13 else [b0 + 3 + 5 * (q // 2) + (q % 2) for q in range(26)]
        step = len(slots) / len(G)
        F += place_groups(G, [slots[int(gi * step)] for gi in range(len(G))], b0)
    def B0(n): return 80 * n - LEAD
    def mem_at(lines, p0, step=5):
        ins = mk(lines)
        for q, i in enumerate(ins): i.pos = p0 + step * q if isinstance(step, (int, float)) else step[q]
        return ins
    flat = [x for u in (2, 0, 1, 3) for c in range(5) for x in norm_ops(u, c, ('a', Oreg(2 * u, c)) if u < 3 else PK3[c])]
    F += spread(flat, 80 * 24 + 5, 80 * 30 - LEAD)
    for n, k in ((30, 2), (31, 0), (32, 1)):
        F += mem_at([xwr(('a', Oreg(2 * k, c)), k, c) for c in range(5)], B0(n) + 20, 5)
    rd47 = [xrd(Bfrag(0, u, c), u, c, True) for u in range(3) for c in range(5)]
    F += mem_at(rd47, 80 * 47 + 3, [80 * 47 + 3 + 5 * (q // 2) + (q % 2) for q in range(15)])
    rd47b = [xrd(Bfrag(1, u, c), u, c, False) for u in (2, 0) for c in range(5)]
    F += mem_at(rd47b, 0, [80 * 47 + 43 + 5 * (q // 3) + (q % 3) for q in range(10)])
    F.append(W([f"a{160+i}" for i in range(60)], 80 * 48 - 0.5))
    F += mem_at([xrd(Bfrag(1, 1, c), 1, c, False) for c in range(5)], 80 * 48 + 5)
    F += mem_at([xwr(PK3[c], 0, c) for c in range(5)], B0(48) + 5)
    nrm = lambda u: [x for c in range(5) for x in norm_ops(u, c, Bfrag(2, u, c))]
    F += spread(nrm(0), 80 * 47 + 63, 80 * 48 + 35)
    F += mem_at([xwr(Bfrag(2, 0, c), 2, c) for c in range(5)], 80 * 48 + 38, 4)
    F += spread(nrm(1), 80 * 48 + 35, 80 * 49 + 10)
    F += mem_at([xrd(Bfrag(1, 3, c), 0, c, False) for c in range(5)] + [xrd(Bfrag(3, 0, c), 2, c, False) for c in range(5)], B0(49) + 5)
    F += mem_at([xwr(Bfrag(2, 1, c), 1, c) for c in range(5)], 80 * 49 + 38, 4)
    F += spread(nrm(2), 80 * 49 + 10, 80 * 49 + 65)
    F += spread(nrm(3), 80 * 49 + 65, 80 * 50 + 35)
    F += mem_at([xrd(Bfrag(3, 1, c), 1, c, False) for c in range(5)] + [xwr(Bfrag(2, 2, c), 0, c) for c in range(5)], B0(50) + 5)
    F += mem_at([xwr(Bfrag(2, 3, c), 2, c) for c in range(5)], 80 * 50 + 38, 4)
    F += mem_at([xrd(Bfrag(3, 2, c), 0, c, False) for c in range(5)] + [xrd(Bfrag(3, 3, c), 2, c, False) for c in range(5)], 0,
                [B0(51) + 3 + 5 * (q // 3) + (q % 3) for q in range(10)])
    dr = OPT['drop']
    if 'D' in dr: F = [i for i in F if i.kind != 'dma']
    if 'E' in dr: F = [i for i in F if i.kind != 'trans']
    if 'V' in dr: F = [i for i in F if not (i.kind == 'valu' and i.op in ('v_add_f32', 'v_cvt_pk_bf16_f32'))]
    if 'R' in dr: F = [i for i in F if i.kind != 'dsr']
    if 'S' in dr: F = [i for i in F if i.kind != 'vst']
    if 'C' in dr: F = [i for i in F if not (i.kind == 'branch' or i.kind == 'label')]
    for i in F:
        i.pos = round(i.pos * 256) / 256.0
        if i.kind == 'vld' and i.wr == [f"v{vDum}"]: i.wr = []
    seq = gap_schedule(M, F, OPT['early'], OPT['late']) if OPT['sched'] else merge_global(M, F)
    segs = [[]]
    for i in seq:
        if i.kind == 'barrier': segs.append([])
        segs[-1].append(i)
    return segs

def merge_global(M, F):
    fl = sorted(enumerate(F), key=lambda e: (e[1].pos, e[0]))
    out = []; j = 0
    for k, m in enumerate(M):
        while j < len(fl) and fl[j][1].pos <= k:
            out.append(fl[j][1]); j += 1
        out.append(m)
    out += [e[1] for e in fl[j:]]
    return out

def k1_setup():
    cexp = math.log2(math.e) / math.sqrt(128.0)
    A = mk(f"""
s_cmp_ge_u32 s2, 256
s_cbranch_scc1 K1_END
s_and_b32 s3, s2, 7
s_lshr_b32 s4, s3, 2
s_mul_i32 s4, s4, 40
s_add_u32 s6, s0, s4
s_addc_u32 s7, s1, 0
s_load_dwordx8 s[52:59], s[6:7], 0
s_load_dwordx2 s[60:61], s[0:1], 96
s_load_dwordx2 s[78:79], s[6:7], 32
v_lshrrev_b32 v20, 6, v0
v_and_b32 v0, 63, v0
v_readfirstlane_b32 s{sWv}, v20
v_lshrrev_b32 v20, 4, v0
v_bfe_u32 v21, v0, 2, 2
v_and_b32 v22, 3, v0
s_lshr_b32 s5, s2, 3
s_bfe_u32 s62, s3, 0x10001
s_and_b32 s63, s3, 1
s_lshr_b32 s71, s5, 2
s_lshl_b32 s62, s62, 3
s_add_u32 s64, s71, s62
s_and_b32 s4, s5, 3
s_lshl_b32 s65, s4, 1
s_lshl_b32 s63, s63, 4
s_add_u32 s63, s65, s63
s_lshr_b32 s66, s{sWv}, 1
s_and_b32 s67, s{sWv}, 1
s_add_u32 s65, s63, s66
s_lshl_b32 s{sMw}, s{sWv}, 12
s_lshl_b32 s{sMx}, s{sWv}, 10
s_add_u32 s{sMx}, s{sMx}, {XOFF}
s_lshl_b32 s{sWo}, s65, 8
s_lshl_b32 s68, s67, 17
s_add_u32 s{sWo}, s{sWo}, s68
s_mul_i32 s69, s64, 163840
s_mul_i32 s68, s{sWv}, 40960
s_add_u32 s{sXo}, s69, s68
s_lshl_b32 s71, s71, 16
s_lshl_b32 s68, s67, 15
s_add_u32 s71, s71, s68
s_lshl_b32 s68, s63, 8
s_add_u32 s71, s71, s68
s_mul_i32 s4, s4, 40960
s_add_u32 s69, s69, s4
s_mul_i32 s68, s67, 20480
s_add_u32 s69, s69, s68
s_movk_i32 s{sPFs}, 128
s_movk_i32 s{sPFr}, -1024
s_mov_b32 s{sPF+2}, 2621440
s_cmp_eq_u32 s66, 0
s_cselect_b32 s{sPFo}, s71, s69
s_cselect_b32 s{sPFs}, 0x80000, s{sPFs}
s_cselect_b32 s{sPFr}, {(-(8*0x80000) + 2048) & 0xffffffff}, s{sPFr}
s_cselect_b32 s{sPF+2}, 4194304, s{sPF+2}
s_cselect_b32 s70, 16, 20
s_mov_b32 s{sPF+3}, 0x20000
s_cselect_b64 vcc, -1, 0
v_lshrrev_b32 v23, 2, v0
v_lshlrev_b32 v23, 13, v23
v_lshl_add_u32 v23, v22, 7, v23
v_lshlrev_b32 v24, 10, v0
v_cndmask_b32 v23, v24, v23, vcc
v_mov_b32 v24, 0x7f000000
v_cmp_gt_u32 vcc, s70, v0
v_lshlrev_b32 v25, 4, v22
v_lshl_add_u32 v25, v20, 6, v25
v_cndmask_b32 v{vPF}, v24, v23, vcc
v_lshl_add_u32 v{vDkv0}, v21, 8, v25
v_xor_b32 v{vDkv1}, 32, v{vDkv0}
v_lshl_add_u32 v{vDw[0]}, v21, 13, v25
v_add_u32 v{vDw[1]}, {31744}, v{vDw[0]}
v_add_u32 v{vDw[2]}, {2*31744}, v{vDw[0]}
v_add_u32 v{vDw[3]}, {3*31744}, v{vDw[0]}
v_lshrrev_b32 v24, 5, v0
v_lshlrev_b32 v25, 1, v24
v_xor_b32 v25, v25, v22
v_lshlrev_b32 v25, 4, v25
v_and_b32 v23, 1, v20
v_lshl_add_u32 v25, v23, 6, v25
v_lshl_add_u32 v25, v21, 10, v25
v_lshl_add_u32 v{vDx[0]}, v24, 12, v25
v_add_u32 v{vDx[1]}, 7168, v{vDx[0]}
v_add_u32 v{vDx[2]}, {2*7168}, v{vDx[0]}
v_add_u32 v{vDx[3]}, {3*7168}, v{vDx[0]}
s_mov_b32 s{sX+2}, 2621440
s_mov_b32 s{sX+3}, 0x20000
s_mov_b32 s{sW+2}, 4194304
s_mov_b32 s{sW+3}, 0x20000
s_mov_b32 s{sWr}, s{sMw}
s_waitcnt lgkmcnt(0)
s_cselect_b32 s{sPF}, s58, s52
s_cselect_b32 s{sPF+1}, s59, s53
s_mov_b32 s{sX}, s52
s_mov_b32 s{sX+1}, s53
s_mov_b32 s{sW}, s58
s_mov_b32 s{sW+1}, s59
""")
    pf = []
    if OPT['wxpf']:
        pf = mk([x for _ in range(8) for g in pf_wx(False) for x in g])
        for i in pf:
            if i.kind == 'vld': i.wr = []
    D0 = mk([x for g in dma_qp() for x in g])
    D1 = mk(f"s_add_u32 s{sWr}, s{sMw}, {STAGE}", tag='vmreset') + mk([x for g in dma_qp() for x in g])
    B = mk(f"""
s_mov_b32 s{sRd}, {2*STAGE}
s_lshl_b32 s68, s64, 5
s_add_u32 s68, s68, s65
s_lshl_b32 s{sPb}, s68, 17
s_lshl_b32 s68, s67, 12
s_add_u32 s{sKVb}, s{sPb}, s68
s_mul_i32 s{sKi}, s2, {OPT['rot']*0x2000*5}
s_lshr_b32 s68, s2, 4
s_mul_i32 s68, s68, {OPT['rot']*0x2000*3}
s_add_u32 s{sKi}, s{sKi}, s68
s_and_b32 s{sKi}, s{sKi}, 0x1ffff
s_mov_b32 s{sVi}, s{sKi}
s_mov_b32 s{sRot}, s{sKi}
s_lshr_b32 s68, s5, 2
s_lshr_b32 s4, s68, 2
s_lshl_b32 s4, s4, 20
s_and_b32 s68, s68, 3
s_lshl_b32 s68, s68, 16
s_add_u32 s4, s4, s68
s_lshl_b32 s68, s63, 17
s_add_u32 s4, s4, s68
s_lshl_b32 s68, s{sWv}, 14
s_add_u32 s{sPi}, s4, s68
s_lshr_b32 s68, s3, 2
s_lshl_b32 s68, s68, 4
s_add_u32 s68, s68, s64
s_lshl_b32 s68, s68, 1
s_add_u32 s68, s68, s67
s_lshl_b32 s68, s68, 1
s_add_u32 s68, s68, s66
s_mul_i32 s{sPo}, s68, {8*5*8*1024}
s_and_b32 s68, s3, 1
s_lshl_b32 s68, s68, 2
s_and_b32 s4, s5, 3
s_add_u32 s68, s68, s4
s_mul_i32 s68, s68, {1024 if OPT['play'] == 0 else 40960}
s_add_u32 s{sPo}, s{sPo}, s68
s_lshl_b32 s{sOp}, s65, 17
s_lshl_b32 s68, s67, 16
s_add_u32 s{sOp}, s{sOp}, s68
s_lshl_b32 s68, s66, 9
s_add_u32 s{sOp}, s{sOp}, s68
s_lshl_b32 s68, s66, 18
s_sub_u32 s{sOpd}, 0x20000, s68
s_mov_b32 s{sC}, {f2h(cexp)}
s_mov_b32 s{sTh}, {f2h(OPT['thresh'])}
s_mov_b32 s{sRound}, 0
s_lshl_b32 s69, s66, 13
s_mul_i32 s70, s67, 10240
s_add_u32 s70, s70, {XOFF}
v_and_b32 v23, 1, v21
v_lshlrev_b32 v23, 1, v23
v_xor_b32 v23, v23, v20
v_lshlrev_b32 v23, 4, v23
v_lshl_add_u32 v23, v22, 6, v23
v_lshl_add_u32 v{vKb}, v21, 10, v23
v_add_u32 v{vKb}, s69, v{vKb}
v_lshl_add_u32 v{vXb}, v21, 9, v23
v_add_u32 v{vXb}, s70, v{vXb}
v_and_b32 v23, 1, v20
v_lshlrev_b32 v23, 5, v23
v_lshlrev_b32 v24, 3, v22
v_xor_b32 v23, v23, v24
v_lshl_add_u32 v23, v21, 6, v23
v_lshl_add_u32 v23, v20, 10, v23
v_add_u32 v{vV0b}, s69, v23
v_xor_b32 v{vV1b}, 32, v{vV0b}
v_lshlrev_b32 v23, 4, v22
v_lshl_add_u32 v23, v21, 6, v23
v_lshl_add_u32 v23, v20, 11, v23
v_add_u32 v{vWb}, s69, v23
v_lshlrev_b32 v{vSt}, 4, v0
v_lshlrev_b32 v{vPK}, 7, v0
v_and_b32 v23, 1, v20
v_lshlrev_b32 v23, 1, v23
v_xor_b32 v23, v23, v22
v_lshlrev_b32 v23, 4, v23
v_lshl_add_u32 v23, v21, 6, v23
v_lshl_add_u32 v23, v20, 9, v23
s_lshl_b32 s69, s66, 14
v_add_u32 v{vOb}, s69, v23
s_mul_i32 s69, s{sWv}, 5120
s_add_u32 s69, s69, {XOFF}
v_add_u32 v{vXo0}, s69, v{vSt}
v_add_u32 v{vXo2}, {2*STAGE}, v{vXo0}
s_xor_b32 s69, s{sWv}, 2
s_mul_i32 s69, s69, 5120
s_add_u32 s69, s69, {XOFF}
v_add_u32 v{vXp0}, s69, v{vSt}
v_add_u32 v{vXp2}, {2*STAGE}, v{vXp0}
s_mov_b32 s{sWoS}, s78
s_mov_b32 s{sWoS+1}, s79
s_mov_b32 s{sWoS+2}, 4194304
s_mov_b32 s{sWoS+3}, 0x20000
s_mov_b32 s{sK}, s54
s_mov_b32 s{sK+1}, s55
s_mov_b32 s{sK+2}, 67108864
s_mov_b32 s{sK+3}, 0x20000
s_mov_b32 s{sV}, s56
s_mov_b32 s{sV+1}, s57
s_mov_b32 s{sV+2}, 67108864
s_mov_b32 s{sV+3}, 0x20000
s_mov_b32 s{sO}, s60
s_mov_b32 s{sO+1}, s61
s_mov_b32 s{sO+2}, 41943040
s_mov_b32 s{sO+3}, 0x20000
s_cmp_eq_u32 s67, 0
s_cselect_b32 s{sPK}, s54, s56
s_cselect_b32 s{sPK+1}, s55, s57
s_mov_b32 s{sPK+2}, 67108864
s_mov_b32 s{sPK+3}, 0x20000
""")
    return A + pf + D0 + D1 + B

def rare(par):
    L = [f"RARE{par}:", "s_nop 15"]
    d, t2, f = TMP, TMP + 1, TMP + 2
    for c in range(5):
        L += colmax_ops(par, c, d, t2)
        L += [f"v_max_f32 v{d}, 0, v{d}", f"v_exp_f32 v{f}, -v{d}"]
        L += [f"v_sub_f32 v{Mreg(c)+i}, v{Mreg(c)+i}, v{d}" for i in range(4)]
        L += [f"v_sub_f32 v{blk(c)+i}, v{blk(c)+i}, v{d}" for i in range(16)]
        L += [f"v_mul_f32 v{Lreg(c)}, v{Lreg(c)}, v{f}"]
        for t in range(8):
            L += [f"v_accvgpr_read_b32 v{TMP+4+i}, a{Oreg(t,c)+i}" for i in range(4)]
            L += [f"v_mul_f32 v{TMP+4+i}, v{TMP+4+i}, v{f}" for i in range(4)]
            L += [f"v_accvgpr_write_b32 a{Oreg(t,c)+i}, v{TMP+4+i}" for i in range(4)]
    L += softmax_ops(par)
    L += ["s_nop 3", f"s_setpc_b64 s[{sRet}:{sRet+1}]"]
    seq = mk(L); analyze_trace(seq)
    return seq

def segtext(s): return "\n".join(i.text for i in s)

def emit_k1():
    segs = build_k1()
    pre = segs[0]; S = segs[1:]
    assert len(S) == 64
    T = [segtext(s) for s in S]
    k1 = 20
    while k1 < 24 and T[k1] == T[k1 + 24]: k1 += 1
    k0 = 20
    while k0 > 0 and T[k0 - 1] == T[k0 - 1 + 24]: k0 -= 1
    prog = []; trace = []
    lab = [0]; stubs = []
    def fixlabels(seq):
        for i in seq:
            if '@' in i.text:
                if i.kind == 'branch':
                    lab[0] += 1
                    tgt = i.text.split()[1].split('_')[0]
                    stubs.append((tgt, lab[0]))
                i.text = i.text.replace('@', str(lab[0]))
    def fold(lo, hi):
        p = []; t = []; k = lo
        while k < hi:
            done = False
            for L in (1, 2, 4):
                n = 1
                while k + (n + 1) * L <= hi and all(T[k + j] == T[k + n * L + j] for j in range(L)): n += 1
                if n >= 2:
                    body = [i for j in range(L) for i in S[k + j]]
                    fixlabels(body)
                    lab[0] += 1; ln = f"LP{lab[0]}"
                    init = mk(f"s_mov_b32 s{sCnt}, {n}")
                    tail = mk([f"s_sub_u32 s{sCnt}, s{sCnt}, 1", f"s_cmp_lg_u32 s{sCnt}, 0", f"s_cbranch_scc1 {ln}"])
                    p += init + mk(ln + ":") + body + tail
                    t += init + (body + tail) * min(n, 3)
                    print(f"  loop segs {k}..{k+n*L-1} L={L} n={n}", file=sys.stderr)
                    k += n * L; done = True; break
            if not done:
                fixlabels(S[k]); p += S[k]; t += S[k]; k += 1
        return p, t
    setup = k1_setup()
    p1, t1 = fold(0, k0)
    p2, t2 = fold(k0, k1)
    p3, t3 = fold(k1, 24 + k0)
    p4, t4 = fold(24 + k1, 64)
    br = mk([f"s_cmp_lg_u32 s{sRound}, 0", "s_cbranch_scc1 K1_FINAL"])
    back = mk([f"s_mov_b32 s{sRound}, 1", "s_branch K1_OUTER"])
    if OPT['stamp']:
        st0 = mk(["s_memtime s[72:73]", "s_memrealtime s[74:75]", "s_mov_b32 s45, 0", "v_mov_b32 v235, 0", "v_mov_b32 v246, 0"])
        setup = setup[:2] + st0 + setup[2:]
        st1 = mk(["s_memtime s[50:51]", "s_waitcnt lgkmcnt(0)", "v_writelane_b32 v246, s50, 0", "s_waitcnt vmcnt(0)", "s_memtime s[50:51]", "s_memrealtime s[76:77]", "s_waitcnt lgkmcnt(0)",
                  "v_writelane_b32 v246, s50, 1", "v_writelane_b32 v246, s72, 60", "v_writelane_b32 v246, s74, 61", "v_writelane_b32 v246, s76, 62",
                  f"s_lshl_b32 s50, s2, 2", f"s_add_u32 s50, s50, s{sWv}", "s_lshl_b32 s50, s50, 9", f"s_add_u32 s50, s50, {48<<20}",
                  f"v_lshrrev_b32 v245, 2, v{vSt}", f"s_mov_b32 s{sO+2}, {64<<20}",
                  f"buffer_store_dword v235, v245, {srd(sO)}, s50 offen", f"buffer_store_dword v246, v245, {srd(sO)}, s50 offen offset:256"])
        if OPT['dbg']:
            L = ["s_memtime s[50:51]", "s_memrealtime s[76:77]", "s_waitcnt lgkmcnt(0)",
                 "s_sub_u32 s50, s50, s72", "s_sub_u32 s76, s76, s74", "v_writelane_b32 v246, s50, 14", "v_writelane_b32 v246, s76, 15"]
            for q, ln in enumerate([0, 1, 4, 8, 9, 16, 24, 32, 33, 40, 48, 52, 56, 63]):
                L += [f"v_readlane_b32 s50, v235, {ln}", "s_nop 3", "s_sub_u32 s50, s50, s72", f"v_writelane_b32 v246, s50, {q}"]
            L += [f"s_lshl_b32 s50, s2, 2", f"s_add_u32 s50, s50, s{sWv}", f"s_cmp_lg_u32 s50, {OPT['dbg']-1}", "s_cbranch_scc1 K1_END",
                  f"s_mov_b32 s{sO+2}, {64<<20}", f"s_mov_b32 s50, {48<<20}",
                  f"v_lshrrev_b32 v245, 2, v{vSt}", f"buffer_store_dword v246, v245, {srd(sO)}, s50 offen"]
            st1 = mk(L)
        p4 += st1; t4 += st1
    prog = setup + pre + p1 + mk("K1_OUTER:") + p2 + br + p3 + back + mk("K1_FINAL:") + p4 + mk(["K1_END:", "s_endpgm"])
    trace = setup + pre + t1 + t2 + br + t3 + back + t2 + br + t4
    analyze_trace(trace)
    out = emit(prog) + "\n"
    for tgt, n in stubs:
        out += f"{tgt}_{n}:\n  s_call_b64 s[{sRet}:{sRet+1}], {tgt}\n  s_branch RET_{n}\n"
    out += emit(rare(0)) + "\n" + emit(rare(1)) + "\n"
    print(f"  k0={k0} k1={k1}", file=sys.stderr)
    print("  model cycles/seg:", [model_cycles(x) for x in S], file=sys.stderr)
    return out

def emit_k2():
    sP, sOut = 8, 12
    L = f"""
s_cmp_ge_u32 s2, 256
s_cbranch_scc1 K2_END
s_load_dwordx2 s[4:5], s[0:1], 96
s_load_dwordx2 s[6:7], s[0:1], 80
v_lshrrev_b32 v1, 6, v0
v_and_b32 v0, 63, v0
v_readfirstlane_b32 s20, v1
v_lshlrev_b32 v1, 4, v0
v_add_u32 v2, 4096, v1
s_lshl_b32 s21, s2, 2
s_add_u32 s21, s21, s20
{"s_mul_i32 s22, s21, 40960" if OPT['play'] == 0 else "s_lshr_b32 s22, s21, 3"}
{"s_nop 0" if OPT['play'] == 0 else "s_mul_i32 s22, s22, 327680"}
{"s_nop 0" if OPT['play'] == 0 else "s_and_b32 s23, s21, 7"}
{"s_nop 0" if OPT['play'] == 0 else "s_mul_i32 s23, s23, 5120"}
{"s_nop 0" if OPT['play'] == 0 else "s_add_u32 s22, s22, s23"}
s_mov_b32 s{sP+2}, 41943040
s_mov_b32 s{sP+3}, 0x20000
s_mov_b32 s{sOut+2}, 5242880
s_mov_b32 s{sOut+3}, 0x20000
s_waitcnt lgkmcnt(0)
s_mov_b32 s{sP}, s4
s_mov_b32 s{sP+1}, s5
""".strip().split("\n")
    R = 16
    if OPT['play'] == 0:
      for c in range(5):
        for k in range(8):
            r = R + (c * 8 + k) * 4
            L.append(f"buffer_load_dwordx4 {vr(r)}, v{1 if k < 4 else 2}, {srd(sP)}, s22 offen offset:{(k%4)*1024}{OPT['k2ont']}")
        L.append("s_add_u32 s22, s22, 8192")
    else:
      for k in range(8):
        for c in range(5):
            r = R + (c * 8 + k) * 4
            L.append(f"buffer_load_dwordx4 {vr(r)}, v{1 if c < 4 else 2}, {srd(sP)}, s22 offen offset:{(c%4)*1024}{OPT['k2ont']}")
        L.append("s_add_u32 s22, s22, 40960")
    L += f"""
s_mov_b32 s{sOut}, s6
s_mov_b32 s{sOut+1}, s7
s_and_b32 s23, s21, 15
s_lshl_b32 s23, s23, 6
s_lshr_b32 s24, s21, 4
s_and_b32 s25, s24, 31
s_mul_i32 s25, s25, {80*2048}
s_add_u32 s23, s23, s25
s_lshr_b32 s24, s24, 5
s_lshl_b32 s24, s24, 10
s_add_u32 s23, s23, s24
v_and_b32 v3, 15, v0
v_lshlrev_b32 v3, 11, v3
v_lshrrev_b32 v4, 4, v0
v_lshl_add_u32 v3, v4, 4, v3
s_mov_b32 s26, 0xffff0000
""".strip().split("\n")
    for c in range(5):
        A = 8
        for k in range(8):
            r = R + (c * 8 + k) * 4
            for i in range(4):
                if k == 0:
                    L += [f"v_lshlrev_b32 v{A+2*i}, 16, v{r+i}", f"v_and_b32 v{A+2*i+1}, s26, v{r+i}"]
                else:
                    L += [f"v_lshlrev_b32 v{4+i}, 16, v{r+i}", f"v_and_b32 v{r+i}, s26, v{r+i}"]
            if k:
                for i in range(4):
                    L += [f"v_add_f32 v{A+2*i}, v{A+2*i}, v{4+i}", f"v_add_f32 v{A+2*i+1}, v{A+2*i+1}, v{r+i}"]
        r = R + c * 32
        L += [f"v_cvt_pk_bf16_f32 v{r+i}, v{A+2*i}, v{A+2*i+1}" for i in range(4)]
        L += [f"buffer_store_dwordx4 {vr(r)}, v3, {srd(sOut)}, s23 offen", f"s_add_u32 s23, s23, {16*2048}"]
    if OPT['dbg']:
        L += ["s_cmp_lg_u32 s21, 0", "s_cbranch_scc1 K2_END", "s_load_dwordx2 s[28:29], s[0:1], 88", f"s_mov_b32 s{sP+2}, {64<<20}", f"s_mov_b32 s22, {48<<20}",
              "v_lshlrev_b32 v1, 2, v0", f"buffer_load_dword v2, v1, {srd(sP)}, s22 offen", "s_waitcnt lgkmcnt(0)",
              "s_mov_b32 s32, s28", "s_mov_b32 s33, s29", "s_mov_b32 s34, 64", "s_mov_b32 s35, 0x20000", "buffer_store_dword v2, v1, s[32:35], 0 offen"]
    L += ["K2_END:", "s_endpgm"]
    prog = mk(L); analyze_trace(prog)
    return emit(prog) + "\n"

def kd(name, vg=512, acc=256):
    return f""".amdhsa_kernel {name}
  .amdhsa_next_free_vgpr {vg}
  .amdhsa_next_free_sgpr 96
  .amdhsa_accum_offset {acc}
  .amdhsa_group_segment_fixed_size 0
  .amdhsa_kernarg_size 104
  .amdhsa_user_sgpr_count 2
  .amdhsa_user_sgpr_kernarg_segment_ptr 1
  .amdhsa_system_sgpr_workgroup_id_x 1
.end_amdhsa_kernel
"""

K1 = NAME + "_kernel"; K2 = "oproj_kernel"
hdr = open("cdna_kernels/" + NAME + ".s.ref").read().split("; Override launch")[0]
o = hdr
if not OPT['k2only']: o += f"; @launch kernel={K1} grid=(256,1,1) block=(256,1,1) lds={3*STAGE}\n"
if not OPT['k1only']: o += f"; @launch kernel={K2} grid=(256,1,1) block=(256,1,1) lds=0\n"
o += '.amdgcn_target "amdgcn-amd-amdhsa--gfx950"\n.text\n'
o += f".globl {K1}\n.p2align 8\n.type {K1},@function\n{K1}:\n" + emit_k1()
o += f".globl {K2}\n.p2align 8\n.type {K2},@function\n{K2}:\n" + emit_k2()
o += '.section .rodata,"a"\n.p2align 6\n' + kd(K1) + ".p2align 6\n" + kd(K2, 176, 176)
open(sys.argv[1], "w").write(o)
```

```python
import sys, struct, math
from asmlib import *

NAME = "concat_heads__gqa_block_cached__mha_block_cached__near_ridge"
OPT = dict(pad=0, cpf=4, dbg=0, trickle=1, wopf='47,48', wopfnt='', play=1, lead=15, kvpf='', wxpf=0, pfd=2, sched=1, early=3.0, late=2.0, k2pf=3, pfnt=' nt', wxpfnt='', kvnt=" nt", ont=" nt", rot=1, k2ont=" nt", epi_periods=5, thresh=1024.0, k1only=0, k2only=0, stamp=0, stamp2=0, k2wnt='', k2depth=3, k2drop='', drop='', wnt=' nt', xnt=' nt')
for kv in sys.argv[2:]:
    k, v = kv.split("="); OPT[k] = type(OPT[k])(v.replace("_", " ") if isinstance(OPT[k], str) else v)
LEAD = OPT['lead']
def f2h(x): return "0x%08x" % struct.unpack("<I", struct.pack("<f", x))[0]
MF = "v_mfma_f32_16x16x32_bf16"
def vr(b, n=4): return f"v[{b}:{b+n-1}]"
def ar(b, n=4): return f"a[{b}:{b+n-1}]"

STAGE = 53248; SLOTA = 0; SLOTB = 16384; XOFF = 32768
sX, sW, sK, sV, sO = 8, 12, 16, 20, 24
sWv, sRd, sWr, sMw, sMx = 28, 29, 30, 31, 32
sKVb, sKi, sVi, sWo, sXo, sOo = 33, 34, 35, 36, 37, 38
sT0, sT1, sC, sTh, sCnt, sRound = 39, 40, 41, 42, 43, 44
sRet = 46
sT2, sT3 = 48, 49
def srd(b): return f"s[{b}:{b+3}]"
vKb, vV0b, vV1b, vWb, vXb = 1, 2, 3, 4, 5
vA0, vA1, vA2 = 6, 7, 8
vDkv0, vDkv1 = 9, 10
vDw = [11, 12, 13, 14]
vDx = [15, 16, 17, 18]
vSt = 19
vRl = [20, 21, 22, 23, 0]
BLK = 24
def blk(c): return BLK + 32 * c
def acc(t, c): return blk(c) + 4 * t
def Sreg(par, kt, c): return blk(c) + 8 * par + 4 * kt
def Preg(par, c): return blk(c) + 16 + 4 * par
def Mreg(c): return blk(c) + 24
def Lreg(c): return blk(c) + 28
def Treg(c): return blk(c) + 29
POOL = 184
NPOOL = 8
XF = 200
TMP = 248
ET = 216
vPF, vPK, vDum, vStamp = 232, 233, 234, 235
sPF, sPK = 80, 84
sPFo, sPFs, sPFr, sPb, sPi, sRot = 88, 89, 90, 91, 92, 93
def Oreg(t, c): return (t * 5 + c) * 4
def Qreg(s, c): return 160 + (s * 5 + c) * 4

vXo0, vXo2, vXp0, vXp2 = 236, 237, 238, 239
vOb = 244
PK3 = [('a', 240), ('a', 244), ('a', 248), ('a', 252), ('v', 240)]
sWoS = 96 - 28
sOp, sOpd, sPo = 94, 95, 38
def rr(f): return f"{f[0]}[{f[1]}:{f[1]+3}]"
def Bfrag(hh, u, c):
    if hh == 0: return ('a', 160 + (u * 5 + c) * 4) if u < 3 else PK3[c]
    if hh == 1: return ('v', blk(c) + 16 + 4 * u) if u < 3 else ('a', 220 + 4 * c)
    if hh == 2: return ('a', Oreg(2 * u, c))
    return ('a', Oreg(2 * u + 1, c))
def xarea(k, c, own):
    if k < 2: return (vXo0 if own else vXp0), k * STAGE + c * 1024
    return (vXo2 if own else vXp2), c * 1024
def xrd(dst, k, c, own):
    a, o = xarea(k, c, own); return f"ds_read_b128 {rr(dst)}, v{a} offset:{o}"
def xwr(src, k, c):
    a, o = xarea(k, c, True); return f"ds_write_b128 v{a}, {rr(src)} offset:{o}"

class Period:
    def __init__(self): self.m = []; self.f = []; self.dma = []; self.addr = []

pool_ctr = [0]
def next_frag():
    r = POOL + 4 * (pool_ctr[0] % NPOOL); pool_ctr[0] += 1
    return r

def rpos(k0):
    p = k0 - LEAD + 1
    if k0 == 70: p -= 3
    if k0 == 75: p -= 5
    return p
def fwait(P, k0, r):
    P.f.append(W([f"v{r+i}" for i in range(4)], k0))
def rdK(P, k0, slot, kt, s):
    r = next_frag()
    P.f += at(mk(f"ds_read_b128 {vr(r)}, v{vA0} offset:{slot + kt*4096 + s*256}", tag='rd'), rpos(k0))
    fwait(P, k0, r)
    return r
def rdV(P, k0, slot, t):
    r = next_frag(); a = vA1 if t % 2 == 0 else vA2
    P.f += at(mk([f"ds_read_b64_tr_b16 {vr(r,2)}, v{a} offset:{slot + (t//2)*256}",
                  f"ds_read_b64_tr_b16 {vr(r+2,2)}, v{a} offset:{slot + (t//2)*256 + 4096}"], tag='rd'), rpos(k0), rpos(k0) + 2)
    fwait(P, k0, r)
    return r
def rdW(P, k0, slot, t):
    r = next_frag(); s, e = t // 2, t % 2
    P.f += at(mk([f"ds_read_b64_tr_b16 {vr(r,2)}, v{vA0} offset:{slot + s*256 + e*8}",
                  f"ds_read_b64_tr_b16 {vr(r+2,2)}, v{vA0} offset:{slot + s*256 + e*8 + 1024}"], tag='rd'), rpos(k0), rpos(k0) + 2)
    fwait(P, k0, r)
    return r

def grpQK(P, slot, par, kt, s, cinit):
    k0 = len(P.m); r = rdK(P, k0, slot, kt, s)
    for c in range(5):
        D = vr(Sreg(par, kt, c))
        C = D if s > 0 else ("0" if cinit == 'zero' else vr(Mreg(c)))
        P.m += mk(f"{MF} {D}, {vr(r)}, {ar(Qreg(s,c))}, {C}")
def grpPV(P, slot, par, t, first):
    k0 = len(P.m); r = rdV(P, k0, slot, t)
    for c in range(5):
        D = ar(Oreg(t, c))
        P.m += mk(f"{MF} {D}, {vr(r)}, {vr(Preg(par,c))}, {'0' if first else D}")

def softmax_ops(par, et=ET):
    ops = []; tc = [0]
    def tmp2():
        r = et + 2 * (tc[0] % 8); tc[0] += 1; return r
    pend = []
    for kt in range(2):
        for c in range(5):
            for h in range(2):
                e = tmp2(); s = Sreg(par, kt, c) + 2 * h
                cur = [f"v_exp_f32 v{e}, v{s}", f"v_exp_f32 v{e+1}, v{s+1}"]
                post = [f"v_cvt_pk_bf16_f32 v{Preg(par,c)+2*kt+h}, v{e}, v{e+1}"]
                if kt == 0 and h == 0:
                    post += [f"v_add_f32 v{Treg(c)}, v{e}, v{e+1}"]
                else:
                    post += [f"v_add_f32 v{Treg(c)}, v{Treg(c)}, v{e}", f"v_add_f32 v{Treg(c)}, v{Treg(c)}, v{e+1}"]
                ops += [cur[0]] + pend[:1] + [cur[1]] + pend[1:]
                pend = post
    ops += pend
    return ops

def cost(t):
    return 2.0 if t.startswith(('v_exp', 'v_rcp')) else 1.0
def spread(lines, p0, p1, tag=None):
    ins = mk(lines, tag=tag); tot = sum(cost(i.text) for i in ins); a = 0
    for i in ins:
        i.pos = p0 + (p1 - p0) * a / tot; a += cost(i.text)
    return ins

chk_ctr = [0]
def check_ops(par):
    return [f"v_max3_f32 v{TMP}, v{Treg(0)}, v{Treg(1)}, v{Treg(2)}",
            f"v_max3_f32 v{TMP}, v{TMP}, v{Treg(3)}, v{Treg(4)}",
            f"v_cmp_nge_f32 vcc, s{sTh}, v{TMP}",
            f"s_cbranch_vccnz RARE{par}_@",
            f"RET_@:"]
def ladd_ops(first=False):
    if first: return [f"v_mov_b32 v{Lreg(c)}, v{Treg(c)}" for c in range(5)]
    return [f"v_add_f32 v{Lreg(c)}, v{Lreg(c)}, v{Treg(c)}" for c in range(5)]

def colmax_ops(par, c, d, t2):
    s = Sreg(par, 0, c)
    return [f"v_max3_f32 v{d}, v{s}, v{s+1}, v{s+2}",
            f"v_max3_f32 v{t2}, v{s+3}, v{s+4}, v{s+5}",
            f"v_max3_f32 v{d}, v{d}, v{s+6}, v{s+7}",
            f"v_max_f32 v{d}, v{d}, v{t2}",
            f"v_mov_b32 v{t2}, v{d}",
            f"v_permlane16_swap_b32 v{d}, v{t2}",
            f"v_max_f32 v{d}, v{d}, v{t2}",
            f"v_mov_b32 v{t2}, v{d}",
            f"v_permlane32_swap_b32 v{d}, v{t2}",
            f"v_max_f32 v{d}, v{d}, v{t2}"]
def interleave(lists):
    out = []
    for i in range(max(len(l) for l in lists)):
        for l in lists:
            if i < len(l): out.append(l[i])
    return out

def dma_kv(slot, which):
    sd, si = (sK, sKi) if which == 'K' else (sV, sVi)
    t = sT0 if slot == SLOTA else sT1
    L = [f"s_add_u32 s{t}, s{sKVb}, s{si}",
         f"s_add_u32 s{si}, s{si}, 0x2000",
         f"s_and_b32 s{si}, s{si}, 0x1ffff",
         f"s_add_u32 m0, s{sWr}, {slot}" if slot else f"s_mov_b32 m0, s{sWr}"]
    D = [f"buffer_load_dwordx4 v{vDkv0 if j%2==0 else vDkv1}, {srd(sd)}, s{t} offen offset:{j*1024}{OPT['kvnt']} lds" for j in range(4)]
    return [L + D[:1]] + [[d] for d in D[1:]]
def dma_qp():
    G = []
    for slot in (SLOTA, SLOTB):
        L = [f"s_add_u32 m0, s{sWr}, {slot}" if slot else f"s_mov_b32 m0, s{sWr}"]
        if slot: L = [f"s_add_u32 s{sWo}, s{sWo}, 0x40000"] + L
        D = [f"buffer_load_dwordx4 v{vDw[j]}, {srd(sW)}, s{sWo} offen offset:{j*1024}{OPT['wnt']} lds" for j in range(4)]
        G += [L + D[:1]] + [[d] for d in D[1:]]
    G[-1] = G[-1] + [f"s_add_u32 s{sWo}, s{sWo}, 0x40000"]
    L = [f"s_add_u32 m0, s{sWr}, s{sMx}"]
    D = [f"buffer_load_dwordx4 v{vDx[j]}, {srd(sX)}, s{sXo} offen offset:{j*1024}{OPT['xnt']} lds" for j in range(4)]
    G += [L + D[:1]] + [[d] for d in D[1:]]
    G += [[f"s_add_u32 m0, m0, 0x1000", f"s_add_u32 s{sT0}, s{sXo}, 0x8000",
           f"buffer_load_dwordx4 v{vDx[0]}, {srd(sX)}, s{sT0} offen{OPT['xnt']} lds", f"s_add_u32 s{sXo}, s{sXo}, 128"]]
    return G
def next_round_ops():
    return [[f"s_add_u32 s{sKVb}, s{sKVb}, 0x100000",
             f"s_add_u32 s{sPb}, s{sPb}, 0x100000",
             f"s_sub_u32 s{sWo}, s{sWo}, {8*0x80000 - 8*256}",
             f"s_sub_u32 s{sXo}, s{sXo}, 1024"]]

def place_groups(G, slots, lo):
    out = []; prev = lo + 0.1
    for g, p in zip(G, slots):
        ins = mk(g); seen = False
        for q, i in enumerate(ins):
            if i.kind in MEMK: i.pos = p; seen = True
            else: i.pos = (p + 0.25) if seen else (p - 2.5)
            i.pos = max(i.pos, prev + 1.0 / 64); prev = i.pos
        out += ins
    return out

def pf_wx(newround):
    L = []
    if newround:
        L = [f"s_add_u32 s{sPFo}, s{sPFo}, s{sPFr}"]
    return [L + [f"buffer_load_dword v{vDum}, v{vPF}, {srd(sPF)}, s{sPFo} offen{OPT['wxpfnt']}", f"s_add_u32 s{sPFo}, s{sPFo}, s{sPFs}"]]
def pf_kv(first):
    L = [f"s_mov_b32 s{sPi}, s{sRot}"] if first else []
    return [L + [f"s_add_u32 s{sT3}, s{sPb}, s{sPi}", f"buffer_load_dword v{vDum}, v{vPK}, {srd(sPK)}, s{sT3} offen{OPT['pfnt']}",
             f"s_add_u32 s{sPi}, s{sPi}, 0x2000", f"s_and_b32 s{sPi}, s{sPi}, 0x1ffff"]]

def addr_att(): return [f"v_add_u32 v{vA0}, s{sRd}, v{vKb}", f"v_add_u32 v{vA1}, s{sRd}, v{vV0b}", f"v_add_u32 v{vA2}, s{sRd}, v{vV1b}"]
def addr_qp(): return [f"v_add_u32 v{vA0}, s{sRd}, v{vWb}", f"v_add_u32 v{vA1}, s{sRd}, v{vXb}"]

def qfin_ops(s):
    ops = []
    for c in range(5):
        a = acc(2 * s, c)
        o = [f"v_mul_f32 v{a+i}, s{sC}, v{a+i}" for i in range(8)]
        o += [f"v_cvt_pk_bf16_f32 v{a+2*i}, v{a+2*i}, v{a+2*i+1}" for i in range(4)]
        o += [f"v_accvgpr_write_b32 a{Qreg(s,c)+i}, v{a+2*i}" for i in range(4)]
        ops += o
    return ops

def per_qp(m):
    P = Period(); P.addr = addr_qp()
    for ks in range(2):
        slot = SLOTA if ks == 0 else SLOTB
        k0 = len(P.m)
        xr = [XF + 4 * (ks * 5 + c) for c in range(5)]
        xl = mk([f"ds_read_b128 {ar(xr[c])}, v{vA1} offset:{c*2048 + ks*256}" for c in range(5)], tag='rd')
        xp = [-LEAD + 3, -LEAD + 4, -LEAD + 5, -LEAD + 8, -LEAD + 9] if ks == 0 else [3, 8, 13, 18, 23]
        for i, p in zip(xl, xp): i.pos = p
        P.f += xl
        P.f.append(W([f"a{xr[c]+i}" for c in range(5) for i in range(4)], k0 - 0.5))
        for t in range(8):
            k0 = len(P.m); r = rdW(P, k0, slot, t)
            for c in range(5):
                D = vr(acc(t, c))
                P.m += mk(f"{MF} {D}, {vr(r)}, {ar(xr[c])}, {'0' if (m == 0 and ks == 0) else D}")
    if m == 7:
        P.f += spread(qfin_ops(0), 53, 66)
        P.f += spread(qfin_ops(1), 66, 80)
    return P

def per_a0():
    P = Period(); P.addr = addr_att()
    for s in range(4):
        for kt in range(2): grpQK(P, SLOTB, 0, kt, s, 'zero')
    P.f += spread(qfin_ops(2), 0.5, 19.5)
    P.f += spread(qfin_ops(3), 19.6, 29.5)
    mx = interleave([colmax_ops(0, c, ET + 2 * c, ET + 2 * c + 1) +
                     [f"v_sub_f32 v{Mreg(c)+i}, 0, v{ET+2*c}" for i in range(4)] for c in range(5)])
    P.f += at(mk(mx), 40)
    for kt in range(2):
        for s in range(4): grpQK(P, SLOTA, 1, kt, s, 'negm')
    sub = [f"v_add_f32 v{Sreg(0,kt,c)+i}, v{Sreg(0,kt,c)+i}, v{Mreg(c)}" for kt in range(2) for c in range(5) for i in range(4)]
    P.f += spread(sub + softmax_ops(0) + ladd_ops(True), 40.5, 80)
    return P

def per_att(i):
    P = Period(); P.addr = addr_att()
    par = i % 2
    for g in range(8):
        grpPV(P, SLOTB, par ^ 1, g, i == 1)
        grpQK(P, SLOTA, par ^ 1, g // 4, g % 4, 'negm')
    P.f += spread(softmax_ops(par), 2.5, 78.5)
    P.f += at(mk(check_ops(par)), 80)
    P.f += at(mk(ladd_ops()), 80.5, 82.4)
    if OPT['pad']: P.f += spread([f"v_mov_b32 v247, v247"] * (OPT['pad'] // 4), 3, 78)
    return P

def rl_ops():
    L = []
    for c in range(5):
        d = Lreg(c); t2 = Treg(c)
        L.append([f"v_mov_b32 v{t2}, v{d}", f"v_permlane16_swap_b32 v{d}, v{t2}", f"v_add_f32 v{d}, v{d}, v{t2}",
                  f"v_mov_b32 v{t2}, v{d}", f"v_permlane32_swap_b32 v{d}, v{t2}", f"v_add_f32 v{d}, v{d}, v{t2}",
                  f"v_rcp_f32 v{vRl[c]}, v{d}"])
    return interleave(L)

def per_a15():
    P = Period(); P.addr = addr_att()
    for g in range(8): grpPV(P, SLOTB, 0, g, False)
    P.f += spread(softmax_ops(1), 2.5, 39.5)
    P.f += at(mk(check_ops(1)), 40)
    for g in range(8): grpPV(P, SLOTA, 1, g, False)
    P.f += spread(ladd_ops() + rl_ops(), 40.5, 62)
    return P

def epi_ops():
    out = []
    for u in range(4):
        for c in range(5):
            k = u * 5 + c
            o = []
            if k % 4 == 0:
                o += [f"s_add_u32 s{sT2}, s{sOo}, {k*1024}"]
            o += [f"v_accvgpr_read_b32 v{TMP+i}, a{Oreg(2*u + i//4, c) + i%4}" for i in range(8)]
            o += [f"v_mul_f32 v{TMP+i}, v{vRl[c]}, v{TMP+i}" for i in range(8)]
            o += [f"v_cvt_pk_bf16_f32 v{TMP+i}, v{TMP+2*i}, v{TMP+2*i+1}" for i in range(4)]
            o += [f"buffer_store_dwordx4 {vr(TMP)}, v{vSt}, {srd(sO)}, s{sT2} offen offset:{(k%4)*1024}{OPT['ont']}"]
            out.append(o)
    out[-1] += [f"s_add_u32 s{sOo}, s{sOo}, {8*20480}"]
    return out

def norm_ops(u, c, dst, xk=None):
    o = [f"v_accvgpr_read_b32 v{TMP+i}, a{Oreg(2*u + i//4, c) + i%4}" for i in range(8)]
    o += [f"v_mul_f32 v{TMP+i}, v{vRl[c]}, v{TMP+i}" for i in range(8)]
    pk = ET + 4 * ((u * 5 + c) % 4) if dst[0] == 'a' else dst[1]
    o += [f"v_cvt_pk_bf16_f32 v{pk+i}, v{TMP+2*i}, v{TMP+2*i+1}" for i in range(4)]
    if dst[0] == 'a': o += [f"v_accvgpr_write_b32 a{dst[1]+i}, v{pk+i}" for i in range(4)]
    return o

def per_op(ch, hh, umajor=False):
    P = Period(); P.addr = [f"v_add_u32 v{vA0}, s{sRd}, v{vOb}"]
    order = [(u, t) for u in range(4) for t in range(4)] if umajor else [(u, 2 * sp + e) for sp in range(2) for u in range(4) for e in range(2)]
    for (u, t) in order:
        k0 = len(P.m); r = next_frag(); o = u * 4096 + (t // 2) * 256 + (t % 2) * 8
        P.f += at(mk([f"ds_read_b64_tr_b16 {vr(r,2)}, v{vA0} offset:{o}",
                      f"ds_read_b64_tr_b16 {vr(r+2,2)}, v{vA0} offset:{o + 2048}"], tag='rd'), rpos(k0), rpos(k0) + 2)
        fwait(P, k0, r)
        for c in range(5):
            D = vr(acc(t, c))
            P.m += mk(f"{MF} {D}, {vr(r)}, {rr(Bfrag(hh,u,c))}, {'0' if (hh == 0 and u == 0) else D}")
    if hh == 3:
        HOLD = [blk(c) + 28 for c in range(5)] + [ET, ET + 4, ET + 8, ET + 12, TMP]
        last = (ch == 3) or not OPT['trickle']
        for sp in range(2):
            L = []; S = []
            for c in range(5):
                a = acc(2 * sp, c); pk = HOLD[sp * 5 + c]
                L += [f"v_cvt_pk_bf16_f32 v{pk+i}, v{a+2*i}, v{a+2*i+1}" for i in range(4)]
                st = [f"buffer_store_dwordx4 {vr(pk)}, v{vSt}, {srd(sO)}, s{sPo} offen{OPT['ont']}", f"s_add_u32 s{sPo}, s{sPo}, {8192 if OPT['play'] == 0 else 1024}"]
                if last: L += st
                else: S.append(st)
            P.f += spread(L, 45 + 40 * sp, (75 if last else 65) + 40 * sp)
            for c, st in enumerate(S):
                P.f += at(mk(st), 73 + 30 * (sp * 5 + c), 73.5 + 30 * (sp * 5 + c))
    return P

def dma_op(j):
    hh = j % 4
    D = [f"buffer_load_dwordx4 v{vDx[i%4]}, {srd(sWoS)}, s{sOp if i < 4 else sT0} offen offset:{(i%4)*1024}{OPT['wnt']} lds" for i in range(8)]
    G = [[f"s_add_u32 m0, s{sWr}, s{sMw}", D[0]], [D[1]], [D[2]], [D[3]],
         [f"s_add_u32 m0, m0, 0x1000", f"s_add_u32 s{sT0}, s{sOp}, 0x8000", D[4]], [D[5]], [D[6]], [D[7]]]
    if hh % 2 == 0: adv = [f"s_add_u32 s{sOp}, s{sOp}, s{sOpd}"]
    else:
        adv = [f"s_sub_u32 s{sOp}, s{sOp}, s{sOpd}",
               f"s_add_u32 s{sOp}, s{sOp}, 0x100000" if hh == 1 else f"s_sub_u32 s{sOp}, s{sOp}, {0x100000 - 128}"]
    G[-1] = G[-1] + adv
    return G

def build_k1():
    periods = []
    for r in range(2):
        for m in range(8): periods.append(per_qp(m))
        periods.append(per_a0())
        for i in range(1, 15): periods.append(per_att(i))
        periods.append(per_a15())
        assert pool_ctr[0] % NPOOL == 0
    for j in range(16): periods.append(per_op(j // 4, j % 4, umajor=(j in (1, 2))))
    def dma_for(n2):
        if n2 >= 64: return []
        if n2 >= 48: return dma_op(n2 - 48)
        j = n2 % 24
        if j < 8:
            G = dma_qp()
            if j == 0: G[0] = next_round_ops()[0] + G[0]
            return G
        if j == 8: return dma_kv(SLOTB, 'K') + dma_kv(SLOTA, 'K')
        if j == 23: return dma_kv(SLOTB, 'V') + dma_kv(SLOTA, 'V')
        return dma_kv(SLOTB, 'V') + dma_kv(SLOTA, 'K')
    M = []; F = []
    for n, P in enumerate(periods):
        base = 80 * n
        assert len(P.m) == 80
        M += P.m
        for i in P.f: i.pos = round(i.pos * 256) / 256.0 + base; F.append(i)
        b0 = base - LEAD
        pre = [f"s_add_u32 s{sWr}, s{sRd}, s{sMw}",
               f"s_add_u32 s{sRd}, s{sRd}, {STAGE}",
               f"s_cmp_eq_u32 s{sRd}, {3*STAGE}",
               f"s_cselect_b32 s{sRd}, 0, s{sRd}"] + P.addr
        pi = at(mk(pre), b0 - 5, b0 - 0.1); pi[3].pos = pi[2].pos
        F += pi
        if OPT['stamp']: F += at(mk("s_memtime s[50:51]"), b0 - 0.05)
        F += at(mk("s_barrier", tag='barwait'), b0)
        if OPT['stamp']: F += at(mk(["s_mov_b32 m0, s45", "s_add_u32 s45, s45, 1", "v_writelane_b32 v235, s50, m0"]), b0 + 0.01)
        G = dma_for(n + 2)
        j = n % 24
        if OPT['wxpf'] and (24 <= n + 2 + OPT['pfd'] < 32):
            G = G + pf_wx(n + 2 + OPT['pfd'] == 24)
        if n < 48 and j in [int(x) for x in OPT['kvpf'].split(',') if x != '']:
            G = G + pf_kv(j == int(OPT['kvpf'].split(',')[0]))
        wo = [int(x) for x in OPT['wopf'].split(',') if x != '']
        if n in wo:
            G = G + [[f"buffer_load_dword v{vDum}, v{vPK}, {srd(sWoS)}, s{sPb} offen{OPT['wopfnt']}", f"s_add_u32 s{sPb}, s{sPb}, 8192"]]
            if n == wo[0]: G[-1] = [f"s_mov_b32 s{sPb}, s{sPi}"] + G[-1]
        if not G: continue
        slots = [b0 + 4 + 5 * q for q in range(13)] if len(G) <= 13 else [b0 + 3 + 5 * (q // 2) + (q % 2) for q in range(26)]
        step = len(slots) / len(G)
        F += place_groups(G, [slots[int(gi * step)] for gi in range(len(G))], b0)
    def B0(n): return 80 * n - LEAD
    def mem_at(lines, p0, step=5):
        ins = mk(lines)
        for q, i in enumerate(ins): i.pos = p0 + step * q if isinstance(step, (int, float)) else step[q]
        return ins
    flat = [x for u in (2, 0, 1, 3) for c in range(5) for x in norm_ops(u, c, ('a', Oreg(2 * u, c)) if u < 3 else PK3[c])]
    F += spread(flat, 80 * 24 + 5, 80 * 30 - LEAD)
    for n, k in ((30, 2), (31, 0), (32, 1)):
        F += mem_at([xwr(('a', Oreg(2 * k, c)), k, c) for c in range(5)], B0(n) + 20, 5)
    rd47 = [xrd(Bfrag(0, u, c), u, c, True) for u in range(3) for c in range(5)]
    F += mem_at(rd47, 80 * 47 + 3, [80 * 47 + 3 + 5 * (q // 2) + (q % 2) for q in range(15)])
    rd47b = [xrd(Bfrag(1, u, c), u, c, False) for u in (2, 0) for c in range(5)]
    F += mem_at(rd47b, 0, [80 * 47 + 43 + 5 * (q // 3) + (q % 3) for q in range(10)])
    F.append(W([f"a{160+i}" for i in range(60)], 80 * 48 - 0.5))
    F += mem_at([xrd(Bfrag(1, 1, c), 1, c, False) for c in range(5)], 80 * 48 + 5)
    F += mem_at([xwr(PK3[c], 0, c) for c in range(5)], B0(48) + 5)
    nrm = lambda u: [x for c in range(5) for x in norm_ops(u, c, Bfrag(2, u, c))]
    F += spread(nrm(0), 80 * 47 + 63, 80 * 48 + 35)
    F += mem_at([xwr(Bfrag(2, 0, c), 2, c) for c in range(5)], 80 * 48 + 38, 4)
    F += spread(nrm(1), 80 * 48 + 35, 80 * 49 + 10)
    F += mem_at([xrd(Bfrag(1, 3, c), 0, c, False) for c in range(5)] + [xrd(Bfrag(3, 0, c), 2, c, False) for c in range(5)], B0(49) + 5)
    F += mem_at([xwr(Bfrag(2, 1, c), 1, c) for c in range(5)], 80 * 49 + 38, 4)
    F += spread(nrm(2), 80 * 49 + 10, 80 * 49 + 65)
    F += spread(nrm(3), 80 * 49 + 65, 80 * 50 + 35)
    F += mem_at([xrd(Bfrag(3, 1, c), 1, c, False) for c in range(5)] + [xwr(Bfrag(2, 2, c), 0, c) for c in range(5)], B0(50) + 5)
    F += mem_at([xwr(Bfrag(2, 3, c), 2, c) for c in range(5)], 80 * 50 + 38, 4)
    F += mem_at([xrd(Bfrag(3, 2, c), 0, c, False) for c in range(5)] + [xrd(Bfrag(3, 3, c), 2, c, False) for c in range(5)], 0,
                [B0(51) + 3 + 5 * (q // 3) + (q % 3) for q in range(10)])
    dr = OPT['drop']
    if 'D' in dr: F = [i for i in F if i.kind != 'dma']
    if 'E' in dr: F = [i for i in F if i.kind != 'trans']
    if 'V' in dr: F = [i for i in F if not (i.kind == 'valu' and i.op in ('v_add_f32', 'v_cvt_pk_bf16_f32'))]
    if 'R' in dr: F = [i for i in F if i.kind != 'dsr']
    if 'S' in dr: F = [i for i in F if i.kind != 'vst']
    if 'C' in dr: F = [i for i in F if not (i.kind == 'branch' or i.kind == 'label')]
    for i in F:
        i.pos = round(i.pos * 256) / 256.0
        if i.kind == 'vld' and i.wr == [f"v{vDum}"]: i.wr = []
    seq = gap_schedule(M, F, OPT['early'], OPT['late']) if OPT['sched'] else merge_global(M, F)
    segs = [[]]
    for i in seq:
        if i.kind == 'barrier': segs.append([])
        segs[-1].append(i)
    return segs

def merge_global(M, F):
    fl = sorted(enumerate(F), key=lambda e: (e[1].pos, e[0]))
    out = []; j = 0
    for k, m in enumerate(M):
        while j < len(fl) and fl[j][1].pos <= k:
            out.append(fl[j][1]); j += 1
        out.append(m)
    out += [e[1] for e in fl[j:]]
    return out

def k1_setup():
    cexp = math.log2(math.e) / math.sqrt(128.0)
    n = OPT['cpf']
    CPF = "" if not n else f"""s_getpc_b64 s[62:63]
s_lshr_b32 s5, s2, 3
s_lshl_b32 s5, s5, 2
v_add_u32 v21, s5, v20
v_mul_u32_u24 v21, {n}, v21
v_min_u32 v22, {n-1}, v0
v_add_u32 v21, v21, v22
v_min_u32 v21, CODE_LINES, v21
v_lshlrev_b32 v21, 7, v21
global_load_dword v{vDum}, v21, s[62:63]"""
    A = mk(f"""
s_cmp_ge_u32 s2, 256
s_cbranch_scc1 K1_END
s_and_b32 s3, s2, 7
s_lshr_b32 s4, s3, 2
s_mul_i32 s4, s4, 40
s_add_u32 s6, s0, s4
s_addc_u32 s7, s1, 0
s_load_dwordx8 s[52:59], s[6:7], 0
s_load_dwordx2 s[60:61], s[0:1], 96
s_load_dwordx2 s[78:79], s[6:7], 32
v_lshrrev_b32 v20, 6, v0
v_and_b32 v0, 63, v0
v_readfirstlane_b32 s{sWv}, v20
{CPF}
v_lshrrev_b32 v20, 4, v0
v_bfe_u32 v21, v0, 2, 2
v_and_b32 v22, 3, v0
s_lshr_b32 s5, s2, 3
s_bfe_u32 s62, s3, 0x10001
s_and_b32 s63, s3, 1
s_lshr_b32 s71, s5, 2
s_lshl_b32 s62, s62, 3
s_add_u32 s64, s71, s62
s_and_b32 s4, s5, 3
s_lshl_b32 s65, s4, 1
s_lshl_b32 s63, s63, 4
s_add_u32 s63, s65, s63
s_lshr_b32 s66, s{sWv}, 1
s_and_b32 s67, s{sWv}, 1
s_add_u32 s65, s63, s66
s_lshl_b32 s{sMw}, s{sWv}, 12
s_lshl_b32 s{sMx}, s{sWv}, 10
s_add_u32 s{sMx}, s{sMx}, {XOFF}
s_lshl_b32 s{sWo}, s65, 8
s_lshl_b32 s68, s67, 17
s_add_u32 s{sWo}, s{sWo}, s68
s_mul_i32 s69, s64, 163840
s_mul_i32 s68, s{sWv}, 40960
s_add_u32 s{sXo}, s69, s68
s_lshl_b32 s71, s71, 16
s_lshl_b32 s68, s67, 15
s_add_u32 s71, s71, s68
s_lshl_b32 s68, s63, 8
s_add_u32 s71, s71, s68
s_mul_i32 s4, s4, 40960
s_add_u32 s69, s69, s4
s_mul_i32 s68, s67, 20480
s_add_u32 s69, s69, s68
s_movk_i32 s{sPFs}, 128
s_movk_i32 s{sPFr}, -1024
s_mov_b32 s{sPF+2}, 2621440
s_cmp_eq_u32 s66, 0
s_cselect_b32 s{sPFo}, s71, s69
s_cselect_b32 s{sPFs}, 0x80000, s{sPFs}
s_cselect_b32 s{sPFr}, {(-(8*0x80000) + 2048) & 0xffffffff}, s{sPFr}
s_cselect_b32 s{sPF+2}, 4194304, s{sPF+2}
s_cselect_b32 s70, 16, 20
s_mov_b32 s{sPF+3}, 0x20000
s_cselect_b64 vcc, -1, 0
v_lshrrev_b32 v23, 2, v0
v_lshlrev_b32 v23, 13, v23
v_lshl_add_u32 v23, v22, 7, v23
v_lshlrev_b32 v24, 10, v0
v_cndmask_b32 v23, v24, v23, vcc
v_mov_b32 v24, 0x7f000000
v_cmp_gt_u32 vcc, s70, v0
v_lshlrev_b32 v25, 4, v22
v_lshl_add_u32 v25, v20, 6, v25
v_cndmask_b32 v{vPF}, v24, v23, vcc
v_lshl_add_u32 v{vDkv0}, v21, 8, v25
v_xor_b32 v{vDkv1}, 32, v{vDkv0}
v_lshl_add_u32 v{vDw[0]}, v21, 13, v25
v_add_u32 v{vDw[1]}, {31744}, v{vDw[0]}
v_add_u32 v{vDw[2]}, {2*31744}, v{vDw[0]}
v_add_u32 v{vDw[3]}, {3*31744}, v{vDw[0]}
v_lshrrev_b32 v24, 5, v0
v_lshlrev_b32 v25, 1, v24
v_xor_b32 v25, v25, v22
v_lshlrev_b32 v25, 4, v25
v_and_b32 v23, 1, v20
v_lshl_add_u32 v25, v23, 6, v25
v_lshl_add_u32 v25, v21, 10, v25
v_lshl_add_u32 v{vDx[0]}, v24, 12, v25
v_add_u32 v{vDx[1]}, 7168, v{vDx[0]}
v_add_u32 v{vDx[2]}, {2*7168}, v{vDx[0]}
v_add_u32 v{vDx[3]}, {3*7168}, v{vDx[0]}
s_mov_b32 s{sX+2}, 2621440
s_mov_b32 s{sX+3}, 0x20000
s_mov_b32 s{sW+2}, 4194304
s_mov_b32 s{sW+3}, 0x20000
s_mov_b32 s{sWr}, s{sMw}
s_waitcnt lgkmcnt(0)
s_cselect_b32 s{sPF}, s58, s52
s_cselect_b32 s{sPF+1}, s59, s53
s_mov_b32 s{sX}, s52
s_mov_b32 s{sX+1}, s53
s_mov_b32 s{sW}, s58
s_mov_b32 s{sW+1}, s59
""")
    for i in A:
        if i.kind == 'vld': i.wr = []
    pf = []
    if OPT['wxpf']:
        pf = mk([x for _ in range(8) for g in pf_wx(False) for x in g])
        for i in pf:
            if i.kind == 'vld': i.wr = []
    D0 = mk([x for g in dma_qp() for x in g])
    D1 = mk(f"s_add_u32 s{sWr}, s{sMw}, {STAGE}", tag='vmreset') + mk([x for g in dma_qp() for x in g])
    B = mk(f"""
s_mov_b32 s{sRd}, {2*STAGE}
s_lshl_b32 s68, s64, 5
s_add_u32 s68, s68, s65
s_lshl_b32 s{sPb}, s68, 17
s_lshl_b32 s68, s67, 12
s_add_u32 s{sKVb}, s{sPb}, s68
s_mul_i32 s{sKi}, s2, {OPT['rot']*0x2000*5}
s_lshr_b32 s68, s2, 4
s_mul_i32 s68, s68, {OPT['rot']*0x2000*3}
s_add_u32 s{sKi}, s{sKi}, s68
s_and_b32 s{sKi}, s{sKi}, 0x1ffff
s_mov_b32 s{sVi}, s{sKi}
s_mov_b32 s{sRot}, s{sKi}
s_lshr_b32 s68, s5, 2
s_lshr_b32 s4, s68, 2
s_lshl_b32 s4, s4, 20
s_and_b32 s68, s68, 3
s_lshl_b32 s68, s68, 16
s_add_u32 s4, s4, s68
s_lshl_b32 s68, s63, 17
s_add_u32 s4, s4, s68
s_lshl_b32 s68, s{sWv}, 14
s_add_u32 s{sPi}, s4, s68
s_lshr_b32 s68, s3, 2
s_lshl_b32 s68, s68, 4
s_add_u32 s68, s68, s64
s_lshl_b32 s68, s68, 1
s_add_u32 s68, s68, s67
s_lshl_b32 s68, s68, 1
s_add_u32 s68, s68, s66
s_mul_i32 s{sPo}, s68, {8*5*8*1024}
s_and_b32 s68, s3, 1
s_lshl_b32 s68, s68, 2
s_and_b32 s4, s5, 3
s_add_u32 s68, s68, s4
s_mul_i32 s68, s68, {1024 if OPT['play'] == 0 else 40960}
s_add_u32 s{sPo}, s{sPo}, s68
s_lshl_b32 s{sOp}, s65, 17
s_lshl_b32 s68, s67, 16
s_add_u32 s{sOp}, s{sOp}, s68
s_lshl_b32 s68, s66, 9
s_add_u32 s{sOp}, s{sOp}, s68
s_lshl_b32 s68, s66, 18
s_sub_u32 s{sOpd}, 0x20000, s68
s_mov_b32 s{sC}, {f2h(cexp)}
s_mov_b32 s{sTh}, {f2h(OPT['thresh'])}
s_mov_b32 s{sRound}, 0
s_lshl_b32 s69, s66, 13
s_mul_i32 s70, s67, 10240
s_add_u32 s70, s70, {XOFF}
v_and_b32 v23, 1, v21
v_lshlrev_b32 v23, 1, v23
v_xor_b32 v23, v23, v20
v_lshlrev_b32 v23, 4, v23
v_lshl_add_u32 v23, v22, 6, v23
v_lshl_add_u32 v{vKb}, v21, 10, v23
v_add_u32 v{vKb}, s69, v{vKb}
v_lshl_add_u32 v{vXb}, v21, 9, v23
v_add_u32 v{vXb}, s70, v{vXb}
v_and_b32 v23, 1, v20
v_lshlrev_b32 v23, 5, v23
v_lshlrev_b32 v24, 3, v22
v_xor_b32 v23, v23, v24
v_lshl_add_u32 v23, v21, 6, v23
v_lshl_add_u32 v23, v20, 10, v23
v_add_u32 v{vV0b}, s69, v23
v_xor_b32 v{vV1b}, 32, v{vV0b}
v_lshlrev_b32 v23, 4, v22
v_lshl_add_u32 v23, v21, 6, v23
v_lshl_add_u32 v23, v20, 11, v23
v_add_u32 v{vWb}, s69, v23
v_lshlrev_b32 v{vSt}, 4, v0
v_lshlrev_b32 v{vPK}, 7, v0
v_and_b32 v23, 1, v20
v_lshlrev_b32 v23, 1, v23
v_xor_b32 v23, v23, v22
v_lshlrev_b32 v23, 4, v23
v_lshl_add_u32 v23, v21, 6, v23
v_lshl_add_u32 v23, v20, 9, v23
s_lshl_b32 s69, s66, 14
v_add_u32 v{vOb}, s69, v23
s_mul_i32 s69, s{sWv}, 5120
s_add_u32 s69, s69, {XOFF}
v_add_u32 v{vXo0}, s69, v{vSt}
v_add_u32 v{vXo2}, {2*STAGE}, v{vXo0}
s_xor_b32 s69, s{sWv}, 2
s_mul_i32 s69, s69, 5120
s_add_u32 s69, s69, {XOFF}
v_add_u32 v{vXp0}, s69, v{vSt}
v_add_u32 v{vXp2}, {2*STAGE}, v{vXp0}
s_mov_b32 s{sWoS}, s78
s_mov_b32 s{sWoS+1}, s79
s_mov_b32 s{sWoS+2}, 4194304
s_mov_b32 s{sWoS+3}, 0x20000
s_mov_b32 s{sK}, s54
s_mov_b32 s{sK+1}, s55
s_mov_b32 s{sK+2}, 67108864
s_mov_b32 s{sK+3}, 0x20000
s_mov_b32 s{sV}, s56
s_mov_b32 s{sV+1}, s57
s_mov_b32 s{sV+2}, 67108864
s_mov_b32 s{sV+3}, 0x20000
s_mov_b32 s{sO}, s60
s_mov_b32 s{sO+1}, s61
s_mov_b32 s{sO+2}, 41943040
s_mov_b32 s{sO+3}, 0x20000
s_cmp_eq_u32 s67, 0
s_cselect_b32 s{sPK}, s54, s56
s_cselect_b32 s{sPK+1}, s55, s57
s_mov_b32 s{sPK+2}, 67108864
s_mov_b32 s{sPK+3}, 0x20000
""")
    return A + pf + D0 + D1 + B

def rare(par):
    L = [f"RARE{par}:", "s_nop 15"]
    d, t2, f = TMP, TMP + 1, TMP + 2
    for c in range(5):
        L += colmax_ops(par, c, d, t2)
        L += [f"v_max_f32 v{d}, 0, v{d}", f"v_exp_f32 v{f}, -v{d}"]
        L += [f"v_sub_f32 v{Mreg(c)+i}, v{Mreg(c)+i}, v{d}" for i in range(4)]
        L += [f"v_sub_f32 v{blk(c)+i}, v{blk(c)+i}, v{d}" for i in range(16)]
        L += [f"v_mul_f32 v{Lreg(c)}, v{Lreg(c)}, v{f}"]
        for t in range(8):
            L += [f"v_accvgpr_read_b32 v{TMP+4+i}, a{Oreg(t,c)+i}" for i in range(4)]
            L += [f"v_mul_f32 v{TMP+4+i}, v{TMP+4+i}, v{f}" for i in range(4)]
            L += [f"v_accvgpr_write_b32 a{Oreg(t,c)+i}, v{TMP+4+i}" for i in range(4)]
    L += softmax_ops(par)
    L += ["s_nop 3", f"s_setpc_b64 s[{sRet}:{sRet+1}]"]
    seq = mk(L); analyze_trace(seq)
    return seq

def segtext(s): return "\n".join(i.text for i in s)

def emit_k1():
    segs = build_k1()
    pre = segs[0]; S = segs[1:]
    assert len(S) == 64
    T = [segtext(s) for s in S]
    k1 = 20
    while k1 < 24 and T[k1] == T[k1 + 24]: k1 += 1
    k0 = 20
    while k0 > 0 and T[k0 - 1] == T[k0 - 1 + 24]: k0 -= 1
    prog = []; trace = []
    lab = [0]; stubs = []
    def fixlabels(seq):
        for i in seq:
            if '@' in i.text:
                if i.kind == 'branch':
                    lab[0] += 1
                    tgt = i.text.split()[1].split('_')[0]
                    stubs.append((tgt, lab[0]))
                i.text = i.text.replace('@', str(lab[0]))
    def fold(lo, hi):
        p = []; t = []; k = lo
        while k < hi:
            done = False
            for L in (1, 2, 4):
                n = 1
                while k + (n + 1) * L <= hi and all(T[k + j] == T[k + n * L + j] for j in range(L)): n += 1
                if n >= 2:
                    body = [i for j in range(L) for i in S[k + j]]
                    fixlabels(body)
                    lab[0] += 1; ln = f"LP{lab[0]}"
                    init = mk(f"s_mov_b32 s{sCnt}, {n}")
                    tail = mk([f"s_sub_u32 s{sCnt}, s{sCnt}, 1", f"s_cmp_lg_u32 s{sCnt}, 0", f"s_cbranch_scc1 {ln}"])
                    p += init + mk(ln + ":") + body + tail
                    t += init + (body + tail) * min(n, 3)
                    print(f"  loop segs {k}..{k+n*L-1} L={L} n={n}", file=sys.stderr)
                    k += n * L; done = True; break
            if not done:
                fixlabels(S[k]); p += S[k]; t += S[k]; k += 1
        return p, t
    setup = k1_setup()
    p1, t1 = fold(0, k0)
    p2, t2 = fold(k0, k1)
    p3, t3 = fold(k1, 24 + k0)
    p4, t4 = fold(24 + k1, 64)
    br = mk([f"s_cmp_lg_u32 s{sRound}, 0", "s_cbranch_scc1 K1_FINAL"])
    back = mk([f"s_mov_b32 s{sRound}, 1", "s_branch K1_OUTER"])
    if OPT['stamp']:
        st0 = mk(["s_memtime s[72:73]", "s_memrealtime s[74:75]", "s_mov_b32 s45, 0", "v_mov_b32 v235, 0", "v_mov_b32 v246, 0"])
        setup = setup[:2] + st0 + setup[2:]
        st1 = mk(["s_memtime s[50:51]", "s_waitcnt lgkmcnt(0)", "v_writelane_b32 v246, s50, 0", "s_waitcnt vmcnt(0)", "s_memtime s[50:51]", "s_memrealtime s[76:77]", "s_waitcnt lgkmcnt(0)",
                  "v_writelane_b32 v246, s50, 1", "v_writelane_b32 v246, s72, 60", "v_writelane_b32 v246, s74, 61", "v_writelane_b32 v246, s76, 62",
                  f"s_lshl_b32 s50, s2, 2", f"s_add_u32 s50, s50, s{sWv}", "s_lshl_b32 s50, s50, 9", f"s_add_u32 s50, s50, {48<<20}",
                  f"v_lshrrev_b32 v245, 2, v{vSt}", f"s_mov_b32 s{sO+2}, {64<<20}",
                  f"buffer_store_dword v235, v245, {srd(sO)}, s50 offen", f"buffer_store_dword v246, v245, {srd(sO)}, s50 offen offset:256"])
        if OPT['dbg']:
            L = ["s_memtime s[50:51]", "s_memrealtime s[76:77]", "s_waitcnt lgkmcnt(0)",
                 "s_sub_u32 s50, s50, s72", "s_sub_u32 s76, s76, s74", "v_writelane_b32 v246, s50, 14", "v_writelane_b32 v246, s76, 15"]
            for q, ln in enumerate([0, 1, 4, 8, 9, 16, 24, 32, 33, 40, 48, 52, 56, 63]):
                L += [f"v_readlane_b32 s50, v235, {ln}", "s_nop 3", "s_sub_u32 s50, s50, s72", f"v_writelane_b32 v246, s50, {q}"]
            L += [f"s_lshl_b32 s50, s2, 2", f"s_add_u32 s50, s50, s{sWv}", f"s_cmp_lg_u32 s50, {OPT['dbg']-1}", "s_cbranch_scc1 K1_END",
                  f"s_mov_b32 s{sO+2}, {64<<20}", f"s_mov_b32 s50, {48<<20}",
                  f"v_lshrrev_b32 v245, 2, v{vSt}", f"buffer_store_dword v246, v245, {srd(sO)}, s50 offen"]
            st1 = mk(L)
        p4 += st1; t4 += st1
    prog = setup + pre + p1 + mk("K1_OUTER:") + p2 + br + p3 + back + mk("K1_FINAL:") + p4 + mk(["K1_END:", "s_endpgm"])
    trace = setup + pre + t1 + t2 + br + t3 + back + t2 + br + t4
    analyze_trace(trace)
    out = emit(prog) + "\n"
    for tgt, n in stubs:
        out += f"{tgt}_{n}:\n  s_call_b64 s[{sRet}:{sRet+1}], {tgt}\n  s_branch RET_{n}\n"
    out += emit(rare(0)) + "\n" + emit(rare(1)) + "\n"
    print(f"  k0={k0} k1={k1}", file=sys.stderr)
    print("  model cycles/seg:", [model_cycles(x) for x in S], file=sys.stderr)
    return out

def emit_k2():
    sP, sOut = 8, 12
    L = f"""
s_cmp_ge_u32 s2, 256
s_cbranch_scc1 K2_END
s_load_dwordx2 s[4:5], s[0:1], 96
s_load_dwordx2 s[6:7], s[0:1], 80
v_lshrrev_b32 v1, 6, v0
v_and_b32 v0, 63, v0
v_readfirstlane_b32 s20, v1
v_lshlrev_b32 v1, 4, v0
v_add_u32 v2, 4096, v1
s_lshl_b32 s21, s2, 2
s_add_u32 s21, s21, s20
{"s_mul_i32 s22, s21, 40960" if OPT['play'] == 0 else "s_lshr_b32 s22, s21, 3"}
{"s_nop 0" if OPT['play'] == 0 else "s_mul_i32 s22, s22, 327680"}
{"s_nop 0" if OPT['play'] == 0 else "s_and_b32 s23, s21, 7"}
{"s_nop 0" if OPT['play'] == 0 else "s_mul_i32 s23, s23, 5120"}
{"s_nop 0" if OPT['play'] == 0 else "s_add_u32 s22, s22, s23"}
s_mov_b32 s{sP+2}, 41943040
s_mov_b32 s{sP+3}, 0x20000
s_mov_b32 s{sOut+2}, 5242880
s_mov_b32 s{sOut+3}, 0x20000
s_waitcnt lgkmcnt(0)
s_mov_b32 s{sP}, s4
s_mov_b32 s{sP+1}, s5
""".strip().split("\n")
    R = 16
    if OPT['play'] == 0:
      for c in range(5):
        for k in range(8):
            r = R + (c * 8 + k) * 4
            L.append(f"buffer_load_dwordx4 {vr(r)}, v{1 if k < 4 else 2}, {srd(sP)}, s22 offen offset:{(k%4)*1024}{OPT['k2ont']}")
        L.append("s_add_u32 s22, s22, 8192")
    else:
      for k in range(8):
        for c in range(5):
            r = R + (c * 8 + k) * 4
            L.append(f"buffer_load_dwordx4 {vr(r)}, v{1 if c < 4 else 2}, {srd(sP)}, s22 offen offset:{(c%4)*1024}{OPT['k2ont']}")
        L.append("s_add_u32 s22, s22, 40960")
    L += f"""
s_mov_b32 s{sOut}, s6
s_mov_b32 s{sOut+1}, s7
s_and_b32 s23, s21, 15
s_lshl_b32 s23, s23, 6
s_lshr_b32 s24, s21, 4
s_and_b32 s25, s24, 31
s_mul_i32 s25, s25, {80*2048}
s_add_u32 s23, s23, s25
s_lshr_b32 s24, s24, 5
s_lshl_b32 s24, s24, 10
s_add_u32 s23, s23, s24
v_and_b32 v3, 15, v0
v_lshlrev_b32 v3, 11, v3
v_lshrrev_b32 v4, 4, v0
v_lshl_add_u32 v3, v4, 4, v3
s_mov_b32 s26, 0xffff0000
""".strip().split("\n")
    for c in range(5):
        A = 8
        for k in range(8):
            r = R + (c * 8 + k) * 4
            for i in range(4):
                if k == 0:
                    L += [f"v_lshlrev_b32 v{A+2*i}, 16, v{r+i}", f"v_and_b32 v{A+2*i+1}, s26, v{r+i}"]
                else:
                    L += [f"v_lshlrev_b32 v{4+i}, 16, v{r+i}", f"v_and_b32 v{r+i}, s26, v{r+i}"]
            if k:
                for i in range(4):
                    L += [f"v_add_f32 v{A+2*i}, v{A+2*i}, v{4+i}", f"v_add_f32 v{A+2*i+1}, v{A+2*i+1}, v{r+i}"]
        r = R + c * 32
        L += [f"v_cvt_pk_bf16_f32 v{r+i}, v{A+2*i}, v{A+2*i+1}" for i in range(4)]
        L += [f"buffer_store_dwordx4 {vr(r)}, v3, {srd(sOut)}, s23 offen", f"s_add_u32 s23, s23, {16*2048}"]
    if OPT['dbg']:
        L += ["s_cmp_lg_u32 s21, 0", "s_cbranch_scc1 K2_END", "s_load_dwordx2 s[28:29], s[0:1], 88", f"s_mov_b32 s{sP+2}, {64<<20}", f"s_mov_b32 s22, {48<<20}",
              "v_lshlrev_b32 v1, 2, v0", f"buffer_load_dword v2, v1, {srd(sP)}, s22 offen", "s_waitcnt lgkmcnt(0)",
              "s_mov_b32 s32, s28", "s_mov_b32 s33, s29", "s_mov_b32 s34, 64", "s_mov_b32 s35, 0x20000", "buffer_store_dword v2, v1, s[32:35], 0 offen"]
    L += ["K2_END:", "s_endpgm"]
    prog = mk(L); analyze_trace(prog)
    return emit(prog) + "\n"

def kd(name, vg=512, acc=256):
    return f""".amdhsa_kernel {name}
  .amdhsa_next_free_vgpr {vg}
  .amdhsa_next_free_sgpr 96
  .amdhsa_accum_offset {acc}
  .amdhsa_group_segment_fixed_size 0
  .amdhsa_kernarg_size 104
  .amdhsa_user_sgpr_count 2
  .amdhsa_user_sgpr_kernarg_segment_ptr 1
  .amdhsa_system_sgpr_workgroup_id_x 1
.end_amdhsa_kernel
"""

K1 = NAME + "_kernel"; K2 = "oproj_kernel"
hdr = open("cdna_kernels/" + NAME + ".s.ref").read().split("; Override launch")[0]
o = hdr
if not OPT['k2only']: o += f"; @launch kernel={K1} grid=(256,1,1) block=(256,1,1) lds={3*STAGE}\n"
if not OPT['k1only']: o += f"; @launch kernel={K2} grid=(256,1,1) block=(256,1,1) lds=0\n"
o += '.amdgcn_target "amdgcn-amd-amdhsa--gfx950"\n.text\n'
o += f".globl {K1}\n.p2align 8\n.type {K1},@function\n{K1}:\n" + emit_k1()
o += f".globl {K2}\n.p2align 8\n.type {K2},@function\n{K2}:\n" + emit_k2()
o += '.section .rodata,"a"\n.p2align 6\n' + kd(K1) + ".p2align 6\n" + kd(K2, 176, 176)
import subprocess, re
if "CODE_LINES" in o:
    open("_g.s", "w").write(o.replace("CODE_LINES", "0x100"))
    subprocess.run(["clang", "-x", "assembler", "-target", "amdgcn-amd-amdhsa", "-mcpu=gfx950", "-c", "_g.s", "-o", "_g.o"], check=True)
    t = subprocess.run(["llvm-objdump", "-t", "_g.o"], capture_output=True, text=True).stdout
    end = int([l for l in t.split("\n") if l.endswith(" K1_END")][0].split()[0], 16)
    print("  K1 main code bytes", end, file=sys.stderr)
    o = o.replace("CODE_LINES", hex(end // 128))
open(sys.argv[1], "w").write(o)
```

```python
import sys, struct, math
from asmlib import *

NAME = "concat_heads__gqa_block_cached__mha_block_cached__near_ridge"
OPT = dict(fd=1.2, fd6=0.5, cs='55.2,56.0,56.05,57.1,57.5,M;55.3,56.1,56.45,57.5,57.97,1;57.2,58.0,58.05,59.2,59.9,M;59.2,60.0,60.05,61.2,61.9,M;61.2,62.0,62.05,63.1,63.8,M;62.9,63.5,63.55,64.9,65.4,0;63.6,64.05,64.1,65.5,66.0,2', pfdma=0, pfl=32, pfstep=0x4000, pfstart=0x4000, pad=0, cpf=5, dbg=0, trickle=1, wopf='47,48', wopfnt='', play=1, lead=15, kvpf='', wxpf=0, pfd=2, sched=1, early=3.0, late=2.0, k2pf=3, pfnt=' nt', wxpfnt='', kvnt=" nt", ont=" nt", rot=1, k2ont=" nt", epi_periods=5, thresh=1024.0, k1only=0, k2only=0, stamp=0, stamp2=0, k2wnt='', k2depth=3, k2drop='', drop='', wnt=' nt', xnt=' nt')
for kv in sys.argv[2:]:
    k, v = kv.split("="); OPT[k] = v.replace("_", " ") if isinstance(OPT[k], str) else (int(v, 0) if isinstance(OPT[k], int) else float(v))
LEAD = OPT['lead']
def f2h(x): return "0x%08x" % struct.unpack("<I", struct.pack("<f", x))[0]
MF = "v_mfma_f32_16x16x32_bf16"
def vr(b, n=4): return f"v[{b}:{b+n-1}]"
def ar(b, n=4): return f"a[{b}:{b+n-1}]"

STAGE = 53248; SLOTA = 0; SLOTB = 16384; XOFF = 32768
sX, sW, sK, sV, sO = 8, 12, 16, 20, 24
sWv, sRd, sWr, sMw, sMx = 28, 29, 30, 31, 32
sKVb, sKi, sVi, sWo, sXo, sOo = 33, 34, 35, 36, 37, 38
sT0, sT1, sC, sTh, sCnt, sRound = 39, 40, 41, 42, 43, 44
sRet = 46
sT2, sT3 = 48, 49
def srd(b): return f"s[{b}:{b+3}]"
vKb, vV0b, vV1b, vWb, vXb = 1, 2, 3, 4, 5
vA0, vA1, vA2 = 6, 7, 8
vDkv0, vDkv1 = 9, 10
vDw = [11, 12, 13, 14]
vDx = [15, 16, 17, 18]
vSt = 19
vRl = [20, 21, 22, 23, 0]
BLK = 24
def blk(c): return BLK + 32 * c
def acc(t, c): return blk(c) + 4 * t
def Sreg(par, kt, c): return blk(c) + 8 * par + 4 * kt
def Preg(par, c): return blk(c) + 16 + 4 * par
def Mreg(c): return blk(c) + 24
def Lreg(c): return blk(c) + 28
def Treg(c): return blk(c) + 29
POOL = 184
NPOOL = 8
XF = 200
TMP = 248
ET = 216
vPF, vPK, vDum, vStamp = 232, 233, 234, 235
sPF, sPK = 80, 84
sPFo, sPFs, sPFr, sPb, sPi, sRot = 88, 89, 90, 91, 92, 93
def Oreg(t, c): return (t * 5 + c) * 4
def Qreg(s, c): return 160 + (s * 5 + c) * 4

vXo0, vXo2, vXp0, vXp2 = 236, 237, 238, 239
vPK2 = 247; sPj = 48
vOb = 244
PK3 = [('a', 240), ('a', 244), ('a', 248), ('a', 252), ('v', 240)]
sWoS = 96 - 28
sOp, sOpd, sPo = 94, 95, 38
MSG = [blk(c) + 28 for c in range(5)]
HOLD = [ET, ET + 4, ET + 8]
vTag, vFl, vF0, vT1, vFl2 = 208, 210, 211, 213, 214
vOut = 15; vEp = 232
RREG = list(range(ET + 12, ET + 16)) + list(range(TMP, TMP + 8)) + [232, 233, 234, 236, 237, 238, 239, 245, 247, 215, 212] + \
       [1, 2, 3, 4, 5, 8, 9, 10, 11, 12, 13, 14, 20, 21, 22, 23, 0]
assert len(set(RREG)) == 40
sOutS, sDbg = 80, 84
sSig, sMb, sFb, sCm, sCf, sTag, sOutO, sSpin, sSpin2, sOpB, sPd = 88, 89, 90, 93, 48, 96, 97, 98, 99, 100, 101
sTa, sSc = 4, 5
FLAGB = 41943040
def rr(f): return f"{f[0]}[{f[1]}:{f[1]+3}]"
def Bfrag(hh, u, c):
    if hh == 0: return ('a', 160 + (u * 5 + c) * 4) if u < 3 else PK3[c]
    if hh == 1: return ('v', blk(c) + 16 + 4 * u) if u < 3 else ('a', 220 + 4 * c)
    if hh == 2: return ('a', Oreg(2 * u, c))
    return ('a', Oreg(2 * u + 1, c))
def xarea(k, c, own):
    if k < 2: return (vXo0 if own else vXp0), k * STAGE + c * 1024
    return (vXo2 if own else vXp2), c * 1024
def xrd(dst, k, c, own):
    a, o = xarea(k, c, own); return f"ds_read_b128 {rr(dst)}, v{a} offset:{o}"
def xwr(src, k, c):
    a, o = xarea(k, c, True); return f"ds_write_b128 v{a}, {rr(src)} offset:{o}"

class Period:
    def __init__(self): self.m = []; self.f = []; self.dma = []; self.addr = []

pool_ctr = [0]
def next_frag():
    r = POOL + 4 * (pool_ctr[0] % NPOOL); pool_ctr[0] += 1
    return r

def rpos(k0):
    p = k0 - LEAD + 1
    if k0 == 70: p -= 3
    if k0 == 75: p -= 5
    return p
def fwait(P, k0, r):
    P.f.append(W([f"v{r+i}" for i in range(4)], k0))
def rdK(P, k0, slot, kt, s):
    r = next_frag()
    P.f += at(mk(f"ds_read_b128 {vr(r)}, v{vA0} offset:{slot + kt*4096 + s*256}", tag='rd'), rpos(k0))
    fwait(P, k0, r)
    return r
def rdV(P, k0, slot, t):
    r = next_frag(); a = vA1 if t % 2 == 0 else vA2
    P.f += at(mk([f"ds_read_b64_tr_b16 {vr(r,2)}, v{a} offset:{slot + (t//2)*256}",
                  f"ds_read_b64_tr_b16 {vr(r+2,2)}, v{a} offset:{slot + (t//2)*256 + 4096}"], tag='rd'), rpos(k0), rpos(k0) + 2)
    fwait(P, k0, r)
    return r
def rdW(P, k0, slot, t):
    r = next_frag(); s, e = t // 2, t % 2
    P.f += at(mk([f"ds_read_b64_tr_b16 {vr(r,2)}, v{vA0} offset:{slot + s*256 + e*8}",
                  f"ds_read_b64_tr_b16 {vr(r+2,2)}, v{vA0} offset:{slot + s*256 + e*8 + 1024}"], tag='rd'), rpos(k0), rpos(k0) + 2)
    fwait(P, k0, r)
    return r

def grpQK(P, slot, par, kt, s, cinit):
    k0 = len(P.m); r = rdK(P, k0, slot, kt, s)
    for c in range(5):
        D = vr(Sreg(par, kt, c))
        C = D if s > 0 else ("0" if cinit == 'zero' else vr(Mreg(c)))
        P.m += mk(f"{MF} {D}, {vr(r)}, {ar(Qreg(s,c))}, {C}")
def grpPV(P, slot, par, t, first):
    k0 = len(P.m); r = rdV(P, k0, slot, t)
    for c in range(5):
        D = ar(Oreg(t, c))
        P.m += mk(f"{MF} {D}, {vr(r)}, {vr(Preg(par,c))}, {'0' if first else D}")

def softmax_ops(par, et=ET):
    ops = []; tc = [0]
    def tmp2():
        r = et + 2 * (tc[0] % 8); tc[0] += 1; return r
    pend = []
    for kt in range(2):
        for c in range(5):
            for h in range(2):
                e = tmp2(); s = Sreg(par, kt, c) + 2 * h
                cur = [f"v_exp_f32 v{e}, v{s}", f"v_exp_f32 v{e+1}, v{s+1}"]
                post = [f"v_cvt_pk_bf16_f32 v{Preg(par,c)+2*kt+h}, v{e}, v{e+1}"]
                if kt == 0 and h == 0:
                    post += [f"v_add_f32 v{Treg(c)}, v{e}, v{e+1}"]
                else:
                    post += [f"v_add_f32 v{Treg(c)}, v{Treg(c)}, v{e}", f"v_add_f32 v{Treg(c)}, v{Treg(c)}, v{e+1}"]
                ops += [cur[0]] + pend[:1] + [cur[1]] + pend[1:]
                pend = post
    ops += pend
    return ops

def cost(t):
    return 2.0 if t.startswith(('v_exp', 'v_rcp')) else 1.0
def spread(lines, p0, p1, tag=None):
    ins = mk(lines, tag=tag); tot = sum(cost(i.text) for i in ins); a = 0
    for i in ins:
        i.pos = p0 + (p1 - p0) * a / tot; a += cost(i.text)
    return ins

chk_ctr = [0]
def check_ops(par):
    return [f"v_max3_f32 v{TMP}, v{Treg(0)}, v{Treg(1)}, v{Treg(2)}",
            f"v_max3_f32 v{TMP}, v{TMP}, v{Treg(3)}, v{Treg(4)}",
            f"v_cmp_nge_f32 vcc, s{sTh}, v{TMP}",
            f"s_cbranch_vccnz RARE{par}_@",
            f"RET_@:"]
def ladd_ops(first=False):
    if first: return [f"v_mov_b32 v{Lreg(c)}, v{Treg(c)}" for c in range(5)]
    return [f"v_add_f32 v{Lreg(c)}, v{Lreg(c)}, v{Treg(c)}" for c in range(5)]

def colmax_ops(par, c, d, t2):
    s = Sreg(par, 0, c)
    return [f"v_max3_f32 v{d}, v{s}, v{s+1}, v{s+2}",
            f"v_max3_f32 v{t2}, v{s+3}, v{s+4}, v{s+5}",
            f"v_max3_f32 v{d}, v{d}, v{s+6}, v{s+7}",
            f"v_max_f32 v{d}, v{d}, v{t2}",
            f"v_mov_b32 v{t2}, v{d}",
            f"v_permlane16_swap_b32 v{d}, v{t2}",
            f"v_max_f32 v{d}, v{d}, v{t2}",
            f"v_mov_b32 v{t2}, v{d}",
            f"v_permlane32_swap_b32 v{d}, v{t2}",
            f"v_max_f32 v{d}, v{d}, v{t2}"]
def interleave(lists):
    out = []
    for i in range(max(len(l) for l in lists)):
        for l in lists:
            if i < len(l): out.append(l[i])
    return out

def dma_kv(slot, which):
    sd, si = (sK, sKi) if which == 'K' else (sV, sVi)
    t = sT0 if slot == SLOTA else sT1
    L = [f"s_add_u32 s{t}, s{sKVb}, s{si}",
         f"s_add_u32 s{si}, s{si}, 0x2000",
         f"s_and_b32 s{si}, s{si}, 0x1ffff",
         f"s_add_u32 m0, s{sWr}, {slot}" if slot else f"s_mov_b32 m0, s{sWr}"]
    D = [f"buffer_load_dwordx4 v{vDkv0 if j%2==0 else vDkv1}, {srd(sd)}, s{t} offen offset:{j*1024}{OPT['kvnt']} lds" for j in range(4)]
    return [L + D[:1]] + [[d] for d in D[1:]]
def dma_qp():
    G = []
    for slot in (SLOTA, SLOTB):
        L = [f"s_add_u32 m0, s{sWr}, {slot}" if slot else f"s_mov_b32 m0, s{sWr}"]
        if slot: L = [f"s_add_u32 s{sWo}, s{sWo}, 0x40000"] + L
        D = [f"buffer_load_dwordx4 v{vDw[j]}, {srd(sW)}, s{sWo} offen offset:{j*1024}{OPT['wnt']} lds" for j in range(4)]
        G += [L + D[:1]] + [[d] for d in D[1:]]
    G[-1] = G[-1] + [f"s_add_u32 s{sWo}, s{sWo}, 0x40000"]
    L = [f"s_add_u32 m0, s{sWr}, s{sMx}"]
    D = [f"buffer_load_dwordx4 v{vDx[j]}, {srd(sX)}, s{sXo} offen offset:{j*1024}{OPT['xnt']} lds" for j in range(4)]
    G += [L + D[:1]] + [[d] for d in D[1:]]
    G += [[f"s_add_u32 m0, m0, 0x1000", f"s_add_u32 s{sT0}, s{sXo}, 0x8000",
           f"buffer_load_dwordx4 v{vDx[0]}, {srd(sX)}, s{sT0} offen{OPT['xnt']} lds", f"s_add_u32 s{sXo}, s{sXo}, 128"]]
    return G
def next_round_ops():
    return [[f"s_add_u32 s{sKVb}, s{sKVb}, 0x100000",
             f"s_add_u32 s{sPb}, s{sPb}, 0x100000",
             f"s_sub_u32 s{sWo}, s{sWo}, {8*0x80000 - 8*256}",
             f"s_sub_u32 s{sXo}, s{sXo}, 1024"]]

def place_groups(G, slots, lo):
    out = []; prev = lo + 0.1
    for g, p in zip(G, slots):
        ins = mk(g); seen = False
        for q, i in enumerate(ins):
            if i.kind in MEMK: i.pos = p; seen = True
            else: i.pos = (p + 0.25) if seen else (p - 2.5)
            i.pos = max(i.pos, prev + 1.0 / 64); prev = i.pos
        out += ins
    return out

def pf_wx(newround):
    L = []
    if newround:
        L = [f"s_add_u32 s{sPFo}, s{sPFo}, s{sPFr}"]
    return [L + [f"buffer_load_dword v{vDum}, v{vPF}, {srd(sPF)}, s{sPFo} offen{OPT['wxpfnt']}", f"s_add_u32 s{sPFo}, s{sPFo}, s{sPFs}"]]
def pf_kv(first):
    L = [f"s_add_u32 s{sPj}, s{sRot}, {OPT['pfstart']}", f"s_and_b32 s{sPj}, s{sPj}, 0x1ffff"] if first else []
    if OPT['pfdma']:
        G = []
        for q in range(OPT['pfdma']):
            pre = (L + [f"s_add_u32 s{sT3}, s{sPb}, s{sPj}", f"s_add_u32 m0, s{sMx}, {3*STAGE - XOFF}"]) if q == 0 else []
            G.append(pre + [f"buffer_load_dwordx4 v{vSt}, {srd(sPK)}, s{sT3} offen{OPT['pfnt']} lds ; pf", f"s_add_u32 s{sT3}, s{sT3}, 1024"])
        G[-1] += [f"s_add_u32 s{sPj}, s{sPj}, {OPT['pfstep']}", f"s_and_b32 s{sPj}, s{sPj}, 0x1ffff"]
        return G
    return [L + [f"s_add_u32 s{sT3}, s{sPb}, s{sPj}", f"buffer_load_dword v{vDum}, v{vPK2}, {srd(sPK)}, s{sT3} offen{OPT['pfnt']}",
             f"s_add_u32 s{sPj}, s{sPj}, {OPT['pfstep']}", f"s_and_b32 s{sPj}, s{sPj}, 0x1ffff"]]

def addr_att(): return [f"v_add_u32 v{vA0}, s{sRd}, v{vKb}", f"v_add_u32 v{vA1}, s{sRd}, v{vV0b}", f"v_add_u32 v{vA2}, s{sRd}, v{vV1b}"]
def addr_qp(): return [f"v_add_u32 v{vA0}, s{sRd}, v{vWb}", f"v_add_u32 v{vA1}, s{sRd}, v{vXb}"]

def qfin_ops(s):
    ops = []
    for c in range(5):
        a = acc(2 * s, c)
        o = [f"v_mul_f32 v{a+i}, s{sC}, v{a+i}" for i in range(8)]
        o += [f"v_cvt_pk_bf16_f32 v{a+2*i}, v{a+2*i}, v{a+2*i+1}" for i in range(4)]
        o += [f"v_accvgpr_write_b32 a{Qreg(s,c)+i}, v{a+2*i}" for i in range(4)]
        ops += o
    return ops

def per_qp(m):
    P = Period(); P.addr = addr_qp()
    for ks in range(2):
        slot = SLOTA if ks == 0 else SLOTB
        k0 = len(P.m)
        xr = [XF + 4 * (ks * 5 + c) for c in range(5)]
        xl = mk([f"ds_read_b128 {ar(xr[c])}, v{vA1} offset:{c*2048 + ks*256}" for c in range(5)], tag='rd')
        xp = [-LEAD + 3, -LEAD + 4, -LEAD + 5, -LEAD + 8, -LEAD + 9] if ks == 0 else [3, 8, 13, 18, 23]
        for i, p in zip(xl, xp): i.pos = p
        P.f += xl
        P.f.append(W([f"a{xr[c]+i}" for c in range(5) for i in range(4)], k0 - 0.5))
        for t in range(8):
            k0 = len(P.m); r = rdW(P, k0, slot, t)
            for c in range(5):
                D = vr(acc(t, c))
                P.m += mk(f"{MF} {D}, {vr(r)}, {ar(xr[c])}, {'0' if (m == 0 and ks == 0) else D}")
    if m == 7:
        P.f += spread(qfin_ops(0), 53, 66)
        P.f += spread(qfin_ops(1), 66, 80)
    return P

def per_a0():
    P = Period(); P.addr = addr_att()
    for s in range(4):
        for kt in range(2): grpQK(P, SLOTB, 0, kt, s, 'zero')
    P.f += spread(qfin_ops(2), 0.5, 19.5)
    P.f += spread(qfin_ops(3), 19.6, 29.5)
    mx = interleave([colmax_ops(0, c, ET + 2 * c, ET + 2 * c + 1) +
                     [f"v_sub_f32 v{Mreg(c)+i}, 0, v{ET+2*c}" for i in range(4)] for c in range(5)])
    P.f += at(mk(mx), 40)
    for kt in range(2):
        for s in range(4): grpQK(P, SLOTA, 1, kt, s, 'negm')
    sub = [f"v_add_f32 v{Sreg(0,kt,c)+i}, v{Sreg(0,kt,c)+i}, v{Mreg(c)}" for kt in range(2) for c in range(5) for i in range(4)]
    P.f += spread(sub + softmax_ops(0) + ladd_ops(True), 40.5, 80)
    return P

def per_att(i):
    P = Period(); P.addr = addr_att()
    par = i % 2
    for g in range(8):
        grpPV(P, SLOTB, par ^ 1, g, i == 1)
        grpQK(P, SLOTA, par ^ 1, g // 4, g % 4, 'negm')
    P.f += spread(softmax_ops(par), 2.5, 78.5)
    P.f += at(mk(check_ops(par)), 80)
    P.f += at(mk(ladd_ops()), 80.5, 82.4)
    if OPT['pad']: P.f += spread([f"v_mov_b32 v247, v247"] * (OPT['pad'] // 4), 3, 78)
    return P

def rl_ops():
    L = []
    for c in range(5):
        d = Lreg(c); t2 = Treg(c)
        L.append([f"v_mov_b32 v{t2}, v{d}", f"v_permlane16_swap_b32 v{d}, v{t2}", f"v_add_f32 v{d}, v{d}, v{t2}",
                  f"v_mov_b32 v{t2}, v{d}", f"v_permlane32_swap_b32 v{d}, v{t2}", f"v_add_f32 v{d}, v{d}, v{t2}",
                  f"v_rcp_f32 v{vRl[c]}, v{d}"])
    return interleave(L)

def per_a15():
    P = Period(); P.addr = addr_att()
    for g in range(8): grpPV(P, SLOTB, 0, g, False)
    P.f += spread(softmax_ops(1), 2.5, 39.5)
    P.f += at(mk(check_ops(1)), 40)
    for g in range(8): grpPV(P, SLOTA, 1, g, False)
    P.f += spread(ladd_ops() + rl_ops(), 40.5, 62)
    return P

def epi_ops():
    out = []
    for u in range(4):
        for c in range(5):
            k = u * 5 + c
            o = []
            if k % 4 == 0:
                o += [f"s_add_u32 s{sT2}, s{sOo}, {k*1024}"]
            o += [f"v_accvgpr_read_b32 v{TMP+i}, a{Oreg(2*u + i//4, c) + i%4}" for i in range(8)]
            o += [f"v_mul_f32 v{TMP+i}, v{vRl[c]}, v{TMP+i}" for i in range(8)]
            o += [f"v_cvt_pk_bf16_f32 v{TMP+i}, v{TMP+2*i}, v{TMP+2*i+1}" for i in range(4)]
            o += [f"buffer_store_dwordx4 {vr(TMP)}, v{vSt}, {srd(sO)}, s{sT2} offen offset:{(k%4)*1024}{OPT['ont']}"]
            out.append(o)
    out[-1] += [f"s_add_u32 s{sOo}, s{sOo}, {8*20480}"]
    return out

def norm_ops(u, c, dst, xk=None):
    o = [f"v_accvgpr_read_b32 v{TMP+i}, a{Oreg(2*u + i//4, c) + i%4}" for i in range(8)]
    o += [f"v_mul_f32 v{TMP+i}, v{vRl[c]}, v{TMP+i}" for i in range(8)]
    pk = ET + 4 * ((u * 5 + c) % 4) if dst[0] == 'a' else dst[1]
    o += [f"v_cvt_pk_bf16_f32 v{pk+i}, v{TMP+2*i}, v{TMP+2*i+1}" for i in range(4)]
    if dst[0] == 'a': o += [f"v_accvgpr_write_b32 a{dst[1]+i}, v{pk+i}" for i in range(4)]
    return o

op_ctr = [0]
def op_frag():
    r = POOL + 4 * (op_ctr[0] % 6); op_ctr[0] += 1
    return r
def op_group(P, areg, o, t, hh, u, first):
    k0 = len(P.m); r = op_frag()
    P.f += at(mk([f"ds_read_b64_tr_b16 {vr(r,2)}, v{areg} offset:{o}",
                  f"ds_read_b64_tr_b16 {vr(r+2,2)}, v{areg} offset:{o + 2048}"], tag='rd'), rpos(k0), rpos(k0) + 2)
    fwait(P, k0, r)
    for c in range(5):
        D = vr(acc(t, c))
        P.m += mk(f"{MF} {D}, {vr(r)}, {rr(Bfrag(hh,u,c))}, {'0' if first else D}")
tokc = [0]
def pub_ops(sp, p0, p1):
    L = []
    for c in range(5):
        a = acc(2 * sp, c); pk = HOLD[tokc[0] % 3]; tokc[0] += 1
        L += [f"v_cvt_pk_bf16_f32 v{pk+i}, v{a+2*i}, v{a+2*i+1}" for i in range(4)]
        if c == 4: L += [f"s_add_u32 s{sPo}, s{sPo}, 4096"]
        L += [f"buffer_store_dwordx4 {vr(pk)}, v{vSt}, {srd(sO)}, s{sPo} offen offset:{(c%4)*1024} sc1"]
    L += [f"s_add_u32 s{sPo}, s{sPo}, 1024"]
    ins = spread(L, p0, p1)
    tok = f"tok{tokc[0]}"
    [i for i in ins if i.kind == 'vst'][-1].wr = [tok]
    return ins, tok
def dest_ops(i):
    if i is None:
        L = [f"s_lshr_b32 s{sT1}, s{sWv}, 1", f"s_add_u32 s{sT3}, s{sSig}, s{sT1}", f"s_add_u32 s{sT3}, s{sT3}, 1", f"s_and_b32 s{sT3}, s{sT3}, 7",
             f"s_mul_i32 s{sPo}, s{sT3}, 163840", f"s_add_u32 s{sPo}, s{sPo}, s{sMb}", f"s_lshl_b32 s{sT3}, s{sT3}, 11", f"s_add_u32 s{sT3}, s{sT3}, s{sFb}",
             f"s_lshl_b32 s{sTa}, s{sT1}, 8", f"s_add_u32 s{sT3}, s{sT3}, s{sTa}", f"s_mul_i32 s{sT1}, s{sT1}, 20480", f"s_add_u32 s{sPo}, s{sPo}, s{sT1}"]
    else:
        L = [f"s_add_u32 s{sT3}, s{sSig}, {1+i}", f"s_and_b32 s{sT3}, s{sT3}, 7", f"s_sub_u32 s{sT3}, s{sT3}, s{sSig}",
             f"s_mul_i32 s{sPo}, s{sT3}, 163840", f"s_add_u32 s{sPo}, s{sPo}, s{sCm}", f"s_add_u32 s{sPo}, s{sPo}, {i*20480}",
             f"s_lshl_b32 s{sT3}, s{sT3}, 11", f"s_add_u32 s{sT3}, s{sT3}, s{sCf}"]
    return L
def flag_ops(i, tok, pos):
    w = W([tok], pos - 1)
    if i is None: st = mk(f"buffer_store_dwordx2 {vr(vTag,2)}, v{vF0}, {srd(sO)}, s{sT3} offen sc1")
    else: st = mk(f"buffer_store_dword v{vTag}, v{vF0}, {srd(sO)}, s{sT3} offen offset:{i*256} sc1")
    st[0].rd = st[0].rd + [tok]; st[0].pos = pos
    return [w] + st
def per_ds0(hh, umajor=False):
    P = Period(); P.addr = [f"v_add_u32 v{vA0}, s{sRd}, v{vOb}"]
    order = [(u, t) for u in range(4) for t in range(4)] if umajor else [(u, 2 * sp + e) for sp in range(2) for u in range(4) for e in range(2)]
    for (u, t) in order:
        op_group(P, vA0, u * 4096 + (t // 2) * 256 + (t % 2) * 8, t, hh, u, hh == 0 and u == 0)
    if hh == 3:
        P.f += at(mk(dest_ops(None)), 20, 40)
        i0, _ = pub_ops(0, 45, 75); i1, tok = pub_ops(1, 85, 112)
        P.f += i0 + i1 + flag_ops(None, tok, 112 + round(80 * OPT['fd']))
    return P
def per_st(i, r):
    P = Period(); P.addr = [f"v_add_u32 v{vA0}, s{sRd}, v{vOb}", f"v_add_u32 v{vA1}, s{sPd}, v{vA0}"]
    for par in range(2):
        for u in range(4):
            for e in range(2):
                op_group(P, vA1 if par else vA0, u * 4096 + e * 8, 2 * (i % 2) + e, 2 * r + par, u, r == 0 and par == 0 and u == 0)
    if r == 1 and i < 7:
        P.f += at(mk(dest_ops(i)), 66, 80)
        ins, tok = pub_ops(i % 2, 84, 104)
        P.f += ins + flag_ops(i, tok, 104 + round(80 * (OPT['fd'] if i < 6 else OPT['fd6'])))
    return P
spins = []
def chk_ops(load, reg, cmpop, pos, tokname):
    k = len(spins); spins.append((load, cmpop))
    ins = mk([f"v_readfirstlane_b32 s{sSpin}, v{reg}", cmpop, f"s_cbranch_scc0 SPIN{k}", f"SRET{k}:"])
    ins[0].pos = pos - 2
    for x in ins[1:]: x.pos = pos
    ins[-1].wr = [tokname]
    return [W([f"v{reg}"], pos - 3)] + ins
def consume(i, pf, pc, pl, pv0, pv1, buf):
    B = {'M': MSG, '1': [acc(2, c) for c in range(5)], '0': [acc(0, c) for c in range(5)], '2': [acc(1, c) for c in range(5)]}[buf]
    fl = vFl if i % 2 == 0 else vFl2
    load = f"buffer_load_dword v{fl}, off, {srd(sO)}, s{sCf} offset:{i*256} sc1"
    F = at(mk(load), pf)
    F += chk_ops(load, fl, f"s_cmp_eq_u32 s{sSpin}, s{sTag}", pc, f"chk{i}")
    F += at(mk([f"s_add_u32 s{sT1}, s{sCm}, {i*20480 + 1024}"]), pl)
    ld = mk([f"buffer_load_dwordx4 {vr(B[c])}, v{vSt}, {srd(sO)}, s{sT1} offen offset:{(c-1)*1024} sc1" for c in range(1, 5)] +
            [f"s_sub_u32 s{sT1}, s{sT1}, 1024", f"buffer_load_dwordx4 {vr(B[0])}, v{vSt}, {srd(sO)}, s{sT1} offen sc1"])
    for q, x in enumerate(ld):
        x.pos = pl + 1 + 2 * q
        if x.kind == 'vld': x.rd = x.rd + [f"chk{i}"]
    F += ld
    V = []
    tail = pv0 >= 80 * 64
    for c in (1, 2, 3, 4, 0):
        for j in range(4):
            x = B[c] + j; r0, r1 = RREG[c * 8 + 2 * j], RREG[c * 8 + 2 * j + 1]; t = vT1
            if tail: r0, r1 = acc(2, c) + 2 * j, acc(2, c) + 2 * j + 1
            if i == 0: V += [f"v_lshlrev_b32 v{r0}, 16, v{x}", f"v_and_b32 v{r1}, s{sC}, v{x}"]
            else: V += [f"v_lshlrev_b32 v{t}, 16, v{x}", f"v_and_b32 v{x}, s{sC}, v{x}", f"v_add_f32 v{r0}, v{r0}, v{t}", f"v_add_f32 v{r1}, v{r1}, v{x}"]
    if not tail: F.append(W([f"v{B[0]}"], pv0 - 1))
    F += spread(V, pv0, pv1)
    return F

def dma_op(j):
    D = [f"buffer_load_dwordx4 v{vDx[i%4]}, {srd(sWoS)}, s{sOp if i < 4 else sT0} offen offset:{(i%4)*1024}{OPT['wnt']} lds" for i in range(8)]
    G = [[f"s_add_u32 m0, s{sWr}, s{sMw}", D[0]], [D[1]], [D[2]], [D[3]],
         [f"s_add_u32 m0, m0, 0x1000", f"s_add_u32 s{sT0}, s{sOp}, 0x8000", D[4]], [D[5]], [D[6]], [D[7]]]
    if j in (0, 2): adv = [f"s_add_u32 s{sOp}, s{sOp}, s{sOpd}"]
    elif j == 1: adv = [f"s_sub_u32 s{sOp}, s{sOp}, s{sOpd}", f"s_add_u32 s{sOp}, s{sOp}, 0x100000"]
    elif j % 2 == 0: adv = [f"s_add_u32 s{sOp}, s{sOp}, 0x100000"]
    else:
        i = (j + 1) // 2
        adv = [f"s_add_u32 s{sOp}, s{sSig}, {1+i}", f"s_and_b32 s{sOp}, s{sOp}, 7", f"s_lshl_b32 s{sOp}, s{sOp}, 7", f"s_add_u32 s{sOp}, s{sOp}, s{sOpB}"]
    G[-1] = G[-1] + adv
    return G

def build_k1():
    periods = []
    for r in range(2):
        for m in range(8): periods.append(per_qp(m))
        periods.append(per_a0())
        for i in range(1, 15): periods.append(per_att(i))
        periods.append(per_a15())
        assert pool_ctr[0] % NPOOL == 0
    for j in range(4): periods.append(per_ds0(j, umajor=(j in (1, 2))))
    for i in range(2, 8):
        for r in range(2): periods.append(per_st(i, r))
    def dma_for(n2):
        if n2 >= 64: return []
        if n2 >= 48: return dma_op(n2 - 48)
        j = n2 % 24
        if j < 8:
            G = dma_qp()
            if j == 0: G[0] = next_round_ops()[0] + G[0]
            return G
        if j == 8: return dma_kv(SLOTB, 'K') + dma_kv(SLOTA, 'K')
        if j == 23: return dma_kv(SLOTB, 'V') + dma_kv(SLOTA, 'V')
        return dma_kv(SLOTB, 'V') + dma_kv(SLOTA, 'K')
    M = []; F = []
    for n, P in enumerate(periods):
        base = 80 * n
        assert len(P.m) == 80
        M += P.m
        for i in P.f: i.pos = round(i.pos * 256) / 256.0 + base; F.append(i)
        b0 = base - LEAD
        pre = [f"s_add_u32 s{sWr}, s{sRd}, s{sMw}",
               f"s_add_u32 s{sRd}, s{sRd}, {STAGE}",
               f"s_cmp_eq_u32 s{sRd}, {3*STAGE}",
               f"s_cselect_b32 s{sRd}, 0, s{sRd}"] + P.addr
        pi = at(mk(pre), b0 - 5, b0 - 0.1); pi[3].pos = pi[2].pos
        F += pi
        if OPT['stamp']: F += at(mk("s_memtime s[50:51]"), b0 - 0.05)
        F += at(mk("s_barrier", tag='barwait'), b0)
        if OPT['stamp']: F += at(mk(["s_mov_b32 m0, s45", "s_add_u32 s45, s45, 1", "v_writelane_b32 v235, s50, m0"]), b0 + 0.01)
        G = dma_for(n + 2)
        j = n % 24
        wo = [int(x) for x in OPT['wopf'].split(',') if x != '']
        if n in wo:
            G = G + [[f"buffer_load_dword v{vDum}, v{vPK}, {srd(sWoS)}, s{sPb} offen{OPT['wopfnt']}", f"s_add_u32 s{sPb}, s{sPb}, 8192"]]
            if n == wo[0]: G[-1] = [f"s_mov_b32 s{sPb}, s{sPi}"] + G[-1]
        if not G: continue
        slots = [b0 + 4 + 5 * q for q in range(13)] if len(G) <= 13 else [b0 + 3 + 5 * (q // 2) + (q % 2) for q in range(26)]
        step = len(slots) / len(G)
        F += place_groups(G, [slots[int(gi * step)] for gi in range(len(G))], b0)
    def B0(n): return 80 * n - LEAD
    def mem_at(lines, p0, step=5):
        ins = mk(lines)
        for q, i in enumerate(ins): i.pos = p0 + step * q if isinstance(step, (int, float)) else step[q]
        return ins
    flat = [x for u in (2, 0, 1, 3) for c in range(5) for x in norm_ops(u, c, ('a', Oreg(2 * u, c)) if u < 3 else PK3[c])]
    F += spread(flat, 80 * 24 + 5, 80 * 30 - LEAD)
    for n, k in ((30, 2), (31, 0), (32, 1)):
        F += mem_at([xwr(('a', Oreg(2 * k, c)), k, c) for c in range(5)], B0(n) + 20, 5)
    rd47 = [xrd(Bfrag(0, u, c), u, c, True) for u in range(3) for c in range(5)]
    F += mem_at(rd47, 80 * 47 + 3, [80 * 47 + 3 + 5 * (q // 2) + (q % 2) for q in range(15)])
    rd47b = [xrd(Bfrag(1, u, c), u, c, False) for u in (2, 0) for c in range(5)]
    F += mem_at(rd47b, 0, [80 * 47 + 43 + 5 * (q // 3) + (q % 3) for q in range(10)])
    F.append(W([f"a{160+i}" for i in range(60)], 80 * 48 - 0.5))
    F += mem_at([xrd(Bfrag(1, 1, c), 1, c, False) for c in range(5)], 80 * 48 + 5)
    F += mem_at([xwr(PK3[c], 0, c) for c in range(5)], B0(48) + 5)
    nrm = lambda u: [x for c in range(5) for x in norm_ops(u, c, Bfrag(2, u, c))]
    F += spread(nrm(0), 80 * 47 + 63, 80 * 48 + 35)
    F += mem_at([xwr(Bfrag(2, 0, c), 2, c) for c in range(5)], 80 * 48 + 38, 4)
    F += spread(nrm(1), 80 * 48 + 35, 80 * 49 + 10)
    F += mem_at([xrd(Bfrag(1, 3, c), 0, c, False) for c in range(5)] + [xrd(Bfrag(3, 0, c), 2, c, False) for c in range(5)], B0(49) + 5)
    F += mem_at([xwr(Bfrag(2, 1, c), 1, c) for c in range(5)], 80 * 49 + 38, 4)
    F += spread(nrm(2), 80 * 49 + 10, 80 * 49 + 65)
    F += spread(nrm(3), 80 * 49 + 65, 80 * 50 + 35)
    F += mem_at([xrd(Bfrag(3, 1, c), 1, c, False) for c in range(5)] + [xwr(Bfrag(2, 2, c), 0, c) for c in range(5)], B0(50) + 5)
    F += mem_at([xwr(Bfrag(2, 3, c), 2, c) for c in range(5)], 80 * 50 + 38, 4)
    F += mem_at([xrd(Bfrag(3, 2, c), 0, c, False) for c in range(5)] + [xrd(Bfrag(3, 3, c), 2, c, False) for c in range(5)], 0,
                [B0(51) + 3 + 5 * (q // 3) + (q % 3) for q in range(10)])
    eload = f"buffer_load_dword v{vEp}, off, {srd(sDbg)}, s{sSpin2} sc1"
    el = at(mk(eload), 80 * 46 + 30)
    F += el
    F += chk_ops(eload, vEp, f"s_cmp_lg_u32 s{sSpin}, 0", 80 * 47 + 70, "chke")
    late = [f"s_mov_b32 s{sTag}, s{sSpin}", f"s_mov_b32 s{sC}, 0xffff0000"]
    li = at(mk(late), 80 * 47 + 70.5, 80 * 47 + 72); li[0].rd = li[0].rd + ["chke"]
    F += li
    lv = [f"v_mov_b32 v{vTag}, s{sTag}", f"v_mov_b32 v{vTag+1}, s{sTag}",
          f"v_min_u32 v{vF0}, 16, v{vSt}", f"v_lshlrev_b32 v{vF0}, 26, v{vF0}"]
    F += spread(lv, 80 * 50 + 40, 80 * 50 + 60)
    F += spread([f"v_and_b32 v{vOut}, 0xf0, v{vSt}", f"v_lshlrev_b32 v{vOut}, 7, v{vOut}", f"v_lshrrev_b32 v{vOut+1}, 8, v{vSt}", f"v_lshl_add_u32 v{vOut}, v{vOut+1}, 4, v{vOut}"], 80 * 63 + 50, 80 * 63 + 60)
    F += at(mk([f"s_lshr_b32 s{sT1}, s{sWv}, 1", f"s_lshl_b32 s{sT1}, s{sT1}, 8", f"v_add_u32 v{vOb}, s{sT1}, v{vOb}"]), 80 * 51 + 2, 80 * 51 + 10)
    T = lambda x: 80 * x
    for i, spec in enumerate(OPT['cs'].split(';')):
        q = spec.split(',')
        F += consume(i, *[round(T(float(x))) for x in q[:5]], q[5])
    F += spread([f"v_add_f32 v{acc(2,c)+j}, v{acc(2,c)+j}, v{RREG[c*8+j]}" for c in range(5) for j in range(8)], T(64.3), T(64.85))
    fin = []
    for c in range(5):
        a = acc(2, c)
        fin += [f"v_cvt_pk_bf16_f32 v{a+i}, v{a+2*i}, v{a+2*i+1}" for i in range(4)]
        fin += [f"buffer_store_dwordx4 {vr(a)}, v{vOut}, {srd(sOutS)}, s{sOutO} offen", f"s_add_u32 s{sOutO}, s{sOutO}, 32768"]
    F += spread(fin, T(66.1), T(67))
    dr = OPT['drop']
    if 'D' in dr: F = [i for i in F if i.kind != 'dma']
    if 'E' in dr: F = [i for i in F if i.kind != 'trans']
    if 'V' in dr: F = [i for i in F if not (i.kind == 'valu' and i.op in ('v_add_f32', 'v_cvt_pk_bf16_f32'))]
    if 'R' in dr: F = [i for i in F if i.kind != 'dsr']
    if 'S' in dr: F = [i for i in F if i.kind != 'vst']
    if 'C' in dr: F = [i for i in F if not (i.kind == 'branch' or i.kind == 'label')]
    for i in F:
        i.pos = round(i.pos * 256) / 256.0
        if i.kind == 'vld' and i.wr == [f"v{vDum}"]: i.wr = []
    seq = gap_schedule(M, F, OPT['early'], OPT['late']) if OPT['sched'] else merge_global(M, F)
    segs = [[]]
    for i in seq:
        if i.kind == 'barrier': segs.append([])
        segs[-1].append(i)
    return segs

def merge_global(M, F):
    fl = sorted(enumerate(F), key=lambda e: (e[1].pos, e[0]))
    out = []; j = 0
    for k, m in enumerate(M):
        while j < len(fl) and fl[j][1].pos <= k:
            out.append(fl[j][1]); j += 1
        out.append(m)
    out += [e[1] for e in fl[j:]]
    return out

def k1_setup():
    cexp = math.log2(math.e) / math.sqrt(128.0)
    n = OPT['cpf']
    CPF = "" if not n else f"""s_getpc_b64 s[62:63]
s_lshr_b32 s5, s2, 3
s_lshl_b32 s5, s5, 2
v_add_u32 v21, s5, v20
v_mul_u32_u24 v21, {n}, v21
v_min_u32 v22, {n-1}, v0
v_add_u32 v21, v21, v22
v_min_u32 v21, CODE_LINES, v21
v_lshlrev_b32 v21, 7, v21
global_load_dword v{vDum}, v21, s[62:63]"""
    A = mk(f"""
s_cmp_ge_u32 s2, 256
s_cbranch_scc1 K1_END
s_and_b32 s3, s2, 7
s_lshr_b32 s4, s3, 2
s_mul_i32 s4, s4, 40
s_add_u32 s6, s0, s4
s_addc_u32 s7, s1, 0
s_load_dwordx8 s[52:59], s[6:7], 0
s_load_dwordx2 s[60:61], s[0:1], 96
s_load_dwordx2 s[78:79], s[6:7], 32
s_load_dwordx2 s[{sOutS}:{sOutS+1}], s[0:1], 80
s_load_dwordx2 s[{sDbg}:{sDbg+1}], s[0:1], 88
s_memrealtime s[46:47]
v_lshrrev_b32 v20, 6, v0
v_and_b32 v0, 63, v0
v_readfirstlane_b32 s{sWv}, v20
{CPF}
v_lshrrev_b32 v20, 4, v0
v_bfe_u32 v21, v0, 2, 2
v_and_b32 v22, 3, v0
s_lshr_b32 s5, s2, 3
s_bfe_u32 s62, s3, 0x10001
s_and_b32 s63, s3, 1
s_lshr_b32 s71, s5, 2
s_lshl_b32 s62, s62, 3
s_add_u32 s64, s71, s62
s_and_b32 s4, s5, 3
s_lshl_b32 s65, s4, 1
s_lshl_b32 s63, s63, 4
s_add_u32 s63, s65, s63
s_lshr_b32 s66, s{sWv}, 1
s_and_b32 s67, s{sWv}, 1
s_add_u32 s65, s63, s66
s_lshl_b32 s{sMw}, s{sWv}, 12
s_lshl_b32 s{sMx}, s{sWv}, 10
s_add_u32 s{sMx}, s{sMx}, {XOFF}
s_lshl_b32 s{sWo}, s65, 8
s_lshl_b32 s68, s67, 17
s_add_u32 s{sWo}, s{sWo}, s68
s_mul_i32 s69, s64, 163840
s_mul_i32 s68, s{sWv}, 40960
s_add_u32 s{sXo}, s69, s68
v_lshlrev_b32 v25, 4, v22
v_lshl_add_u32 v25, v20, 6, v25
v_lshl_add_u32 v{vDkv0}, v21, 8, v25
v_xor_b32 v{vDkv1}, 32, v{vDkv0}
v_lshl_add_u32 v{vDw[0]}, v21, 13, v25
v_add_u32 v{vDw[1]}, {31744}, v{vDw[0]}
v_add_u32 v{vDw[2]}, {2*31744}, v{vDw[0]}
v_add_u32 v{vDw[3]}, {3*31744}, v{vDw[0]}
v_lshrrev_b32 v24, 5, v0
v_lshlrev_b32 v25, 1, v24
v_xor_b32 v25, v25, v22
v_lshlrev_b32 v25, 4, v25
v_and_b32 v23, 1, v20
v_lshl_add_u32 v25, v23, 6, v25
v_lshl_add_u32 v25, v21, 10, v25
v_lshl_add_u32 v{vDx[0]}, v24, 12, v25
v_add_u32 v{vDx[1]}, 7168, v{vDx[0]}
v_add_u32 v{vDx[2]}, {2*7168}, v{vDx[0]}
v_add_u32 v{vDx[3]}, {3*7168}, v{vDx[0]}
s_mov_b32 s{sX+2}, 2621440
s_mov_b32 s{sX+3}, 0x20000
s_mov_b32 s{sW+2}, 4194304
s_mov_b32 s{sW+3}, 0x20000
s_mov_b32 s{sWr}, s{sMw}
s_waitcnt lgkmcnt(0)
s_mov_b32 s{sX}, s52
s_mov_b32 s{sX+1}, s53
s_mov_b32 s{sW}, s58
s_mov_b32 s{sW+1}, s59
""")
    for i in A:
        if i.kind == 'vld': i.wr = []
    pf = []
    D0 = mk([x for g in dma_qp() for x in g])
    D1 = mk(f"s_add_u32 s{sWr}, s{sMw}, {STAGE}", tag='vmreset') + mk([x for g in dma_qp() for x in g])
    B = mk(f"""
s_mov_b32 s{sRd}, {2*STAGE}
s_lshl_b32 s68, s64, 5
s_add_u32 s68, s68, s65
s_lshl_b32 s{sPb}, s68, 17
s_lshl_b32 s68, s67, 12
s_add_u32 s{sKVb}, s{sPb}, s68
s_mul_i32 s{sKi}, s2, {OPT['rot']*0x2000*5}
s_lshr_b32 s68, s2, 4
s_mul_i32 s68, s68, {OPT['rot']*0x2000*3}
s_add_u32 s{sKi}, s{sKi}, s68
s_and_b32 s{sKi}, s{sKi}, 0x1ffff
s_mov_b32 s{sVi}, s{sKi}
s_lshr_b32 s68, s5, 2
s_lshr_b32 s4, s68, 2
s_lshl_b32 s4, s4, 20
s_and_b32 s68, s68, 3
s_lshl_b32 s68, s68, 16
s_add_u32 s4, s4, s68
s_lshl_b32 s68, s63, 17
s_add_u32 s4, s4, s68
s_lshl_b32 s68, s{sWv}, 14
s_add_u32 s{sPi}, s4, s68
s_lshr_b32 s62, s3, 2
s_lshl_b32 s68, s62, 4
s_add_u32 s68, s68, s64
s_lshl_b32 s{sSpin2}, s68, 3
s_mul_i32 s{sMb}, s68, {8*163840}
s_mul_i32 s4, s67, 10240
s_add_u32 s{sMb}, s{sMb}, s4
s_lshl_b32 s{sFb}, s68, 14
s_lshl_b32 s4, s67, 7
s_add_u32 s{sFb}, s{sFb}, s4
s_add_u32 s{sFb}, s{sFb}, {FLAGB}
s_and_b32 s68, s3, 1
s_lshl_b32 s68, s68, 2
s_and_b32 s4, s5, 3
s_add_u32 s{sSig}, s68, s4
s_mul_i32 s{sCm}, s{sSig}, 163840
s_add_u32 s{sCm}, s{sCm}, s{sMb}
s_mul_i32 s4, s66, 5120
s_add_u32 s{sCm}, s{sCm}, s4
s_lshl_b32 s{sCf}, s{sSig}, 11
s_add_u32 s{sCf}, s{sCf}, s{sFb}
s_lshl_b32 s4, s66, 2
s_add_u32 s{sCf}, s{sCf}, s4
s_lshl_b32 s4, s64, 1
s_add_u32 s4, s4, s67
s_mul_i32 s{sOutO}, s4, {80*2048}
s_lshl_b32 s4, s62, 10
s_add_u32 s{sOutO}, s{sOutO}, s4
s_lshl_b32 s4, s{sSig}, 7
s_add_u32 s{sOutO}, s{sOutO}, s4
s_lshl_b32 s4, s66, 6
s_add_u32 s{sOutO}, s{sOutO}, s4
s_lshl_b32 s{sOpB}, s65, 17
s_lshl_b32 s68, s67, 16
s_add_u32 s{sOpB}, s{sOpB}, s68
s_add_u32 s4, s{sSig}, s66
s_add_u32 s4, s4, 1
s_and_b32 s4, s4, 7
s_lshl_b32 s4, s4, 7
s_add_u32 s{sOp}, s{sOpB}, s4
s_lshl_b32 s68, s66, 18
s_sub_u32 s{sOpd}, 0x20000, s68
s_lshl_b32 s68, s66, 15
s_sub_u32 s{sPd}, 0x4000, s68
s_mov_b32 s{sC}, {f2h(cexp)}
s_mov_b32 s{sTh}, {f2h(OPT['thresh'])}
s_mov_b32 s{sRound}, 0
s_lshl_b32 s69, s66, 13
s_mul_i32 s70, s67, 10240
s_add_u32 s70, s70, {XOFF}
v_and_b32 v23, 1, v21
v_lshlrev_b32 v23, 1, v23
v_xor_b32 v23, v23, v20
v_lshlrev_b32 v23, 4, v23
v_lshl_add_u32 v23, v22, 6, v23
v_lshl_add_u32 v{vKb}, v21, 10, v23
v_add_u32 v{vKb}, s69, v{vKb}
v_lshl_add_u32 v{vXb}, v21, 9, v23
v_add_u32 v{vXb}, s70, v{vXb}
v_and_b32 v23, 1, v20
v_lshlrev_b32 v23, 5, v23
v_lshlrev_b32 v24, 3, v22
v_xor_b32 v23, v23, v24
v_lshl_add_u32 v23, v21, 6, v23
v_lshl_add_u32 v23, v20, 10, v23
v_add_u32 v{vV0b}, s69, v23
v_xor_b32 v{vV1b}, 32, v{vV0b}
v_lshlrev_b32 v23, 4, v22
v_lshl_add_u32 v23, v21, 6, v23
v_lshl_add_u32 v23, v20, 11, v23
v_add_u32 v{vWb}, s69, v23
v_lshlrev_b32 v{vSt}, 4, v0
v_lshlrev_b32 v{vPK}, 7, v0
v_and_b32 v23, 1, v20
v_lshlrev_b32 v23, 1, v23
v_xor_b32 v23, v23, v22
v_lshlrev_b32 v23, 4, v23
v_lshl_add_u32 v23, v21, 6, v23
v_lshl_add_u32 v23, v20, 9, v23
s_lshl_b32 s69, s66, 14
v_add_u32 v{vOb}, s69, v23
s_mul_i32 s69, s{sWv}, 5120
s_add_u32 s69, s69, {XOFF}
v_add_u32 v{vXo0}, s69, v{vSt}
v_add_u32 v{vXo2}, {2*STAGE}, v{vXo0}
s_xor_b32 s69, s{sWv}, 2
s_mul_i32 s69, s69, 5120
s_add_u32 s69, s69, {XOFF}
v_add_u32 v{vXp0}, s69, v{vSt}
v_add_u32 v{vXp2}, {2*STAGE}, v{vXp0}
s_mov_b32 s{sWoS}, s78
s_mov_b32 s{sWoS+1}, s79
s_mov_b32 s{sWoS+2}, 4194304
s_mov_b32 s{sWoS+3}, 0x20000
s_mov_b32 s{sK}, s54
s_mov_b32 s{sK+1}, s55
s_mov_b32 s{sK+2}, 67108864
s_mov_b32 s{sK+3}, 0x20000
s_mov_b32 s{sV}, s56
s_mov_b32 s{sV+1}, s57
s_mov_b32 s{sV+2}, 67108864
s_mov_b32 s{sV+3}, 0x20000
s_mov_b32 s{sO}, s60
s_mov_b32 s{sO+1}, s61
s_mov_b32 s{sO+2}, {FLAGB + 524288}
s_mov_b32 s{sO+3}, 0x20000
s_mov_b32 s{sOutS+2}, 5242880
s_mov_b32 s{sOutS+3}, 0x20000
s_mov_b32 s{sDbg+2}, 256
s_mov_b32 s{sDbg+3}, 0x20000
s_add_u32 s4, s{sSig}, s{sWv}
s_cmp_lg_u32 s4, 0
s_cbranch_scc1 K1_NOEP
s_or_b32 s4, s46, 1
v_mov_b32 v24, s4
v_lshlrev_b32 v25, 20, v0
buffer_store_dword v24, v25, {srd(sDbg)}, s{sSpin2} offen sc1 ; nc
K1_NOEP:
""")
    return A + pf + D0 + D1 + B

def rare(par):
    L = [f"RARE{par}:", "s_nop 15"]
    d, t2, f = TMP, TMP + 1, TMP + 2
    for c in range(5):
        L += colmax_ops(par, c, d, t2)
        L += [f"v_max_f32 v{d}, 0, v{d}", f"v_exp_f32 v{f}, -v{d}"]
        L += [f"v_sub_f32 v{Mreg(c)+i}, v{Mreg(c)+i}, v{d}" for i in range(4)]
        L += [f"v_sub_f32 v{blk(c)+i}, v{blk(c)+i}, v{d}" for i in range(16)]
        L += [f"v_mul_f32 v{Lreg(c)}, v{Lreg(c)}, v{f}"]
        for t in range(8):
            L += [f"v_accvgpr_read_b32 v{TMP+4+i}, a{Oreg(t,c)+i}" for i in range(4)]
            L += [f"v_mul_f32 v{TMP+4+i}, v{TMP+4+i}, v{f}" for i in range(4)]
            L += [f"v_accvgpr_write_b32 a{Oreg(t,c)+i}, v{TMP+4+i}" for i in range(4)]
    L += softmax_ops(par)
    L += ["s_nop 3", f"s_setpc_b64 s[{sRet}:{sRet+1}]"]
    seq = mk(L); analyze_trace(seq)
    return seq

def segtext(s): return "\n".join(i.text for i in s)

def emit_k1():
    segs = build_k1()
    pre = segs[0]; S = segs[1:]
    assert len(S) == 64
    T = [segtext(s) for s in S]
    k1 = 20
    while k1 < 24 and T[k1] == T[k1 + 24]: k1 += 1
    k0 = 20
    while k0 > 0 and T[k0 - 1] == T[k0 - 1 + 24]: k0 -= 1
    prog = []; trace = []
    lab = [0]; stubs = []
    def fixlabels(seq):
        for i in seq:
            if '@' in i.text:
                if i.kind == 'branch':
                    lab[0] += 1
                    tgt = i.text.split()[1].split('_')[0]
                    stubs.append((tgt, lab[0]))
                i.text = i.text.replace('@', str(lab[0]))
    def fold(lo, hi):
        p = []; t = []; k = lo
        while k < hi:
            done = False
            for L in (1, 2, 4):
                n = 1
                while k + (n + 1) * L <= hi and all(T[k + j] == T[k + n * L + j] for j in range(L)): n += 1
                if n >= 2:
                    body = [i for j in range(L) for i in S[k + j]]
                    fixlabels(body)
                    lab[0] += 1; ln = f"LP{lab[0]}"
                    init = mk(f"s_mov_b32 s{sCnt}, {n}")
                    tail = mk([f"s_sub_u32 s{sCnt}, s{sCnt}, 1", f"s_cmp_lg_u32 s{sCnt}, 0", f"s_cbranch_scc1 {ln}"])
                    p += init + mk(ln + ":") + body + tail
                    t += init + (body + tail) * min(n, 3)
                    print(f"  loop segs {k}..{k+n*L-1} L={L} n={n}", file=sys.stderr)
                    k += n * L; done = True; break
            if not done:
                fixlabels(S[k]); p += S[k]; t += S[k]; k += 1
        return p, t
    setup = k1_setup()
    p1, t1 = fold(0, k0)
    p2, t2 = fold(k0, k1)
    p3, t3 = fold(k1, 24 + k0)
    p4, t4 = fold(24 + k1, 64)
    br = mk([f"s_cmp_lg_u32 s{sRound}, 0", "s_cbranch_scc1 K1_FINAL"])
    back = mk([f"s_mov_b32 s{sRound}, 1", "s_branch K1_OUTER"])
    if OPT['stamp']:
        st0 = mk(["s_memtime s[72:73]", "s_memrealtime s[74:75]", "s_mov_b32 s45, 0", "v_mov_b32 v235, 0", "v_mov_b32 v246, 0"])
        setup = setup[:2] + st0 + setup[2:]
        st1 = mk(["s_memtime s[50:51]", "s_waitcnt lgkmcnt(0)", "v_writelane_b32 v246, s50, 0", "s_waitcnt vmcnt(0)", "s_memtime s[50:51]", "s_memrealtime s[76:77]", "s_waitcnt lgkmcnt(0)",
                  "v_writelane_b32 v246, s50, 1", "v_writelane_b32 v246, s72, 60", "v_writelane_b32 v246, s74, 61", "v_writelane_b32 v246, s76, 62",
                  f"s_lshl_b32 s50, s2, 2", f"s_add_u32 s50, s50, s{sWv}", "s_lshl_b32 s50, s50, 9", f"s_add_u32 s50, s50, {48<<20}",
                  f"v_lshrrev_b32 v245, 2, v{vSt}", f"s_mov_b32 s{sO+2}, {64<<20}",
                  f"buffer_store_dword v235, v245, {srd(sO)}, s50 offen", f"buffer_store_dword v246, v245, {srd(sO)}, s50 offen offset:256"])
        if OPT['dbg']:
            L = ["s_memtime s[50:51]", "s_memrealtime s[76:77]", "s_waitcnt lgkmcnt(0)",
                 "s_sub_u32 s50, s50, s72", "s_sub_u32 s76, s76, s74", "v_writelane_b32 v246, s50, 14", "v_writelane_b32 v246, s76, 15"]
            for q, ln in enumerate([0, 1, 4, 8, 9, 16, 24, 32, 33, 40, 48, 52, 56, 63]):
                L += [f"v_readlane_b32 s50, v235, {ln}", "s_nop 3", "s_sub_u32 s50, s50, s72", f"v_writelane_b32 v246, s50, {q}"]
            L += [f"s_lshl_b32 s50, s2, 2", f"s_add_u32 s50, s50, s{sWv}", f"s_cmp_lg_u32 s50, {OPT['dbg']-1}", "s_cbranch_scc1 K1_END",
                  f"s_mov_b32 s{sO+2}, {64<<20}", f"s_mov_b32 s50, {48<<20}",
                  f"v_lshrrev_b32 v245, 2, v{vSt}", f"buffer_store_dword v246, v245, {srd(sO)}, s50 offen"]
            st1 = mk(L)
        p4 += st1; t4 += st1
    prog = setup + pre + p1 + mk("K1_OUTER:") + p2 + br + p3 + back + mk("K1_FINAL:") + p4 + mk(["K1_END:", "s_endpgm"])
    trace = setup + pre + t1 + t2 + br + t3 + back + t2 + br + t4
    analyze_trace(trace)
    out = emit(prog) + "\n"
    for tgt, n in stubs:
        out += f"{tgt}_{n}:\n  s_call_b64 s[{sRet}:{sRet+1}], {tgt}\n  s_branch RET_{n}\n"
    for k, (load, cmpop) in enumerate(spins):
        reg = load.split()[1].rstrip(',')
        out += f"""SPIN{k}:
  s_mov_b32 s{sSc}, 0
SPINL{k}:
  s_sleep 2
  {load}
  s_add_u32 s{sSc}, s{sSc}, 1
  s_waitcnt vmcnt(0)
  v_readfirstlane_b32 s{sSpin}, {reg}
  s_cmp_gt_u32 s{sSc}, 0x8000
  s_cbranch_scc1 SRET{k}
  {cmpop}
  s_cbranch_scc0 SPINL{k}
  s_branch SRET{k}
"""
    out += emit(rare(0)) + "\n" + emit(rare(1)) + "\n"
    print(f"  k0={k0} k1={k1}", file=sys.stderr)
    print("  model cycles/seg:", [model_cycles(x) for x in S], file=sys.stderr)
    return out

def kd(name, vg=512, acc=256):
    return f""".amdhsa_kernel {name}
  .amdhsa_next_free_vgpr {vg}
  .amdhsa_next_free_sgpr 102
  .amdhsa_accum_offset {acc}
  .amdhsa_group_segment_fixed_size 0
  .amdhsa_kernarg_size 104
  .amdhsa_user_sgpr_count 2
  .amdhsa_user_sgpr_kernarg_segment_ptr 1
  .amdhsa_system_sgpr_workgroup_id_x 1
.end_amdhsa_kernel
"""

K1 = NAME + "_kernel"
hdr = open("cdna_kernels/" + NAME + ".s.ref").read().split("; Override launch")[0]
o = hdr
o += f"; @launch grid=(256,1,1) block=(256,1,1) lds={3*STAGE}\n"
o += '.amdgcn_target "amdgcn-amd-amdhsa--gfx950"\n.text\n'
o += f".globl {K1}\n.p2align 8\n.type {K1},@function\n{K1}:\n" + emit_k1()
o += '.section .rodata,"a"\n.p2align 6\n' + kd(K1)
import subprocess, re
if "CODE_LINES" in o:
    open("_g.s", "w").write(o.replace("CODE_LINES", "0x100"))
    subprocess.run(["clang", "-x", "assembler", "-target", "amdgcn-amd-amdhsa", "-mcpu=gfx950", "-c", "_g.s", "-o", "_g.o"], check=True)
    t = subprocess.run(["llvm-objdump", "-t", "_g.o"], capture_output=True, text=True).stdout
    end = int([l for l in t.split("\n") if l.endswith(" K1_END")][0].split()[0], 16)
    print("  K1 main code bytes", end, file=sys.stderr)
    o = o.replace("CODE_LINES", hex(end // 128))
open(sys.argv[1], "w").write(o)
```

```python
import sys, struct, math
from asmlib import *

NAME = "concat_heads__gqa_block_cached__mha_block_cached__near_ridge"
OPT = dict(qrot0=0, qrot1=1, orot=1, wont='', d1late=1, fd=1.2, fd6=0.5, cs='55.2,56.0,56.05,57.1,57.5,M;55.3,56.1,56.45,57.5,57.97,1;57.2,58.0,58.05,59.2,59.9,M;59.2,60.0,60.05,61.2,61.9,M;61.2,62.0,62.05,63.1,63.8,M;62.9,63.5,63.55,64.9,65.4,0;63.6,64.05,64.1,65.5,66.0,2', pfdma=0, pfl=32, pfstep=0x4000, pfstart=0x4000, pad=0, cpf=5, dbg=0, trickle=1, wopf='', wopfnt='', play=1, lead=15, kvpf='', wxpf=0, pfd=2, sched=1, early=3.0, late=2.0, k2pf=3, pfnt=' nt', wxpfnt='', kvnt=" nt", ont=" nt", rot=1, k2ont=" nt", epi_periods=5, thresh=1024.0, k1only=0, k2only=0, stamp=0, stamp2=0, k2wnt='', k2depth=3, k2drop='', drop='', wnt='', xnt='')
for kv in sys.argv[2:]:
    k, v = kv.split("="); OPT[k] = v.replace("_", " ") if isinstance(OPT[k], str) else (int(v, 0) if isinstance(OPT[k], int) else float(v))
LEAD = OPT['lead']
def f2h(x): return "0x%08x" % struct.unpack("<I", struct.pack("<f", x))[0]
MF = "v_mfma_f32_16x16x32_bf16"
def vr(b, n=4): return f"v[{b}:{b+n-1}]"
def ar(b, n=4): return f"a[{b}:{b+n-1}]"

STAGE = 53248; SLOTA = 0; SLOTB = 16384; XOFF = 32768
sX, sW, sK, sV, sO = 8, 12, 16, 20, 24
sWv, sRd, sWr, sMw, sMx = 28, 29, 30, 31, 32
sKVb, sKi, sVi, sWo, sXo, sOo = 33, 34, 35, 36, 37, 38
sT0, sT1, sC, sTh, sCnt, sRound = 39, 40, 41, 42, 43, 44
sRet = 46
sT2, sT3 = 48, 49
def srd(b): return f"s[{b}:{b+3}]"
vKb, vV0b, vV1b, vWb, vXb = 1, 2, 3, 4, 5
vA0, vA1, vA2 = 6, 7, 8
vDkv0, vDkv1 = 9, 10
vDw = [11, 12, 13, 14]
vDx = [15, 16, 17, 18]
vSt = 19
vRl = [20, 21, 22, 23, 0]
BLK = 24
def blk(c): return BLK + 32 * c
def acc(t, c): return blk(c) + 4 * t
def Sreg(par, kt, c): return blk(c) + 8 * par + 4 * kt
def Preg(par, c): return blk(c) + 16 + 4 * par
def Mreg(c): return blk(c) + 24
def Lreg(c): return blk(c) + 28
def Treg(c): return blk(c) + 29
POOL = 184
NPOOL = 8
XF = 200
TMP = 248
ET = 216
vPF, vPK, vDum, vStamp = 232, 233, 234, 235
sPF, sPK = 80, 84
sPFo, sPFs, sPFr, sPb, sPi, sRot = 88, 89, 90, 91, 92, 93
def Oreg(t, c): return (t * 5 + c) * 4
def Qreg(s, c): return 160 + (s * 5 + c) * 4

vXo0, vXo2, vXp0, vXp2 = 236, 237, 238, 239
vPK2 = 247; sPj = 48
vOb = 244
PK3 = [('a', 240), ('a', 244), ('a', 248), ('a', 252), ('v', 240)]
sWoS = 96 - 28
sOp, sOpd, sPo = 94, 95, 38
MSG = [blk(c) + 28 for c in range(5)]
HOLD = [ET, ET + 4, ET + 8]
vTag, vFl, vF0, vT1, vFl2 = 208, 210, 211, 213, 214
vOut = 15; vEp = 232
RREG = list(range(ET + 12, ET + 16)) + list(range(TMP, TMP + 8)) + [232, 233, 234, 236, 237, 238, 239, 245, 247, 215, 212] + \
       [1, 2, 3, 4, 5, 8, 9, 10, 11, 12, 13, 14, 20, 21, 22, 23, 0]
assert len(set(RREG)) == 40
sOutS, sDbg = 80, 84
sSig, sMb, sFb, sCm, sCf, sTag, sOutO, sSpin, sSpin2, sOpB, sPd = 88, 89, 90, 93, 48, 96, 97, 98, 99, 100, 101
sTa, sSc = 4, 5
sXb, sXc, sQr = 6, 7, 3
FLAGB = 41943040
def rr(f): return f"{f[0]}[{f[1]}:{f[1]+3}]"
def Bfrag(hh, u, c):
    if hh == 0: return ('a', 160 + (u * 5 + c) * 4) if u < 3 else PK3[c]
    if hh == 1: return ('v', blk(c) + 16 + 4 * u) if u < 3 else ('a', 220 + 4 * c)
    if hh == 2: return ('a', Oreg(2 * u, c))
    return ('a', Oreg(2 * u + 1, c))
def xarea(k, c, own):
    if k < 2: return (vXo0 if own else vXp0), k * STAGE + c * 1024
    return (vXo2 if own else vXp2), c * 1024
def xrd(dst, k, c, own):
    a, o = xarea(k, c, own); return f"ds_read_b128 {rr(dst)}, v{a} offset:{o}"
def xwr(src, k, c):
    a, o = xarea(k, c, True); return f"ds_write_b128 v{a}, {rr(src)} offset:{o}"

class Period:
    def __init__(self): self.m = []; self.f = []; self.dma = []; self.addr = []

pool_ctr = [0]
def next_frag():
    r = POOL + 4 * (pool_ctr[0] % NPOOL); pool_ctr[0] += 1
    return r

def rpos(k0):
    p = k0 - LEAD + 1
    if k0 == 70: p -= 3
    if k0 == 75: p -= 5
    return p
def fwait(P, k0, r):
    P.f.append(W([f"v{r+i}" for i in range(4)], k0))
def rdK(P, k0, slot, kt, s):
    r = next_frag()
    P.f += at(mk(f"ds_read_b128 {vr(r)}, v{vA0} offset:{slot + kt*4096 + s*256}", tag='rd'), rpos(k0))
    fwait(P, k0, r)
    return r
def rdV(P, k0, slot, t):
    r = next_frag(); a = vA1 if t % 2 == 0 else vA2
    P.f += at(mk([f"ds_read_b64_tr_b16 {vr(r,2)}, v{a} offset:{slot + (t//2)*256}",
                  f"ds_read_b64_tr_b16 {vr(r+2,2)}, v{a} offset:{slot + (t//2)*256 + 4096}"], tag='rd'), rpos(k0), rpos(k0) + 2)
    fwait(P, k0, r)
    return r
def rdW(P, k0, slot, t):
    r = next_frag(); s, e = t // 2, t % 2
    P.f += at(mk([f"ds_read_b64_tr_b16 {vr(r,2)}, v{vA0} offset:{slot + s*256 + e*8}",
                  f"ds_read_b64_tr_b16 {vr(r+2,2)}, v{vA0} offset:{slot + s*256 + e*8 + 1024}"], tag='rd'), rpos(k0), rpos(k0) + 2)
    fwait(P, k0, r)
    return r

def grpQK(P, slot, par, kt, s, cinit):
    k0 = len(P.m); r = rdK(P, k0, slot, kt, s)
    for c in range(5):
        D = vr(Sreg(par, kt, c))
        C = D if s > 0 else ("0" if cinit == 'zero' else vr(Mreg(c)))
        P.m += mk(f"{MF} {D}, {vr(r)}, {ar(Qreg(s,c))}, {C}")
def grpPV(P, slot, par, t, first):
    k0 = len(P.m); r = rdV(P, k0, slot, t)
    for c in range(5):
        D = ar(Oreg(t, c))
        P.m += mk(f"{MF} {D}, {vr(r)}, {vr(Preg(par,c))}, {'0' if first else D}")

def softmax_ops(par, et=ET):
    ops = []; tc = [0]
    def tmp2():
        r = et + 2 * (tc[0] % 8); tc[0] += 1; return r
    pend = []
    for kt in range(2):
        for c in range(5):
            for h in range(2):
                e = tmp2(); s = Sreg(par, kt, c) + 2 * h
                cur = [f"v_exp_f32 v{e}, v{s}", f"v_exp_f32 v{e+1}, v{s+1}"]
                post = [f"v_cvt_pk_bf16_f32 v{Preg(par,c)+2*kt+h}, v{e}, v{e+1}"]
                if kt == 0 and h == 0:
                    post += [f"v_add_f32 v{Treg(c)}, v{e}, v{e+1}"]
                else:
                    post += [f"v_add_f32 v{Treg(c)}, v{Treg(c)}, v{e}", f"v_add_f32 v{Treg(c)}, v{Treg(c)}, v{e+1}"]
                ops += [cur[0]] + pend[:1] + [cur[1]] + pend[1:]
                pend = post
    ops += pend
    return ops

def cost(t):
    return 2.0 if t.startswith(('v_exp', 'v_rcp')) else 1.0
def spread(lines, p0, p1, tag=None):
    ins = mk(lines, tag=tag); tot = sum(cost(i.text) for i in ins); a = 0
    for i in ins:
        i.pos = p0 + (p1 - p0) * a / tot; a += cost(i.text)
    return ins

chk_ctr = [0]
def check_ops(par):
    return [f"v_max3_f32 v{TMP}, v{Treg(0)}, v{Treg(1)}, v{Treg(2)}",
            f"v_max3_f32 v{TMP}, v{TMP}, v{Treg(3)}, v{Treg(4)}",
            f"v_cmp_nge_f32 vcc, s{sTh}, v{TMP}",
            f"s_cbranch_vccnz RARE{par}_@",
            f"RET_@:"]
def ladd_ops(first=False):
    if first: return [f"v_mov_b32 v{Lreg(c)}, v{Treg(c)}" for c in range(5)]
    return [f"v_add_f32 v{Lreg(c)}, v{Lreg(c)}, v{Treg(c)}" for c in range(5)]

def colmax_ops(par, c, d, t2):
    s = Sreg(par, 0, c)
    return [f"v_max3_f32 v{d}, v{s}, v{s+1}, v{s+2}",
            f"v_max3_f32 v{t2}, v{s+3}, v{s+4}, v{s+5}",
            f"v_max3_f32 v{d}, v{d}, v{s+6}, v{s+7}",
            f"v_max_f32 v{d}, v{d}, v{t2}",
            f"v_mov_b32 v{t2}, v{d}",
            f"v_permlane16_swap_b32 v{d}, v{t2}",
            f"v_max_f32 v{d}, v{d}, v{t2}",
            f"v_mov_b32 v{t2}, v{d}",
            f"v_permlane32_swap_b32 v{d}, v{t2}",
            f"v_max_f32 v{d}, v{d}, v{t2}"]
def interleave(lists):
    out = []
    for i in range(max(len(l) for l in lists)):
        for l in lists:
            if i < len(l): out.append(l[i])
    return out

def dma_kv(slot, which):
    sd, si = (sK, sKi) if which == 'K' else (sV, sVi)
    t = sT0 if slot == SLOTA else sT1
    L = [f"s_add_u32 s{t}, s{sKVb}, s{si}",
         f"s_add_u32 s{si}, s{si}, 0x2000",
         f"s_and_b32 s{si}, s{si}, 0x1ffff",
         f"s_add_u32 m0, s{sWr}, {slot}" if slot else f"s_mov_b32 m0, s{sWr}"]
    D = [f"buffer_load_dwordx4 v{vDkv0 if j%2==0 else vDkv1}, {srd(sd)}, s{t} offen offset:{j*1024}{OPT['kvnt']} lds" for j in range(4)]
    return [L + D[:1]] + [[d] for d in D[1:]]
def dma_qp():
    G = []
    for slot in (SLOTA, SLOTB):
        L = [f"s_add_u32 m0, s{sWr}, {slot}" if slot else f"s_mov_b32 m0, s{sWr}"]
        if slot: L = [f"s_add_u32 s{sWo}, s{sWo}, 0x40000"] + L
        D = [f"buffer_load_dwordx4 v{vDw[j]}, {srd(sW)}, s{sWo} offen offset:{j*1024}{OPT['wnt']} lds" for j in range(4)]
        G += [L + D[:1]] + [[d] for d in D[1:]]
    G[-1] = G[-1] + [f"s_add_u32 s{sWo}, s{sWo}, 0x40000", f"s_and_b32 s{sWo}, s{sWo}, 0x3fffff"]
    L = [f"s_add_u32 s{sXo}, s{sXb}, s{sXc}", f"s_add_u32 m0, s{sWr}, s{sMx}"]
    D = [f"buffer_load_dwordx4 v{vDx[j]}, {srd(sX)}, s{sXo} offen offset:{j*1024}{OPT['xnt']} lds" for j in range(4)]
    G += [L + D[:1]] + [[d] for d in D[1:]]
    G += [[f"s_add_u32 m0, m0, 0x1000", f"s_add_u32 s{sT0}, s{sXo}, 0x8000",
           f"buffer_load_dwordx4 v{vDx[0]}, {srd(sX)}, s{sT0} offen{OPT['xnt']} lds", f"s_add_u32 s{sXc}, s{sXc}, 128", f"s_and_b32 s{sXc}, s{sXc}, 0x3ff"]]
    return G
def next_round_ops():
    return [[f"s_add_u32 s{sKVb}, s{sKVb}, 0x100000",
             f"s_add_u32 s{sWo}, s{sWo}, 2048"] + (rot_ops() if OPT['qrot1'] != OPT['qrot0'] else [])]
def rot_ops():
    return [f"s_lshl_b32 s{sT0}, s{sQr}, 19", f"s_add_u32 s{sWo}, s{sWo}, s{sT0}", f"s_lshl_b32 s{sXc}, s{sQr}, 7"]

def place_groups(G, slots, lo):
    out = []; prev = lo + 0.1
    for g, p in zip(G, slots):
        ins = mk(g); seen = False
        for q, i in enumerate(ins):
            if i.kind in MEMK: i.pos = p; seen = True
            else: i.pos = (p + 0.25) if seen else (p - 2.5)
            i.pos = max(i.pos, prev + 1.0 / 64); prev = i.pos
        out += ins
    return out

def pf_wx(newround):
    L = []
    if newround:
        L = [f"s_add_u32 s{sPFo}, s{sPFo}, s{sPFr}"]
    return [L + [f"buffer_load_dword v{vDum}, v{vPF}, {srd(sPF)}, s{sPFo} offen{OPT['wxpfnt']}", f"s_add_u32 s{sPFo}, s{sPFo}, s{sPFs}"]]
def pf_kv(first):
    L = [f"s_add_u32 s{sPj}, s{sRot}, {OPT['pfstart']}", f"s_and_b32 s{sPj}, s{sPj}, 0x1ffff"] if first else []
    if OPT['pfdma']:
        G = []
        for q in range(OPT['pfdma']):
            pre = (L + [f"s_add_u32 s{sT3}, s{sPb}, s{sPj}", f"s_add_u32 m0, s{sMx}, {3*STAGE - XOFF}"]) if q == 0 else []
            G.append(pre + [f"buffer_load_dwordx4 v{vSt}, {srd(sPK)}, s{sT3} offen{OPT['pfnt']} lds ; pf", f"s_add_u32 s{sT3}, s{sT3}, 1024"])
        G[-1] += [f"s_add_u32 s{sPj}, s{sPj}, {OPT['pfstep']}", f"s_and_b32 s{sPj}, s{sPj}, 0x1ffff"]
        return G
    return [L + [f"s_add_u32 s{sT3}, s{sPb}, s{sPj}", f"buffer_load_dword v{vDum}, v{vPK2}, {srd(sPK)}, s{sT3} offen{OPT['pfnt']}",
             f"s_add_u32 s{sPj}, s{sPj}, {OPT['pfstep']}", f"s_and_b32 s{sPj}, s{sPj}, 0x1ffff"]]

def addr_att(): return [f"v_add_u32 v{vA0}, s{sRd}, v{vKb}", f"v_add_u32 v{vA1}, s{sRd}, v{vV0b}", f"v_add_u32 v{vA2}, s{sRd}, v{vV1b}"]
def addr_qp(): return [f"v_add_u32 v{vA0}, s{sRd}, v{vWb}", f"v_add_u32 v{vA1}, s{sRd}, v{vXb}"]

def qfin_ops(s):
    ops = []
    for c in range(5):
        a = acc(2 * s, c)
        o = [f"v_mul_f32 v{a+i}, s{sC}, v{a+i}" for i in range(8)]
        o += [f"v_cvt_pk_bf16_f32 v{a+2*i}, v{a+2*i}, v{a+2*i+1}" for i in range(4)]
        o += [f"v_accvgpr_write_b32 a{Qreg(s,c)+i}, v{a+2*i}" for i in range(4)]
        ops += o
    return ops

def per_qp(m):
    P = Period(); P.addr = addr_qp()
    for ks in range(2):
        slot = SLOTA if ks == 0 else SLOTB
        k0 = len(P.m)
        xr = [XF + 4 * (ks * 5 + c) for c in range(5)]
        xl = mk([f"ds_read_b128 {ar(xr[c])}, v{vA1} offset:{c*2048 + ks*256}" for c in range(5)], tag='rd')
        xp = [-LEAD + 3, -LEAD + 4, -LEAD + 5, -LEAD + 8, -LEAD + 9] if ks == 0 else [3, 8, 13, 18, 23]
        for i, p in zip(xl, xp): i.pos = p
        P.f += xl
        P.f.append(W([f"a{xr[c]+i}" for c in range(5) for i in range(4)], k0 - 0.5))
        for t in range(8):
            k0 = len(P.m); r = rdW(P, k0, slot, t)
            for c in range(5):
                D = vr(acc(t, c))
                P.m += mk(f"{MF} {D}, {vr(r)}, {ar(xr[c])}, {'0' if (m == 0 and ks == 0) else D}")
    if m == 7:
        P.f += spread(qfin_ops(0), 53, 66)
        P.f += spread(qfin_ops(1), 66, 80)
    return P

def per_a0():
    P = Period(); P.addr = addr_att()
    for s in range(4):
        for kt in range(2): grpQK(P, SLOTB, 0, kt, s, 'zero')
    P.f += spread(qfin_ops(2), 0.5, 19.5)
    P.f += spread(qfin_ops(3), 19.6, 29.5)
    mx = interleave([colmax_ops(0, c, ET + 2 * c, ET + 2 * c + 1) +
                     [f"v_sub_f32 v{Mreg(c)+i}, 0, v{ET+2*c}" for i in range(4)] for c in range(5)])
    P.f += at(mk(mx), 40)
    for kt in range(2):
        for s in range(4): grpQK(P, SLOTA, 1, kt, s, 'negm')
    sub = [f"v_add_f32 v{Sreg(0,kt,c)+i}, v{Sreg(0,kt,c)+i}, v{Mreg(c)}" for kt in range(2) for c in range(5) for i in range(4)]
    P.f += spread(sub + softmax_ops(0) + ladd_ops(True), 40.5, 80)
    return P

def per_att(i):
    P = Period(); P.addr = addr_att()
    par = i % 2
    for g in range(8):
        grpPV(P, SLOTB, par ^ 1, g, i == 1)
        grpQK(P, SLOTA, par ^ 1, g // 4, g % 4, 'negm')
    P.f += spread(softmax_ops(par), 2.5, 78.5)
    P.f += at(mk(check_ops(par)), 80)
    P.f += at(mk(ladd_ops()), 80.5, 82.4)
    if OPT['pad']: P.f += spread([f"v_mov_b32 v247, v247"] * (OPT['pad'] // 4), 3, 78)
    return P

def rl_ops():
    L = []
    for c in range(5):
        d = Lreg(c); t2 = Treg(c)
        L.append([f"v_mov_b32 v{t2}, v{d}", f"v_permlane16_swap_b32 v{d}, v{t2}", f"v_add_f32 v{d}, v{d}, v{t2}",
                  f"v_mov_b32 v{t2}, v{d}", f"v_permlane32_swap_b32 v{d}, v{t2}", f"v_add_f32 v{d}, v{d}, v{t2}",
                  f"v_rcp_f32 v{vRl[c]}, v{d}"])
    return interleave(L)

def per_a15():
    P = Period(); P.addr = addr_att()
    for g in range(8): grpPV(P, SLOTB, 0, g, False)
    P.f += spread(softmax_ops(1), 2.5, 39.5)
    P.f += at(mk(check_ops(1)), 40)
    for g in range(8): grpPV(P, SLOTA, 1, g, False)
    P.f += spread(ladd_ops() + rl_ops(), 40.5, 62)
    return P

def epi_ops():
    out = []
    for u in range(4):
        for c in range(5):
            k = u * 5 + c
            o = []
            if k % 4 == 0:
                o += [f"s_add_u32 s{sT2}, s{sOo}, {k*1024}"]
            o += [f"v_accvgpr_read_b32 v{TMP+i}, a{Oreg(2*u + i//4, c) + i%4}" for i in range(8)]
            o += [f"v_mul_f32 v{TMP+i}, v{vRl[c]}, v{TMP+i}" for i in range(8)]
            o += [f"v_cvt_pk_bf16_f32 v{TMP+i}, v{TMP+2*i}, v{TMP+2*i+1}" for i in range(4)]
            o += [f"buffer_store_dwordx4 {vr(TMP)}, v{vSt}, {srd(sO)}, s{sT2} offen offset:{(k%4)*1024}{OPT['ont']}"]
            out.append(o)
    out[-1] += [f"s_add_u32 s{sOo}, s{sOo}, {8*20480}"]
    return out

def norm_ops(u, c, dst, xk=None):
    o = [f"v_accvgpr_read_b32 v{TMP+i}, a{Oreg(2*u + i//4, c) + i%4}" for i in range(8)]
    o += [f"v_mul_f32 v{TMP+i}, v{vRl[c]}, v{TMP+i}" for i in range(8)]
    pk = ET + 4 * ((u * 5 + c) % 4) if dst[0] == 'a' else dst[1]
    o += [f"v_cvt_pk_bf16_f32 v{pk+i}, v{TMP+2*i}, v{TMP+2*i+1}" for i in range(4)]
    if dst[0] == 'a': o += [f"v_accvgpr_write_b32 a{dst[1]+i}, v{pk+i}" for i in range(4)]
    return o

op_ctr = [0]
def op_frag():
    r = POOL + 4 * (op_ctr[0] % 6); op_ctr[0] += 1
    return r
def op_group(P, areg, o, t, hh, u, first):
    k0 = len(P.m); r = op_frag()
    P.f += at(mk([f"ds_read_b64_tr_b16 {vr(r,2)}, v{areg} offset:{o}",
                  f"ds_read_b64_tr_b16 {vr(r+2,2)}, v{areg} offset:{o + 2048}"], tag='rd'), rpos(k0), rpos(k0) + 2)
    fwait(P, k0, r)
    for c in range(5):
        D = vr(acc(t, c))
        P.m += mk(f"{MF} {D}, {vr(r)}, {rr(Bfrag(hh,u,c))}, {'0' if first else D}")
tokc = [0]
def pub_ops(sp, p0, p1):
    L = []
    for c in range(5):
        a = acc(2 * sp, c); pk = HOLD[tokc[0] % 3]; tokc[0] += 1
        L += [f"v_cvt_pk_bf16_f32 v{pk+i}, v{a+2*i}, v{a+2*i+1}" for i in range(4)]
        if c == 4: L += [f"s_add_u32 s{sPo}, s{sPo}, 4096"]
        L += [f"buffer_store_dwordx4 {vr(pk)}, v{vSt}, {srd(sO)}, s{sPo} offen offset:{(c%4)*1024} sc1"]
    L += [f"s_add_u32 s{sPo}, s{sPo}, 1024"]
    ins = spread(L, p0, p1)
    tok = f"tok{tokc[0]}"
    [i for i in ins if i.kind == 'vst'][-1].wr = [tok]
    return ins, tok
def dest_ops(i):
    if i is None:
        L = [f"s_lshr_b32 s{sT1}, s{sWv}, 1", f"s_add_u32 s{sT3}, s{sSig}, s{sT1}", f"s_add_u32 s{sT3}, s{sT3}, 1", f"s_and_b32 s{sT3}, s{sT3}, 7",
             f"s_mul_i32 s{sPo}, s{sT3}, 163840", f"s_add_u32 s{sPo}, s{sPo}, s{sMb}", f"s_lshl_b32 s{sT3}, s{sT3}, 11", f"s_add_u32 s{sT3}, s{sT3}, s{sFb}",
             f"s_lshl_b32 s{sTa}, s{sT1}, 8", f"s_add_u32 s{sT3}, s{sT3}, s{sTa}", f"s_mul_i32 s{sT1}, s{sT1}, 20480", f"s_add_u32 s{sPo}, s{sPo}, s{sT1}"]
    else:
        L = [f"s_add_u32 s{sT3}, s{sSig}, {1+i}", f"s_and_b32 s{sT3}, s{sT3}, 7", f"s_sub_u32 s{sT3}, s{sT3}, s{sSig}",
             f"s_mul_i32 s{sPo}, s{sT3}, 163840", f"s_add_u32 s{sPo}, s{sPo}, s{sCm}", f"s_add_u32 s{sPo}, s{sPo}, {i*20480}",
             f"s_lshl_b32 s{sT3}, s{sT3}, 11", f"s_add_u32 s{sT3}, s{sT3}, s{sCf}"]
    return L
def flag_ops(i, tok, pos):
    w = W([tok], pos - 1)
    if i is None: st = mk(f"buffer_store_dwordx2 {vr(vTag,2)}, v{vF0}, {srd(sO)}, s{sT3} offen sc1")
    else: st = mk(f"buffer_store_dword v{vTag}, v{vF0}, {srd(sO)}, s{sT3} offen offset:{i*256} sc1")
    st[0].rd = st[0].rd + [tok]; st[0].pos = pos
    return [w] + st
def per_ds0(hh, umajor=False):
    P = Period(); P.addr = [f"v_add_u32 v{vA0}, s{sRd}, v{vOb}"]
    order = [(u, t) for u in range(4) for t in range(4)] if umajor else [(u, 2 * sp + e) for sp in range(2) for u in range(4) for e in range(2)]
    for (u, t) in order:
        op_group(P, vA0, u * 4096 + (t // 2) * 256 + (t % 2) * 8, t, hh, u, hh == 0 and u == 0)
    if hh == 3:
        P.f += at(mk(dest_ops(None)), 20, 40)
        i0, _ = pub_ops(0, 45, 75); i1, tok = pub_ops(1, 85, 112)
        P.f += i0 + i1 + flag_ops(None, tok, 112 + round(80 * OPT['fd']))
    return P
def per_st(i, r):
    P = Period(); P.addr = [f"v_add_u32 v{vA0}, s{sRd}, v{vOb}", f"v_add_u32 v{vA1}, s{sPd}, v{vA0}"]
    for par in range(2):
        for u in range(4):
            for e in range(2):
                op_group(P, vA1 if par else vA0, u * 4096 + e * 8, 2 * (i % 2) + e, 2 * r + par, u, r == 0 and par == 0 and u == 0)
    if r == 1 and i < 7:
        P.f += at(mk(dest_ops(i)), 66, 80)
        ins, tok = pub_ops(i % 2, 84, 104)
        P.f += ins + flag_ops(i, tok, 104 + round(80 * (OPT['fd'] if i < 6 else OPT['fd6'])))
    return P
spins = []
def chk_ops(load, reg, cmpop, pos, tokname):
    k = len(spins); spins.append((load, cmpop))
    ins = mk([f"v_readfirstlane_b32 s{sSpin}, v{reg}", cmpop, f"s_cbranch_scc0 SPIN{k}", f"SRET{k}:"])
    ins[0].pos = pos - 2
    for x in ins[1:]: x.pos = pos
    ins[-1].wr = [tokname]
    return [W([f"v{reg}"], pos - 3)] + ins
def consume(i, pf, pc, pl, pv0, pv1, buf):
    B = {'M': MSG, '1': [acc(2, c) for c in range(5)], '0': [acc(0, c) for c in range(5)], '2': [acc(1, c) for c in range(5)]}[buf]
    fl = vFl if i % 2 == 0 else vFl2
    load = f"buffer_load_dword v{fl}, off, {srd(sO)}, s{sCf} offset:{i*256} sc1"
    F = at(mk(load), pf)
    F += chk_ops(load, fl, f"s_cmp_eq_u32 s{sSpin}, s{sTag}", pc, f"chk{i}")
    F += at(mk([f"s_add_u32 s{sT1}, s{sCm}, {i*20480 + 1024}"]), pl)
    ld = mk([f"buffer_load_dwordx4 {vr(B[c])}, v{vSt}, {srd(sO)}, s{sT1} offen offset:{(c-1)*1024} sc1" for c in range(1, 5)] +
            [f"s_sub_u32 s{sT1}, s{sT1}, 1024", f"buffer_load_dwordx4 {vr(B[0])}, v{vSt}, {srd(sO)}, s{sT1} offen sc1"])
    for q, x in enumerate(ld):
        x.pos = pl + 1 + 2 * q
        if x.kind == 'vld': x.rd = x.rd + [f"chk{i}"]
    F += ld
    V = []
    tail = pv0 >= 80 * 64
    for c in (1, 2, 3, 4, 0):
        for j in range(4):
            x = B[c] + j; r0, r1 = RREG[c * 8 + 2 * j], RREG[c * 8 + 2 * j + 1]; t = vT1
            if tail: r0, r1 = acc(2, c) + 2 * j, acc(2, c) + 2 * j + 1
            if i == 0: V += [f"v_lshlrev_b32 v{r0}, 16, v{x}", f"v_and_b32 v{r1}, s{sC}, v{x}"]
            else: V += [f"v_lshlrev_b32 v{t}, 16, v{x}", f"v_and_b32 v{x}, s{sC}, v{x}", f"v_add_f32 v{r0}, v{r0}, v{t}", f"v_add_f32 v{r1}, v{r1}, v{x}"]
    if not tail: F.append(W([f"v{B[0]}"], pv0 - 1))
    F += spread(V, pv0, pv1)
    return F

def dma_op(j):
    D = [f"buffer_load_dwordx4 v{vDx[i%4]}, {srd(sWoS)}, s{sOp if i < 4 else sT0} offen offset:{(i%4)*1024}{OPT['wont']} lds" for i in range(8)]
    G = [[f"s_add_u32 m0, s{sWr}, s{sMw}", D[0]], [D[1]], [D[2]], [D[3]],
         [f"s_add_u32 m0, m0, 0x1000", f"s_add_u32 s{sT0}, s{sOp}, 0x8000", D[4]], [D[5]], [D[6]], [D[7]]]
    if j in (0, 2): adv = [f"s_add_u32 s{sOp}, s{sOp}, s{sOpd}"]
    elif j == 1: adv = [f"s_sub_u32 s{sOp}, s{sOp}, s{sOpd}", f"s_add_u32 s{sOp}, s{sOp}, 0x100000"]
    elif j % 2 == 0: adv = [f"s_add_u32 s{sOp}, s{sOp}, 0x100000"]
    else:
        i = (j + 1) // 2
        adv = [f"s_add_u32 s{sOp}, s{sSig}, {1+i}", f"s_and_b32 s{sOp}, s{sOp}, 7", f"s_lshl_b32 s{sOp}, s{sOp}, 7", f"s_add_u32 s{sOp}, s{sOp}, s{sOpB}"]
    G[-1] = G[-1] + adv
    return G

def build_k1():
    periods = []
    for r in range(2):
        for m in range(8): periods.append(per_qp(m))
        periods.append(per_a0())
        for i in range(1, 15): periods.append(per_att(i))
        periods.append(per_a15())
        assert pool_ctr[0] % NPOOL == 0
    for j in range(4): periods.append(per_ds0(j, umajor=(j in (1, 2))))
    for i in range(2, 8):
        for r in range(2): periods.append(per_st(i, r))
    def dma_for(n2):
        if n2 >= 64: return []
        if n2 >= 48: return dma_op(n2 - 48)
        j = n2 % 24
        if j < 8:
            G = dma_qp()
            if j == 0: G[0] = next_round_ops()[0] + G[0]
            return G
        if j == 8: return dma_kv(SLOTB, 'K') + dma_kv(SLOTA, 'K')
        if j == 23: return dma_kv(SLOTB, 'V') + dma_kv(SLOTA, 'V')
        return dma_kv(SLOTB, 'V') + dma_kv(SLOTA, 'K')
    M = []; F = []
    for n, P in enumerate(periods):
        base = 80 * n
        assert len(P.m) == 80
        M += P.m
        for i in P.f: i.pos = round(i.pos * 256) / 256.0 + base; F.append(i)
        b0 = base - LEAD
        pre = [f"s_add_u32 s{sWr}, s{sRd}, s{sMw}",
               f"s_add_u32 s{sRd}, s{sRd}, {STAGE}",
               f"s_cmp_eq_u32 s{sRd}, {3*STAGE}",
               f"s_cselect_b32 s{sRd}, 0, s{sRd}"] + P.addr
        pi = at(mk(pre), b0 - 5, b0 - 0.1); pi[3].pos = pi[2].pos
        F += pi
        if OPT['stamp']: F += at(mk("s_memtime s[50:51]"), b0 - 0.05)
        F += at(mk("s_barrier", tag='barwait'), b0)
        if OPT['stamp']: F += at(mk(["s_mov_b32 m0, s45", "s_add_u32 s45, s45, 1", "v_writelane_b32 v235, s50, m0"]), b0 + 0.01)
        G = dma_for(n + 2)
        j = n % 24
        wo = [int(x) for x in OPT['wopf'].split(',') if x != '']
        if n in wo:
            G = G + [[f"buffer_load_dword v{vDum}, v{vPK}, {srd(sWoS)}, s{sPb} offen{OPT['wopfnt']}", f"s_add_u32 s{sPb}, s{sPb}, 8192"]]
            if n == wo[0]: G[-1] = [f"s_mov_b32 s{sPb}, s{sPi}"] + G[-1]
        if not G: continue
        slots = [b0 + 4 + 5 * q for q in range(13)] if len(G) <= 13 else [b0 + 3 + 5 * (q // 2) + (q % 2) for q in range(26)]
        step = len(slots) / len(G)
        F += place_groups(G, [slots[int(gi * step)] for gi in range(len(G))], b0)
    def B0(n): return 80 * n - LEAD
    def mem_at(lines, p0, step=5):
        ins = mk(lines)
        for q, i in enumerate(ins): i.pos = p0 + step * q if isinstance(step, (int, float)) else step[q]
        return ins
    flat = [x for u in (2, 0, 1, 3) for c in range(5) for x in norm_ops(u, c, ('a', Oreg(2 * u, c)) if u < 3 else PK3[c])]
    F += spread(flat, 80 * 24 + 5, 80 * 30 - LEAD)
    for n, k in ((30, 2), (31, 0), (32, 1)):
        F += mem_at([xwr(('a', Oreg(2 * k, c)), k, c) for c in range(5)], B0(n) + 20, 5)
    rd47 = [xrd(Bfrag(0, u, c), u, c, True) for u in range(3) for c in range(5)]
    F += mem_at(rd47, 80 * 47 + 3, [80 * 47 + 3 + 5 * (q // 2) + (q % 2) for q in range(15)])
    rd47b = [xrd(Bfrag(1, u, c), u, c, False) for u in (2, 0) for c in range(5)]
    F += mem_at(rd47b, 0, [80 * 47 + 43 + 5 * (q // 3) + (q % 3) for q in range(10)])
    F.append(W([f"a{160+i}" for i in range(60)], 80 * 48 - 0.5))
    F += mem_at([xrd(Bfrag(1, 1, c), 1, c, False) for c in range(5)], 80 * 48 + 5)
    F += mem_at([xwr(PK3[c], 0, c) for c in range(5)], B0(48) + 5)
    nrm = lambda u: [x for c in range(5) for x in norm_ops(u, c, Bfrag(2, u, c))]
    F += spread(nrm(0), 80 * 47 + 63, 80 * 48 + 35)
    F += mem_at([xwr(Bfrag(2, 0, c), 2, c) for c in range(5)], 80 * 48 + 38, 4)
    F += spread(nrm(1), 80 * 48 + 35, 80 * 49 + 10)
    F += mem_at([xrd(Bfrag(1, 3, c), 0, c, False) for c in range(5)] + [xrd(Bfrag(3, 0, c), 2, c, False) for c in range(5)], B0(49) + 5)
    F += mem_at([xwr(Bfrag(2, 1, c), 1, c) for c in range(5)], 80 * 49 + 38, 4)
    F += spread(nrm(2), 80 * 49 + 10, 80 * 49 + 65)
    F += spread(nrm(3), 80 * 49 + 65, 80 * 50 + 35)
    F += mem_at([xrd(Bfrag(3, 1, c), 1, c, False) for c in range(5)] + [xwr(Bfrag(2, 2, c), 0, c) for c in range(5)], B0(50) + 5)
    F += mem_at([xwr(Bfrag(2, 3, c), 2, c) for c in range(5)], 80 * 50 + 38, 4)
    F += mem_at([xrd(Bfrag(3, 2, c), 0, c, False) for c in range(5)] + [xrd(Bfrag(3, 3, c), 2, c, False) for c in range(5)], 0,
                [B0(51) + 3 + 5 * (q // 3) + (q % 3) for q in range(10)])
    eload = f"buffer_load_dword v{vEp}, off, {srd(sDbg)}, s{sSpin2} sc1"
    el = at(mk(eload), 80 * 46 + 30)
    F += el
    F += chk_ops(eload, vEp, f"s_cmp_lg_u32 s{sSpin}, 0", 80 * 47 + 70, "chke")
    late = [f"s_mov_b32 s{sTag}, s{sSpin}", f"s_mov_b32 s{sC}, 0xffff0000"]
    li = at(mk(late), 80 * 47 + 70.5, 80 * 47 + 72); li[0].rd = li[0].rd + ["chke"]
    F += li
    lv = [f"v_mov_b32 v{vTag}, s{sTag}", f"v_mov_b32 v{vTag+1}, s{sTag}",
          f"v_min_u32 v{vF0}, 16, v{vSt}", f"v_lshlrev_b32 v{vF0}, 26, v{vF0}"]
    F += spread(lv, 80 * 50 + 40, 80 * 50 + 60)
    F += spread([f"v_and_b32 v{vOut}, 0xf0, v{vSt}", f"v_lshlrev_b32 v{vOut}, 7, v{vOut}", f"v_lshrrev_b32 v{vOut+1}, 8, v{vSt}", f"v_lshl_add_u32 v{vOut}, v{vOut+1}, 4, v{vOut}"], 80 * 63 + 50, 80 * 63 + 60)
    F += at(mk([f"s_lshr_b32 s{sT1}, s{sWv}, 1", f"s_lshl_b32 s{sT1}, s{sT1}, 8", f"v_add_u32 v{vOb}, s{sT1}, v{vOb}"]), 80 * 51 + 2, 80 * 51 + 10)
    T = lambda x: 80 * x
    for i, spec in enumerate(OPT['cs'].split(';')):
        q = spec.split(',')
        F += consume(i, *[round(T(float(x))) for x in q[:5]], q[5])
    F += spread([f"v_add_f32 v{acc(2,c)+j}, v{acc(2,c)+j}, v{RREG[c*8+j]}" for c in range(5) for j in range(8)], T(64.3), T(64.85))
    fin = []
    for c in range(5):
        a = acc(2, c)
        fin += [f"v_cvt_pk_bf16_f32 v{a+i}, v{a+2*i}, v{a+2*i+1}" for i in range(4)]
        fin += [f"buffer_store_dwordx4 {vr(a)}, v{vOut}, {srd(sOutS)}, s{sOutO} offen", f"s_add_u32 s{sOutO}, s{sOutO}, 32768"]
    F += spread(fin, T(66.1), T(67))
    dr = OPT['drop']
    if 'D' in dr: F = [i for i in F if i.kind != 'dma']
    if 'E' in dr: F = [i for i in F if i.kind != 'trans']
    if 'V' in dr: F = [i for i in F if not (i.kind == 'valu' and i.op in ('v_add_f32', 'v_cvt_pk_bf16_f32'))]
    if 'R' in dr: F = [i for i in F if i.kind != 'dsr']
    if 'S' in dr: F = [i for i in F if i.kind != 'vst']
    if 'C' in dr: F = [i for i in F if not (i.kind == 'branch' or i.kind == 'label')]
    for i in F:
        i.pos = round(i.pos * 256) / 256.0
        if i.kind == 'vld' and i.wr == [f"v{vDum}"]: i.wr = []
    seq = gap_schedule(M, F, OPT['early'], OPT['late']) if OPT['sched'] else merge_global(M, F)
    segs = [[]]
    for i in seq:
        if i.kind == 'barrier': segs.append([])
        segs[-1].append(i)
    return segs

def merge_global(M, F):
    fl = sorted(enumerate(F), key=lambda e: (e[1].pos, e[0]))
    out = []; j = 0
    for k, m in enumerate(M):
        while j < len(fl) and fl[j][1].pos <= k:
            out.append(fl[j][1]); j += 1
        out.append(m)
    out += [e[1] for e in fl[j:]]
    return out

def k1_setup():
    cexp = math.log2(math.e) / math.sqrt(128.0)
    n = OPT['cpf']
    CPF = "" if not n else f"""s_getpc_b64 s[62:63]
s_lshr_b32 s5, s2, 3
s_lshl_b32 s5, s5, 2
v_add_u32 v21, s5, v20
v_mul_u32_u24 v21, {n}, v21
v_min_u32 v22, {n-1}, v0
v_add_u32 v21, v21, v22
v_min_u32 v21, CODE_LINES, v21
v_lshlrev_b32 v21, 7, v21
global_load_dword v{vDum}, v21, s[62:63]"""
    A = mk(f"""
s_cmp_ge_u32 s2, 256
s_cbranch_scc1 K1_END
s_and_b32 s3, s2, 7
s_lshr_b32 s4, s3, 2
s_mul_i32 s4, s4, 40
s_add_u32 s6, s0, s4
s_addc_u32 s7, s1, 0
s_load_dwordx8 s[52:59], s[6:7], 0
s_load_dwordx2 s[60:61], s[0:1], 96
s_load_dwordx2 s[78:79], s[6:7], 32
s_load_dwordx2 s[{sOutS}:{sOutS+1}], s[0:1], 80
s_load_dwordx2 s[{sDbg}:{sDbg+1}], s[0:1], 88
s_memrealtime s[46:47]
v_lshrrev_b32 v20, 6, v0
v_and_b32 v0, 63, v0
v_readfirstlane_b32 s{sWv}, v20
{CPF}
v_lshrrev_b32 v20, 4, v0
v_bfe_u32 v21, v0, 2, 2
v_and_b32 v22, 3, v0
s_lshr_b32 s5, s2, 3
s_bfe_u32 s62, s3, 0x10001
s_and_b32 s63, s3, 1
s_lshr_b32 s71, s5, 2
s_lshl_b32 s62, s62, 3
s_add_u32 s64, s71, s62
s_and_b32 s4, s5, 3
s_lshl_b32 s65, s4, 1
s_lshl_b32 s63, s63, 4
s_add_u32 s63, s65, s63
s_lshr_b32 s66, s{sWv}, 1
s_and_b32 s67, s{sWv}, 1
s_add_u32 s65, s63, s66
s_lshl_b32 s{sMw}, s{sWv}, 12
s_lshl_b32 s{sMx}, s{sWv}, 10
s_add_u32 s{sMx}, s{sMx}, {XOFF}
s_lshl_b32 s{sWo}, s65, 8
s_lshl_b32 s68, s67, 17
s_add_u32 s{sWo}, s{sWo}, s68
s_mul_i32 s69, s64, 163840
s_mul_i32 s68, s{sWv}, 40960
s_add_u32 s{sKi}, s69, s68
s_lshl_b32 s70, s4, 1
s_add_u32 s70, s70, s71
s_and_b32 s70, s70, 7
s_mov_b32 s{sVi}, s3
v_lshlrev_b32 v25, 4, v22
v_lshl_add_u32 v25, v20, 6, v25
v_lshl_add_u32 v{vDkv0}, v21, 8, v25
v_xor_b32 v{vDkv1}, 32, v{vDkv0}
v_lshl_add_u32 v{vDw[0]}, v21, 13, v25
v_add_u32 v{vDw[1]}, {31744}, v{vDw[0]}
v_add_u32 v{vDw[2]}, {2*31744}, v{vDw[0]}
v_add_u32 v{vDw[3]}, {3*31744}, v{vDw[0]}
v_lshrrev_b32 v24, 5, v0
v_lshlrev_b32 v25, 1, v24
v_xor_b32 v25, v25, v22
v_lshlrev_b32 v25, 4, v25
v_and_b32 v23, 1, v20
v_lshl_add_u32 v25, v23, 6, v25
v_lshl_add_u32 v25, v21, 10, v25
v_lshl_add_u32 v{vDx[0]}, v24, 12, v25
v_add_u32 v{vDx[1]}, 7168, v{vDx[0]}
v_add_u32 v{vDx[2]}, {2*7168}, v{vDx[0]}
v_add_u32 v{vDx[3]}, {3*7168}, v{vDx[0]}
s_mov_b32 s{sX+2}, 2621440
s_mov_b32 s{sX+3}, 0x20000
s_mov_b32 s{sW+2}, 4194304
s_mov_b32 s{sW+3}, 0x20000
s_mov_b32 s{sWr}, s{sMw}
s_waitcnt lgkmcnt(0)
s_mov_b32 s{sX}, s52
s_mov_b32 s{sX+1}, s53
s_mov_b32 s{sW}, s58
s_mov_b32 s{sW+1}, s59
s_mov_b32 s{sXb}, s{sKi}
s_mov_b32 s{sXc}, 0
s_mov_b32 s{sQr}, s70
s_mov_b32 s71, s{sVi}
""") + (mk(rot_ops()) if OPT['qrot0'] else [])
    for i in A:
        if i.kind == 'vld': i.wr = []
    pf = []
    D0 = mk([x for g in dma_qp() for x in g])
    D1 = mk(f"s_add_u32 s{sWr}, s{sMw}, {STAGE}", tag='vmreset') + mk([x for g in dma_qp() for x in g])
    B = mk(f"""
s_mov_b32 s{sRd}, {2*STAGE}
s_lshl_b32 s68, s64, 5
s_add_u32 s68, s68, s65
s_lshl_b32 s{sPb}, s68, 17
s_lshl_b32 s68, s67, 12
s_add_u32 s{sKVb}, s{sPb}, s68
s_mul_i32 s{sKi}, s2, {OPT['rot']*0x2000*5}
s_lshr_b32 s68, s2, 4
s_mul_i32 s68, s68, {OPT['rot']*0x2000*3}
s_add_u32 s{sKi}, s{sKi}, s68
s_and_b32 s{sKi}, s{sKi}, 0x1ffff
s_mov_b32 s{sVi}, s{sKi}
s_lshr_b32 s68, s5, 2
s_lshr_b32 s4, s68, 2
s_lshl_b32 s4, s4, 20
s_and_b32 s68, s68, 3
s_lshl_b32 s68, s68, 16
s_add_u32 s4, s4, s68
s_lshl_b32 s68, s63, 17
s_add_u32 s4, s4, s68
s_lshl_b32 s68, s{sWv}, 14
s_add_u32 s{sPi}, s4, s68
s_lshr_b32 s62, s71, 2
s_lshl_b32 s68, s62, 4
s_add_u32 s68, s68, s64
s_lshl_b32 s{sSpin2}, s68, 3
s_mul_i32 s{sMb}, s68, {8*163840}
s_mul_i32 s4, s67, 10240
s_add_u32 s{sMb}, s{sMb}, s4
s_lshl_b32 s{sFb}, s68, 14
s_lshl_b32 s4, s67, 7
s_add_u32 s{sFb}, s{sFb}, s4
s_add_u32 s{sFb}, s{sFb}, {FLAGB}
s_and_b32 s68, s71, 1
s_lshl_b32 s68, s68, 2
s_and_b32 s4, s5, 3
s_add_u32 s{sSig}, s68, s4
s_mul_i32 s4, s64, {OPT['orot']}
s_add_u32 s{sSig}, s{sSig}, s4
s_and_b32 s{sSig}, s{sSig}, 7
s_mul_i32 s{sCm}, s{sSig}, 163840
s_add_u32 s{sCm}, s{sCm}, s{sMb}
s_mul_i32 s4, s66, 5120
s_add_u32 s{sCm}, s{sCm}, s4
s_lshl_b32 s{sCf}, s{sSig}, 11
s_add_u32 s{sCf}, s{sCf}, s{sFb}
s_lshl_b32 s4, s66, 2
s_add_u32 s{sCf}, s{sCf}, s4
s_lshl_b32 s4, s64, 1
s_add_u32 s4, s4, s67
s_mul_i32 s{sOutO}, s4, {80*2048}
s_lshl_b32 s4, s62, 10
s_add_u32 s{sOutO}, s{sOutO}, s4
s_lshl_b32 s4, s{sSig}, 7
s_add_u32 s{sOutO}, s{sOutO}, s4
s_lshl_b32 s4, s66, 6
s_add_u32 s{sOutO}, s{sOutO}, s4
s_lshl_b32 s{sOpB}, s65, 17
s_lshl_b32 s68, s67, 16
s_add_u32 s{sOpB}, s{sOpB}, s68
s_add_u32 s4, s{sSig}, s66
s_add_u32 s4, s4, 1
s_and_b32 s4, s4, 7
s_lshl_b32 s4, s4, 7
s_add_u32 s{sOp}, s{sOpB}, s4
s_lshl_b32 s68, s66, 18
s_sub_u32 s{sOpd}, 0x20000, s68
s_lshl_b32 s68, s66, 15
s_sub_u32 s{sPd}, 0x4000, s68
s_mov_b32 s{sC}, {f2h(cexp)}
s_mov_b32 s{sTh}, {f2h(OPT['thresh'])}
s_mov_b32 s{sRound}, 0
s_lshl_b32 s69, s66, 13
s_mul_i32 s70, s67, 10240
s_add_u32 s70, s70, {XOFF}
v_and_b32 v23, 1, v21
v_lshlrev_b32 v23, 1, v23
v_xor_b32 v23, v23, v20
v_lshlrev_b32 v23, 4, v23
v_lshl_add_u32 v23, v22, 6, v23
v_lshl_add_u32 v{vKb}, v21, 10, v23
v_add_u32 v{vKb}, s69, v{vKb}
v_lshl_add_u32 v{vXb}, v21, 9, v23
v_add_u32 v{vXb}, s70, v{vXb}
v_and_b32 v23, 1, v20
v_lshlrev_b32 v23, 5, v23
v_lshlrev_b32 v24, 3, v22
v_xor_b32 v23, v23, v24
v_lshl_add_u32 v23, v21, 6, v23
v_lshl_add_u32 v23, v20, 10, v23
v_add_u32 v{vV0b}, s69, v23
v_xor_b32 v{vV1b}, 32, v{vV0b}
v_lshlrev_b32 v23, 4, v22
v_lshl_add_u32 v23, v21, 6, v23
v_lshl_add_u32 v23, v20, 11, v23
v_add_u32 v{vWb}, s69, v23
v_lshlrev_b32 v{vSt}, 4, v0
v_lshlrev_b32 v{vPK}, 7, v0
v_and_b32 v23, 1, v20
v_lshlrev_b32 v23, 1, v23
v_xor_b32 v23, v23, v22
v_lshlrev_b32 v23, 4, v23
v_lshl_add_u32 v23, v21, 6, v23
v_lshl_add_u32 v23, v20, 9, v23
s_lshl_b32 s69, s66, 14
v_add_u32 v{vOb}, s69, v23
s_mul_i32 s69, s{sWv}, 5120
s_add_u32 s69, s69, {XOFF}
v_add_u32 v{vXo0}, s69, v{vSt}
v_add_u32 v{vXo2}, {2*STAGE}, v{vXo0}
s_xor_b32 s69, s{sWv}, 2
s_mul_i32 s69, s69, 5120
s_add_u32 s69, s69, {XOFF}
v_add_u32 v{vXp0}, s69, v{vSt}
v_add_u32 v{vXp2}, {2*STAGE}, v{vXp0}
s_mov_b32 s{sWoS}, s78
s_mov_b32 s{sWoS+1}, s79
s_mov_b32 s{sWoS+2}, 4194304
s_mov_b32 s{sWoS+3}, 0x20000
s_mov_b32 s{sK}, s54
s_mov_b32 s{sK+1}, s55
s_mov_b32 s{sK+2}, 67108864
s_mov_b32 s{sK+3}, 0x20000
s_mov_b32 s{sV}, s56
s_mov_b32 s{sV+1}, s57
s_mov_b32 s{sV+2}, 67108864
s_mov_b32 s{sV+3}, 0x20000
s_mov_b32 s{sO}, s60
s_mov_b32 s{sO+1}, s61
s_mov_b32 s{sO+2}, {FLAGB + 524288}
s_mov_b32 s{sO+3}, 0x20000
s_mov_b32 s{sOutS+2}, 5242880
s_mov_b32 s{sOutS+3}, 0x20000
s_mov_b32 s{sDbg+2}, 256
s_mov_b32 s{sDbg+3}, 0x20000
s_add_u32 s4, s{sSig}, s{sWv}
s_cmp_lg_u32 s4, 0
s_cbranch_scc1 K1_NOEP
s_or_b32 s4, s46, 1
v_mov_b32 v24, s4
v_lshlrev_b32 v25, 20, v0
buffer_store_dword v24, v25, {srd(sDbg)}, s{sSpin2} offen sc1 ; nc
K1_NOEP:
""")
    return A + pf + D0 + (B + D1 if OPT['d1late'] else D1 + B)

def rare(par):
    L = [f"RARE{par}:", "s_nop 15"]
    d, t2, f = TMP, TMP + 1, TMP + 2
    for c in range(5):
        L += colmax_ops(par, c, d, t2)
        L += [f"v_max_f32 v{d}, 0, v{d}", f"v_exp_f32 v{f}, -v{d}"]
        L += [f"v_sub_f32 v{Mreg(c)+i}, v{Mreg(c)+i}, v{d}" for i in range(4)]
        L += [f"v_sub_f32 v{blk(c)+i}, v{blk(c)+i}, v{d}" for i in range(16)]
        L += [f"v_mul_f32 v{Lreg(c)}, v{Lreg(c)}, v{f}"]
        for t in range(8):
            L += [f"v_accvgpr_read_b32 v{TMP+4+i}, a{Oreg(t,c)+i}" for i in range(4)]
            L += [f"v_mul_f32 v{TMP+4+i}, v{TMP+4+i}, v{f}" for i in range(4)]
            L += [f"v_accvgpr_write_b32 a{Oreg(t,c)+i}, v{TMP+4+i}" for i in range(4)]
    L += softmax_ops(par)
    L += ["s_nop 3", f"s_setpc_b64 s[{sRet}:{sRet+1}]"]
    seq = mk(L); analyze_trace(seq)
    return seq

def segtext(s): return "\n".join(i.text for i in s)

def emit_k1():
    segs = build_k1()
    pre = segs[0]; S = segs[1:]
    assert len(S) == 64
    T = [segtext(s) for s in S]
    k1 = 20
    while k1 < 24 and T[k1] == T[k1 + 24]: k1 += 1
    k0 = 20
    while k0 > 0 and T[k0 - 1] == T[k0 - 1 + 24]: k0 -= 1
    prog = []; trace = []
    lab = [0]; stubs = []
    def fixlabels(seq):
        for i in seq:
            if '@' in i.text:
                if i.kind == 'branch':
                    lab[0] += 1
                    tgt = i.text.split()[1].split('_')[0]
                    stubs.append((tgt, lab[0]))
                i.text = i.text.replace('@', str(lab[0]))
    def fold(lo, hi):
        p = []; t = []; k = lo
        while k < hi:
            done = False
            for L in (1, 2, 4):
                n = 1
                while k + (n + 1) * L <= hi and all(T[k + j] == T[k + n * L + j] for j in range(L)): n += 1
                if n >= 2:
                    body = [i for j in range(L) for i in S[k + j]]
                    fixlabels(body)
                    lab[0] += 1; ln = f"LP{lab[0]}"
                    init = mk(f"s_mov_b32 s{sCnt}, {n}")
                    tail = mk([f"s_sub_u32 s{sCnt}, s{sCnt}, 1", f"s_cmp_lg_u32 s{sCnt}, 0", f"s_cbranch_scc1 {ln}"])
                    p += init + mk(ln + ":") + body + tail
                    t += init + (body + tail) * min(n, 3)
                    print(f"  loop segs {k}..{k+n*L-1} L={L} n={n}", file=sys.stderr)
                    k += n * L; done = True; break
            if not done:
                fixlabels(S[k]); p += S[k]; t += S[k]; k += 1
        return p, t
    setup = k1_setup()
    p1, t1 = fold(0, k0)
    p2, t2 = fold(k0, k1)
    p3, t3 = fold(k1, 24 + k0)
    p4, t4 = fold(24 + k1, 64)
    br = mk([f"s_cmp_lg_u32 s{sRound}, 0", "s_cbranch_scc1 K1_FINAL"])
    back = mk([f"s_mov_b32 s{sRound}, 1", "s_branch K1_OUTER"])
    if OPT['stamp']:
        st0 = mk(["s_memtime s[72:73]", "s_memrealtime s[74:75]", "s_mov_b32 s45, 0", "v_mov_b32 v235, 0", "v_mov_b32 v246, 0"])
        setup = setup[:2] + st0 + setup[2:]
        st1 = mk(["s_memtime s[50:51]", "s_waitcnt lgkmcnt(0)", "v_writelane_b32 v246, s50, 0", "s_waitcnt vmcnt(0)", "s_memtime s[50:51]", "s_memrealtime s[76:77]", "s_waitcnt lgkmcnt(0)",
                  "v_writelane_b32 v246, s50, 1", "v_writelane_b32 v246, s72, 60", "v_writelane_b32 v246, s74, 61", "v_writelane_b32 v246, s76, 62",
                  f"s_lshl_b32 s50, s2, 2", f"s_add_u32 s50, s50, s{sWv}", "s_lshl_b32 s50, s50, 9", f"s_add_u32 s50, s50, {48<<20}",
                  f"v_lshrrev_b32 v245, 2, v{vSt}", f"s_mov_b32 s{sO+2}, {64<<20}",
                  f"buffer_store_dword v235, v245, {srd(sO)}, s50 offen", f"buffer_store_dword v246, v245, {srd(sO)}, s50 offen offset:256"])
        if OPT['dbg']:
            L = ["s_memtime s[50:51]", "s_memrealtime s[76:77]", "s_waitcnt lgkmcnt(0)",
                 "s_sub_u32 s50, s50, s72", "s_sub_u32 s76, s76, s74", "v_writelane_b32 v246, s50, 14", "v_writelane_b32 v246, s76, 15"]
            for q, ln in enumerate([0, 1, 4, 8, 9, 16, 24, 32, 33, 40, 48, 52, 56, 63]):
                L += [f"v_readlane_b32 s50, v235, {ln}", "s_nop 3", "s_sub_u32 s50, s50, s72", f"v_writelane_b32 v246, s50, {q}"]
            L += [f"s_lshl_b32 s50, s2, 2", f"s_add_u32 s50, s50, s{sWv}", f"s_cmp_lg_u32 s50, {OPT['dbg']-1}", "s_cbranch_scc1 K1_END",
                  f"s_mov_b32 s{sO+2}, {64<<20}", f"s_mov_b32 s50, {48<<20}",
                  f"v_lshrrev_b32 v245, 2, v{vSt}", f"buffer_store_dword v246, v245, {srd(sO)}, s50 offen"]
            st1 = mk(L)
        p4 += st1; t4 += st1
    prog = setup + pre + p1 + mk("K1_OUTER:") + p2 + br + p3 + back + mk("K1_FINAL:") + p4 + mk(["K1_END:", "s_endpgm"])
    trace = setup + pre + t1 + t2 + br + t3 + back + t2 + br + t4
    analyze_trace(trace)
    out = emit(prog) + "\n"
    for tgt, n in stubs:
        out += f"{tgt}_{n}:\n  s_call_b64 s[{sRet}:{sRet+1}], {tgt}\n  s_branch RET_{n}\n"
    for k, (load, cmpop) in enumerate(spins):
        reg = load.split()[1].rstrip(',')
        out += f"""SPIN{k}:
  s_mov_b32 s{sSc}, 0
SPINL{k}:
  s_sleep 2
  {load}
  s_add_u32 s{sSc}, s{sSc}, 1
  s_waitcnt vmcnt(0)
  v_readfirstlane_b32 s{sSpin}, {reg}
  s_cmp_gt_u32 s{sSc}, 0x8000
  s_cbranch_scc1 SRET{k}
  {cmpop}
  s_cbranch_scc0 SPINL{k}
  s_branch SRET{k}
"""
    out += emit(rare(0)) + "\n" + emit(rare(1)) + "\n"
    print(f"  k0={k0} k1={k1}", file=sys.stderr)
    print("  model cycles/seg:", [model_cycles(x) for x in S], file=sys.stderr)
    return out

def kd(name, vg=512, acc=256):
    return f""".amdhsa_kernel {name}
  .amdhsa_next_free_vgpr {vg}
  .amdhsa_next_free_sgpr 102
  .amdhsa_accum_offset {acc}
  .amdhsa_group_segment_fixed_size 0
  .amdhsa_kernarg_size 104
  .amdhsa_user_sgpr_count 2
  .amdhsa_user_sgpr_kernarg_segment_ptr 1
  .amdhsa_system_sgpr_workgroup_id_x 1
.end_amdhsa_kernel
"""

K1 = NAME + "_kernel"
hdr = open("cdna_kernels/" + NAME + ".s.ref").read().split("; Override launch")[0]
o = hdr
o += f"; @launch grid=(256,1,1) block=(256,1,1) lds={3*STAGE}\n"
o += '.amdgcn_target "amdgcn-amd-amdhsa--gfx950"\n.text\n'
o += f".globl {K1}\n.p2align 8\n.type {K1},@function\n{K1}:\n" + emit_k1()
o += '.section .rodata,"a"\n.p2align 6\n' + kd(K1)
import subprocess, re
if "CODE_LINES" in o:
    open("_g.s", "w").write(o.replace("CODE_LINES", "0x100"))
    subprocess.run(["clang", "-x", "assembler", "-target", "amdgcn-amd-amdhsa", "-mcpu=gfx950", "-c", "_g.s", "-o", "_g.o"], check=True)
    t = subprocess.run(["llvm-objdump", "-t", "_g.o"], capture_output=True, text=True).stdout
    end = int([l for l in t.split("\n") if l.endswith(" K1_END")][0].split()[0], 16)
    print("  K1 main code bytes", end, file=sys.stderr)
    o = o.replace("CODE_LINES", hex(end // 128))
open(sys.argv[1], "w").write(o)
```

```python
import sys, struct, math, re
from asmlib import *

NAME = "concat_heads__gqa_block_cached__mha_block_cached__near_ridge"
OPT = dict(eb0=50, eb1=56, uni=4, cap1=0, capfrom=10, capq=0, capo=0, g2rot=0, g2inv=0, pair='OQA', outf='', cap=5, ra=5, rb=3, rsh=4, pz=0, pzl=63.3, pzc=64.87, pw=20, pw6=20, w64=0, pol='', qlo2=0, qhi2=0, qn=0, qlo=24, qhi=32, g2=1, g2bit=0, wcf=0, dense=0, a15=0, xmap=0, probe='', qrot0=0, qrot1=1, orot=1, wont='', d1late=1, fd=1.2, fd6=0.5, cs='55.2,56.0,56.05,57.1,57.5,M;55.3,56.1,56.45,57.5,57.97,1;57.2,58.0,58.05,59.2,59.9,M;59.2,60.0,60.05,61.2,61.9,M;61.2,62.0,62.05,63.1,63.8,M;62.9,63.5,63.55,64.9,65.4,0;63.6,64.05,64.1,65.5,66.0,2', pfdma=0, pfl=32, pfstep=0x4000, pfstart=0x4000, pad=0, cpf=6, dbg=0, trickle=1, wopf='', wopfnt='', play=1, lead=15, kvpf='', wxpf=0, pfd=2, sched=1, early=3.0, late=2.0, k2pf=3, pfnt=' nt', wxpfnt='', kvnt=" nt", ont=" nt", rot=1, k2ont=" nt", epi_periods=5, thresh=1024.0, k1only=0, k2only=0, stamp=0, stamp2=0, k2wnt='', k2depth=3, k2drop='', drop='', wnt='', xnt='')
for kv in sys.argv[2:]:
    k, v = kv.split("="); OPT[k] = v.replace("_", " ") if isinstance(OPT[k], str) else (int(v, 0) if isinstance(OPT[k], int) else float(v))
LEAD = OPT['lead']
def f2h(x): return "0x%08x" % struct.unpack("<I", struct.pack("<f", x))[0]
MF = "v_mfma_f32_16x16x32_bf16"
def vr(b, n=4): return f"v[{b}:{b+n-1}]"
def ar(b, n=4): return f"a[{b}:{b+n-1}]"

STAGE = 53248; SLOTA = 0; SLOTB = 16384; XOFF = 32768
sX, sW, sK, sV, sO = 8, 12, 16, 20, 24
sWv, sRd, sWr, sMw, sMx = 28, 29, 30, 31, 32
sKVb, sKi, sVi, sWo, sXo, sOo = 33, 34, 35, 36, 37, 38
sT0, sT1, sC, sTh, sCnt, sRound = 39, 40, 41, 42, 43, 44
sRet = 46
sT2, sT3 = 48, 49
def srd(b): return f"s[{b}:{b+3}]"
vKb, vV0b, vV1b, vWb, vXb = 1, 2, 3, 4, 5
vA0, vA1, vA2 = 6, 7, 8
vDkv0, vDkv1 = 9, 10
vDw = [11, 12, 13, 14]
vDx = [15, 16, 17, 18]
vSt = 19
vRl = [20, 21, 22, 23, 0]
BLK = 24
def blk(c): return BLK + 32 * c
def acc(t, c): return blk(c) + 4 * t
def Sreg(par, kt, c): return blk(c) + 8 * par + 4 * kt
def Preg(par, c): return blk(c) + 16 + 4 * par
def Mreg(c): return blk(c) + 24
def Lreg(c): return blk(c) + 28
def Treg(c): return blk(c) + 29
POOL = 184
NPOOL = 8
XF = 200
TMP = 248
ET = 216
vPF, vPK, vDum, vStamp = 232, 233, 234, 235
sPF, sPK = 80, 84
sPFo, sPFs, sPFr, sPb, sPi, sRot = 88, 89, 90, 91, 92, 93
def Oreg(t, c): return (t * 5 + c) * 4
def Qreg(s, c): return 160 + (s * 5 + c) * 4

vXo0, vXo2, vXp0, vXp2 = 236, 237, 238, 239
vPK2 = 247; sPj = 48
vOb = 244
PK3 = [('a', 240), ('a', 244), ('a', 248), ('a', 252), ('v', 240)]
sWoS = 96 - 28
sOp, sOpd, sPo = 94, 95, 38
MSG = [blk(c) + 28 for c in range(5)]
HOLD = [ET, ET + 4, ET + 8]
vTag, vFl, vF0, vT1, vFl2 = 208, 210, 211, 213, 214
vOut = 15; vEp = 232
RREG = list(range(ET + 12, ET + 16)) + list(range(TMP, TMP + 8)) + [232, 233, 234, 236, 237, 238, 239, 245, 247, 215, 212] + \
       [1, 2, 3, 4, 5, 8, 9, 10, 11, 12, 13, 14, 20, 21, 22, 23, 0]
assert len(set(RREG)) == 40
sOutS, sDbg = 80, 84
sSig, sMb, sFb, sCm, sCf, sTag, sOutO, sSpin, sSpin2, sOpB, sPd = 88, 89, 90, 93, 48, 96, 97, 98, 99, 100, 101
sTa, sSc = 4, 5
sXb, sXc, sQr = 6, 7, 3
sG2 = 92
FLAGB = 41943040
def rr(f): return f"{f[0]}[{f[1]}:{f[1]+3}]"
def Bfrag(hh, u, c):
    if hh == 0: return ('a', 160 + (u * 5 + c) * 4) if u < 3 else PK3[c]
    if hh == 1: return ('v', blk(c) + 16 + 4 * u) if u < 3 else ('a', 220 + 4 * c)
    if hh == 2: return ('a', Oreg(2 * u, c))
    return ('a', Oreg(2 * u + 1, c))
def xarea(k, c, own):
    if k < 2: return (vXo0 if own else vXp0), k * STAGE + c * 1024
    return (vXo2 if own else vXp2), c * 1024
def xrd(dst, k, c, own):
    a, o = xarea(k, c, own); return f"ds_read_b128 {rr(dst)}, v{a} offset:{o}"
def xwr(src, k, c):
    a, o = xarea(k, c, True); return f"ds_write_b128 v{a}, {rr(src)} offset:{o}"

class Period:
    def __init__(self): self.m = []; self.f = []; self.dma = []; self.addr = []

pool_ctr = [0]
def next_frag():
    r = POOL + 4 * (pool_ctr[0] % NPOOL); pool_ctr[0] += 1
    return r

def rpos(k0):
    p = k0 - LEAD + 1
    if k0 == 70: p -= 3
    if k0 == 75: p -= 5
    return p
def fwait(P, k0, r):
    P.f.append(W([f"v{r+i}" for i in range(4)], k0))
def rdK(P, k0, slot, kt, s):
    r = next_frag()
    P.f += at(mk(f"ds_read_b128 {vr(r)}, v{vA0} offset:{slot + kt*4096 + s*256}", tag='rd'), rpos(k0))
    fwait(P, k0, r)
    return r
def rdV(P, k0, slot, t):
    r = next_frag(); a = vA1 if t % 2 == 0 else vA2
    P.f += at(mk([f"ds_read_b64_tr_b16 {vr(r,2)}, v{a} offset:{slot + (t//2)*256}",
                  f"ds_read_b64_tr_b16 {vr(r+2,2)}, v{a} offset:{slot + (t//2)*256 + 4096}"], tag='rd'), rpos(k0), rpos(k0) + 2)
    fwait(P, k0, r)
    return r
def rdW(P, k0, slot, t):
    r = next_frag(); s, e = t // 2, t % 2
    P.f += at(mk([f"ds_read_b64_tr_b16 {vr(r,2)}, v{vA0} offset:{slot + s*256 + e*8}",
                  f"ds_read_b64_tr_b16 {vr(r+2,2)}, v{vA0} offset:{slot + s*256 + e*8 + 1024}"], tag='rd'), rpos(k0), rpos(k0) + 2)
    fwait(P, k0, r)
    return r

def grpQK(P, slot, par, kt, s, cinit):
    k0 = len(P.m); r = rdK(P, k0, slot, kt, s)
    for c in range(5):
        D = vr(Sreg(par, kt, c))
        C = D if s > 0 else ("0" if cinit == 'zero' else vr(Mreg(c)))
        P.m += mk(f"{MF} {D}, {vr(r)}, {ar(Qreg(s,c))}, {C}")
def grpPV(P, slot, par, t, first):
    k0 = len(P.m); r = rdV(P, k0, slot, t)
    for c in range(5):
        D = ar(Oreg(t, c))
        P.m += mk(f"{MF} {D}, {vr(r)}, {vr(Preg(par,c))}, {'0' if first else D}")

def pairup(P, lo=0, hi=80):
    M = P.m
    init = {}
    def parts(i):
        t = i.text.split(None, 1)[1]; o = [x.strip() for x in t.split(',')]; return o
    for i in M[lo:hi]:
        o = parts(i)
        if o[3] != o[0]: init[o[0]] = o[3]
    out = M[:lo]
    for k in range(lo, hi, 10):
        g0, g1 = M[k:k + 5], M[k + 5:k + 10]
        if (k // 10) % 2 == 1: g0, g1 = g0[::-1], g1[::-1]
        for c in range(5):
            out += [g0[c], g1[c]] if c % 2 == 0 else [g1[c], g0[c]]
    out += M[hi:]
    new = []
    for q, i in enumerate(out):
        if lo <= q < hi:
            o = parts(i)
            o[3] = init.pop(o[0]) if o[0] in init else o[0]
            i = mk(f"{MF} " + ", ".join(o))[0]
        new.append(i)
    P.m = new
    for w in P.f:
        if w.kind == 'wait' and lo <= w.pos < hi and w.pos == int(w.pos) and int(w.pos - lo) % 10 == 5: w.pos -= 5.25
    return P

def softmax_ops(par, et=ET):
    ops = []; tc = [0]
    def tmp2():
        r = et + 2 * (tc[0] % 8); tc[0] += 1; return r
    pend = []
    for kt in range(2):
        for c in range(5):
            for h in range(2):
                e = tmp2(); s = Sreg(par, kt, c) + 2 * h
                cur = [f"v_exp_f32 v{e}, v{s}", f"v_exp_f32 v{e+1}, v{s+1}"]
                post = [f"v_cvt_pk_bf16_f32 v{Preg(par,c)+2*kt+h}, v{e}, v{e+1}"]
                if kt == 0 and h == 0:
                    post += [f"v_add_f32 v{Treg(c)}, v{e}, v{e+1}"]
                else:
                    post += [f"v_add_f32 v{Treg(c)}, v{Treg(c)}, v{e}", f"v_add_f32 v{Treg(c)}, v{Treg(c)}, v{e+1}"]
                ops += [cur[0]] + pend[:1] + [cur[1]] + pend[1:]
                pend = post
    ops += pend
    return ops

def cost(t):
    return 2.0 if t.startswith(('v_exp', 'v_rcp')) else 1.0
def spread(lines, p0, p1, tag=None):
    ins = mk(lines, tag=tag); tot = sum(cost(i.text) for i in ins); a = 0
    for i in ins:
        i.pos = p0 + (p1 - p0) * a / tot; a += cost(i.text)
    return ins

chk_ctr = [0]
def check_ops(par):
    return [f"v_max3_f32 v{TMP}, v{Treg(0)}, v{Treg(1)}, v{Treg(2)}",
            f"v_max3_f32 v{TMP}, v{TMP}, v{Treg(3)}, v{Treg(4)}",
            f"v_cmp_nge_f32 vcc, s{sTh}, v{TMP}",
            f"s_cbranch_vccnz RARE{par}_@",
            f"RET_@:"]
def ladd_ops(first=False):
    if first: return [f"v_mov_b32 v{Lreg(c)}, v{Treg(c)}" for c in range(5)]
    return [f"v_add_f32 v{Lreg(c)}, v{Lreg(c)}, v{Treg(c)}" for c in range(5)]

def colmax_ops(par, c, d, t2):
    s = Sreg(par, 0, c)
    return [f"v_max3_f32 v{d}, v{s}, v{s+1}, v{s+2}",
            f"v_max3_f32 v{t2}, v{s+3}, v{s+4}, v{s+5}",
            f"v_max3_f32 v{d}, v{d}, v{s+6}, v{s+7}",
            f"v_max_f32 v{d}, v{d}, v{t2}",
            f"v_mov_b32 v{t2}, v{d}",
            f"v_permlane16_swap_b32 v{d}, v{t2}",
            f"v_max_f32 v{d}, v{d}, v{t2}",
            f"v_mov_b32 v{t2}, v{d}",
            f"v_permlane32_swap_b32 v{d}, v{t2}",
            f"v_max_f32 v{d}, v{d}, v{t2}"]
def interleave(lists):
    out = []
    for i in range(max(len(l) for l in lists)):
        for l in lists:
            if i < len(l): out.append(l[i])
    return out

cur_n2 = [0]
def kvflag(which):
    p = OPT['pol']
    if not p: return OPT['kvnt']
    ch = p[(2 if cur_n2[0] >= 24 else 0) + (0 if which == 'K' else 1)]
    return ' nt' if ch == 'n' else ''
def dma_kv(slot, which):
    sd, si = (sK, sKi) if which == 'K' else (sV, sVi)
    t = sT0 if slot == SLOTA else sT1
    L = [f"s_add_u32 s{t}, s{sKVb}, s{si}",
         f"s_add_u32 s{si}, s{si}, 0x2000",
         f"s_and_b32 s{si}, s{si}, 0x1ffff",
         f"s_add_u32 m0, s{sWr}, {slot}" if slot else f"s_mov_b32 m0, s{sWr}"]
    D = [f"buffer_load_dwordx4 v{vDkv0 if j%2==0 else vDkv1}, {srd(sd)}, s{t} offen offset:{j*1024}{kvflag(which)} lds" for j in range(4)]
    return [L + D[:1]] + [[d] for d in D[1:]]
def dma_qp():
    G = []
    for slot in (SLOTA, SLOTB):
        L = [f"s_add_u32 m0, s{sWr}, {slot}" if slot else f"s_mov_b32 m0, s{sWr}"]
        if slot: L = [f"s_add_u32 s{sWo}, s{sWo}, 0x40000"] + L
        D = [f"buffer_load_dwordx4 v{vDw[j]}, {srd(sW)}, s{sWo} offen offset:{j*1024}{OPT['wnt']} lds" for j in range(4)]
        G += [L + D[:1]] + [[d] for d in D[1:]]
    G[-1] = G[-1] + [f"s_add_u32 s{sWo}, s{sWo}, 0x40000", f"s_and_b32 s{sWo}, s{sWo}, 0x3fffff"]
    L = [f"s_add_u32 s{sXo}, s{sXb}, s{sXc}", f"s_add_u32 m0, s{sWr}, s{sMx}"]
    D = [f"buffer_load_dwordx4 v{vDx[j]}, {srd(sX)}, s{sXo} offen offset:{j*1024}{OPT['xnt']} lds" for j in range(4)]
    G += [L + D[:1]] + [[d] for d in D[1:]]
    G += [[f"s_add_u32 m0, m0, 0x1000", f"s_add_u32 s{sT0}, s{sXo}, 0x8000",
           f"buffer_load_dwordx4 v{vDx[0]}, {srd(sX)}, s{sT0} offen{OPT['xnt']} lds", f"s_add_u32 s{sXc}, s{sXc}, 128", f"s_and_b32 s{sXc}, s{sXc}, 0x3ff"]]
    return G
def next_round_ops():
    return [[f"s_add_u32 s{sKVb}, s{sKVb}, 0x100000",
             f"s_add_u32 s{sWo}, s{sWo}, 2048"] + (rot_ops() if OPT['qrot1'] != OPT['qrot0'] else [])]
def rot_ops():
    return [f"s_lshl_b32 s{sT0}, s{sQr}, 19", f"s_add_u32 s{sWo}, s{sWo}, s{sT0}", f"s_lshl_b32 s{sXc}, s{sQr}, 7"]

def place_groups(G, slots, lo):
    out = []; prev = lo + 0.1
    for g, p in zip(G, slots):
        ins = mk(g); seen = False
        for q, i in enumerate(ins):
            if i.kind in MEMK: i.pos = p; seen = True
            else: i.pos = (p + 0.25) if seen else (p - 2.5)
            i.pos = max(i.pos, prev + 1.0 / 64); prev = i.pos
        out += ins
    return out

def pf_wx(newround):
    L = []
    if newround:
        L = [f"s_add_u32 s{sPFo}, s{sPFo}, s{sPFr}"]
    return [L + [f"buffer_load_dword v{vDum}, v{vPF}, {srd(sPF)}, s{sPFo} offen{OPT['wxpfnt']}", f"s_add_u32 s{sPFo}, s{sPFo}, s{sPFs}"]]
def pf_kv(first):
    L = [f"s_add_u32 s{sPj}, s{sRot}, {OPT['pfstart']}", f"s_and_b32 s{sPj}, s{sPj}, 0x1ffff"] if first else []
    if OPT['pfdma']:
        G = []
        for q in range(OPT['pfdma']):
            pre = (L + [f"s_add_u32 s{sT3}, s{sPb}, s{sPj}", f"s_add_u32 m0, s{sMx}, {3*STAGE - XOFF}"]) if q == 0 else []
            G.append(pre + [f"buffer_load_dwordx4 v{vSt}, {srd(sPK)}, s{sT3} offen{OPT['pfnt']} lds ; pf", f"s_add_u32 s{sT3}, s{sT3}, 1024"])
        G[-1] += [f"s_add_u32 s{sPj}, s{sPj}, {OPT['pfstep']}", f"s_and_b32 s{sPj}, s{sPj}, 0x1ffff"]
        return G
    return [L + [f"s_add_u32 s{sT3}, s{sPb}, s{sPj}", f"buffer_load_dword v{vDum}, v{vPK2}, {srd(sPK)}, s{sT3} offen{OPT['pfnt']}",
             f"s_add_u32 s{sPj}, s{sPj}, {OPT['pfstep']}", f"s_and_b32 s{sPj}, s{sPj}, 0x1ffff"]]

def addr_att(): return [f"v_add_u32 v{vA0}, s{sRd}, v{vKb}", f"v_add_u32 v{vA1}, s{sRd}, v{vV0b}", f"v_add_u32 v{vA2}, s{sRd}, v{vV1b}"]
def addr_qp(): return [f"v_add_u32 v{vA0}, s{sRd}, v{vWb}", f"v_add_u32 v{vA1}, s{sRd}, v{vXb}"]

def qfin_ops(s):
    ops = []
    for c in range(5):
        a = acc(2 * s, c)
        o = [f"v_mul_f32 v{a+i}, s{sC}, v{a+i}" for i in range(8)]
        o += [f"v_cvt_pk_bf16_f32 v{a+2*i}, v{a+2*i}, v{a+2*i+1}" for i in range(4)]
        o += [f"v_accvgpr_write_b32 a{Qreg(s,c)+i}, v{a+2*i}" for i in range(4)]
        ops += o
    return ops

def per_qp(m, agpr=False):
    P = Period(); P.addr = addr_qp()
    for ks in range(2):
        slot = SLOTA if ks == 0 else SLOTB
        k0 = len(P.m)
        xr = [XF + 4 * (ks * 5 + c) for c in range(5)]
        xl = mk([f"ds_read_b128 {ar(xr[c])}, v{vA1} offset:{c*2048 + ks*256}" for c in range(5)], tag='rd')
        xp = [-LEAD + 3, -LEAD + 4, -LEAD + 5, -LEAD + 8, -LEAD + 9] if ks == 0 else [3, 8, 13, 18, 23]
        for i, p in zip(xl, xp): i.pos = p
        P.f += xl
        P.f.append(W([f"a{xr[c]+i}" for c in range(5) for i in range(4)], k0 - 0.5))
        for t in range(8):
            k0 = len(P.m); r = rdW(P, k0, slot, t)
            for c in range(5):
                D = ar(Oreg(t, c)) if agpr else vr(acc(t, c))
                P.m += mk(f"{MF} {D}, {vr(r)}, {ar(xr[c])}, {'0' if (m == 0 and ks == 0) else D}")
    if 'Q' in OPT['pair']: pairup(P)
    if m == 7 and agpr:
        P.f += spread([f"v_mov_b32 v{vRl[c]}, s{sC}" for c in range(5)], 20, 40)
    elif m == 7:
        P.f += spread(qfin_ops(0), 53, 66)
        P.f += spread(qfin_ops(1), 66, 80)
    return P

def per_a0(trans=False):
    P = Period(); P.addr = addr_att()
    for s in range(4):
        for kt in range(2): grpQK(P, SLOTB, 0, kt, s, 'zero')
    if not trans:
        P.f += spread(qfin_ops(2), 0.5, 19.5)
        P.f += spread(qfin_ops(3), 19.6, 29.5)
    mx = interleave([colmax_ops(0, c, ET + 2 * c, ET + 2 * c + 1) +
                     [f"v_sub_f32 v{Mreg(c)+i}, 0, v{ET+2*c}" for i in range(4)] for c in range(5)])
    P.f += at(mk(mx), 40)
    for kt in range(2):
        for s in range(4): grpQK(P, SLOTA, 1, kt, s, 'negm')
    sub = [f"v_add_f32 v{Sreg(0,kt,c)+i}, v{Sreg(0,kt,c)+i}, v{Mreg(c)}" for kt in range(2) for c in range(5) for i in range(4)]
    P.f += spread(sub + softmax_ops(0) + ladd_ops(True), 40.5, 80)
    P.eb = OPT['eb0']
    return P

def per_att(i):
    P = Period(); P.addr = addr_att()
    par = i % 2
    if 'A' in OPT['pair']:
        for g in range(0, 8, 2):
            grpPV(P, SLOTB, par ^ 1, g, i == 1); grpPV(P, SLOTB, par ^ 1, g + 1, i == 1)
            grpQK(P, SLOTA, par ^ 1, g // 4, g % 4, 'negm'); grpQK(P, SLOTA, par ^ 1, g // 4, g % 4 + 1, 'negm')
        pairup(P)
    else:
      for g in range(8):
        grpPV(P, SLOTB, par ^ 1, g, i == 1)
        grpQK(P, SLOTA, par ^ 1, g // 4, g % 4, 'negm')
    if i == 1: P.eb = OPT['eb1']
    P.f += spread(softmax_ops(par), 2.5, 78.5)
    P.f += at(mk(check_ops(par)), 80)
    if not (OPT['a15'] and i == 14): P.f += at(mk(ladd_ops()), 80.5, 82.4)
    if OPT['pad']: P.f += spread([f"v_mov_b32 v247, v247"] * (OPT['pad'] // 4), 3, 78)
    return P

def rl_ops():
    L = []
    for c in range(5):
        d = Lreg(c); t2 = Treg(c)
        L.append([f"v_mov_b32 v{t2}, v{d}", f"v_permlane16_swap_b32 v{d}, v{t2}", f"v_add_f32 v{d}, v{d}, v{t2}",
                  f"v_mov_b32 v{t2}, v{d}", f"v_permlane32_swap_b32 v{d}, v{t2}", f"v_add_f32 v{d}, v{d}, v{t2}",
                  f"v_rcp_f32 v{vRl[c]}, v{d}"])
    return interleave(L)

def per_a15():
    P = Period(); P.addr = addr_att()
    if OPT['a15']:
        P.late = True
        for g in range(8): grpPV(P, SLOTB, 0, g, False)
        for g in range(8): grpPV(P, SLOTA, 1, g, False)
        q = 0
        for i in P.f:
            if i.kind == 'dsr' and i.pos <= 0: i.pos = 0; q += 1
        pre = at(mk(ladd_ops() + softmax_ops(1) + check_ops(2)), 0)
        pre[-1].wr = ['a15tok']
        P.pre = pre
        P.f += spread(ladd_ops() + rl_ops(), 1, 30)
        return P
    for g in range(8): grpPV(P, SLOTB, 0, g, False)
    P.f += spread(softmax_ops(1), 2.5, 39.5)
    P.f += at(mk(check_ops(1)), 40)
    for g in range(8): grpPV(P, SLOTA, 1, g, False)
    P.f += spread(ladd_ops() + rl_ops(), 40.5, 62)
    return P

def epi_ops():
    out = []
    for u in range(4):
        for c in range(5):
            k = u * 5 + c
            o = []
            if k % 4 == 0:
                o += [f"s_add_u32 s{sT2}, s{sOo}, {k*1024}"]
            o += [f"v_accvgpr_read_b32 v{TMP+i}, a{Oreg(2*u + i//4, c) + i%4}" for i in range(8)]
            o += [f"v_mul_f32 v{TMP+i}, v{vRl[c]}, v{TMP+i}" for i in range(8)]
            o += [f"v_cvt_pk_bf16_f32 v{TMP+i}, v{TMP+2*i}, v{TMP+2*i+1}" for i in range(4)]
            o += [f"buffer_store_dwordx4 {vr(TMP)}, v{vSt}, {srd(sO)}, s{sT2} offen offset:{(k%4)*1024}{OPT['ont']}"]
            out.append(o)
    out[-1] += [f"s_add_u32 s{sOo}, s{sOo}, {8*20480}"]
    return out

def norm_ops(u, c, dst, xk=None, pk0=None):
    o = [f"v_accvgpr_read_b32 v{TMP+i}, a{Oreg(2*u + i//4, c) + i%4}" for i in range(8)]
    o += [f"v_mul_f32 v{TMP+i}, v{vRl[c]}, v{TMP+i}" for i in range(8)]
    pk = ET + 4 * ((u * 5 + c) % 4) if dst[0] == 'a' else dst[1]
    if pk0 is not None and dst[0] == 'a': pk = pk0
    o += [f"v_cvt_pk_bf16_f32 v{pk+i}, v{TMP+2*i}, v{TMP+2*i+1}" for i in range(4)]
    if dst[0] == 'a': o += [f"v_accvgpr_write_b32 a{dst[1]+i}, v{pk+i}" for i in range(4)]
    if xk is not None: o += [xwr(dst, xk, c)]
    return o

op_ctr = [0]
def op_frag():
    r = POOL + 4 * (op_ctr[0] % 6); op_ctr[0] += 1
    return r
def op_group(P, areg, o, t, hh, u, first):
    k0 = len(P.m); r = op_frag()
    P.f += at(mk([f"ds_read_b64_tr_b16 {vr(r,2)}, v{areg} offset:{o}",
                  f"ds_read_b64_tr_b16 {vr(r+2,2)}, v{areg} offset:{o + 2048}"], tag='rd'), rpos(k0), rpos(k0) + 2)
    fwait(P, k0, r)
    for c in range(5):
        D = vr(acc(t, c))
        P.m += mk(f"{MF} {D}, {vr(r)}, {rr(Bfrag(hh,u,c))}, {'0' if first else D}")
tokc = [0]
def pub_ops(sp, p0, p1, hold=None, c1=None):
    L = []
    for c in range(5):
        a = acc(2 * sp, c); pk = HOLD[tokc[0] % 3] if hold is None else hold[c]; tokc[0] += 1
        L += [f"v_cvt_pk_bf16_f32 v{pk+i}, v{a+2*i}, v{a+2*i+1}" for i in range(4)]
        if c == 4: L += [f"s_add_u32 s{sPo}, s{sPo}, 4096"]
        L += [f"buffer_store_dwordx4 {vr(pk)}, v{vSt}, {srd(sO)}, s{sPo} offen offset:{(c%4)*1024} sc1"]
    L += [f"s_add_u32 s{sPo}, s{sPo}, 1024"]
    ins = spread(L, p0, p1)
    if c1 is not None:
        cv = [i for i in ins if i.is_valu()]
        for q, i in enumerate(cv): i.pos = min(i.pos, p0 + (c1 - p0) * q / len(cv))
    tok = f"tok{tokc[0]}"
    [i for i in ins if i.kind == 'vst'][-1].wr = [tok]
    return ins, tok
def dest_ops(i):
    return [x.replace(f"s{sT3}", f"s{freg(i)}") for x in dest_ops0(i)]
def freg(i): return sT3 if (i is not None and i % 2 == 0) else 91
def dest_ops0(i):
    if i is None:
        L = [f"s_lshr_b32 s{sT1}, s{sWv}, 1", f"s_add_u32 s{sT3}, s{sSig}, s{sT1}", f"s_add_u32 s{sT3}, s{sT3}, 1", f"s_and_b32 s{sT3}, s{sT3}, 7",
             f"s_mul_i32 s{sPo}, s{sT3}, 163840", f"s_add_u32 s{sPo}, s{sPo}, s{sMb}", f"s_lshl_b32 s{sT3}, s{sT3}, 11", f"s_add_u32 s{sT3}, s{sT3}, s{sFb}",
             f"s_lshl_b32 s{sTa}, s{sT1}, 8", f"s_add_u32 s{sT3}, s{sT3}, s{sTa}", f"s_mul_i32 s{sT1}, s{sT1}, 20480", f"s_add_u32 s{sPo}, s{sPo}, s{sT1}"]
    else:
        L = [f"s_add_u32 s{sT3}, s{sSig}, {1+i}", f"s_and_b32 s{sT3}, s{sT3}, 7", f"s_sub_u32 s{sT3}, s{sT3}, s{sSig}",
             f"s_mul_i32 s{sPo}, s{sT3}, 163840", f"s_add_u32 s{sPo}, s{sPo}, s{sCm}", f"s_add_u32 s{sPo}, s{sPo}, {i*20480}",
             f"s_lshl_b32 s{sT3}, s{sT3}, 11", f"s_add_u32 s{sT3}, s{sT3}, s{sCf}"]
    return L
def flag_ops(i, tok, pos):
    w = W([tok], pos - 1)
    if i is None: st = mk(f"buffer_store_dwordx2 {vr(vTag,2)}, v{vF0}, {srd(sO)}, s{freg(i)} offen sc1")
    else: st = mk(f"buffer_store_dword v{vTag}, v{vF0}, {srd(sO)}, s{freg(i)} offen offset:{i*256} sc1")
    st[0].rd = st[0].rd + [tok]; st[0].pos = pos
    return [w] + st
def per_ds0(hh, umajor=False):
    P = Period(); P.addr = [f"v_add_u32 v{vA0}, s{sRd}, v{vOb}"]
    order = [(u, t) for u in range(4) for t in range(4)] if umajor else [(u, 2 * sp + e) for sp in range(2) for u in range(4) for e in range(2)]
    if 'O' in OPT['pair'] and not umajor: order = [(up + d, 2 * sp + e) for sp in range(2) for up in (0, 2) for e in range(2) for d in range(2)]
    for (u, t) in order:
        op_group(P, vA0, u * 4096 + (t // 2) * 256 + (t % 2) * 8, t, hh, u, hh == 0 and u == 0)
    if 'O' in OPT['pair']: pairup(P)
    if hh == 3:
        P.f += at(mk(dest_ops(None)), 20, 40)
        if OPT['pw'] <= 30:
            i0, _ = pub_ops(0, 45, 75); i1, tok = pub_ops(1, 85, 112); e = 112
        else:
            i0, _ = pub_ops(0, 45, 45 + OPT['pw'], MSG, 75); e = 45 + 2 * OPT['pw']
            i1, tok = pub_ops(1, 45 + OPT['pw'], e)
        P.f += i0 + i1 + flag_ops(None, tok, e + round(80 * OPT['fd']))
    return P
def per_st(i, r):
    P = Period(); P.addr = [f"v_add_u32 v{vA0}, s{sRd}, v{vOb}", f"v_add_u32 v{vA1}, s{sPd}, v{vA0}"]
    order = [(u, e) for u in range(4) for e in range(2)]
    if 'O' in OPT['pair']: order = [(up + d, e) for up in (0, 2) for e in range(2) for d in range(2)]
    for par in range(2):
        for (u, e) in order:
            op_group(P, vA1 if par else vA0, u * 4096 + e * 8, 2 * (i % 2) + e, 2 * r + par, u, r == 0 and par == 0 and u == 0)
    if 'O' in OPT['pair']: pairup(P)
    if r == 1 and i < 7:
        P.f += at(mk(dest_ops(i)), 66, 80)
        e = 84 + (OPT['pw'] if i < 7 - max(1, OPT['pz']) else OPT['pw6'])
        ins, tok = pub_ops(i % 2, 84, e)
        P.f += ins
        if i < 7 - OPT['pz']: P.f += flag_ops(i, tok, e + round(80 * (OPT['fd'] if i < 6 else OPT['fd6'])))
    return P
spins = []
pzspin = []
def chk_ops(load, reg, cmpop, pos, tokname):
    k = len(spins); spins.append((load, cmpop))
    ins = mk([f"v_readfirstlane_b32 s{sSpin}, v{reg}", cmpop, f"s_cbranch_scc0 SPIN{k}", f"SRET{k}:"])
    ins[0].pos = pos - 2
    for x in ins[1:]: x.pos = pos
    ins[-1].wr = [tokname]
    return [W([f"v{reg}"], pos - 3)] + ins
def consume(i, pf, pc, pl, pv0, pv1, buf, pz=False):
    B = {'M': MSG, '1': [acc(2, c) for c in range(5)], '0': [acc(0, c) for c in range(5)], '2': [acc(1, c) for c in range(5)]}[buf]
    fl = vFl if i % 2 == 0 else vFl2
    ldt = [f"s_add_u32 s{sT1}, s{sCm}, {i*20480 + 1024}"] + \
          [f"buffer_load_dwordx4 {vr(B[c])}, v{vSt}, {srd(sO)}, s{sT1} offen offset:{(c-1)*1024} sc1" for c in range(1, 5)] + \
          [f"s_sub_u32 s{sT1}, s{sT1}, 1024", f"buffer_load_dwordx4 {vr(B[0])}, v{vSt}, {srd(sO)}, s{sT1} offen sc1"]
    F = []
    if not pz:
        load = f"buffer_load_dword v{fl}, off, {srd(sO)}, s{sCf} offset:{i*256} sc1"
        F += at(mk(load), pf)
        F += chk_ops(load, fl, f"s_cmp_eq_u32 s{sSpin}, s{sTag}", pc, f"chk{i}")
    ld = mk(ldt)
    for q, x in enumerate(ld):
        x.pos = pl + max(0, 2 * q - 1)
        if x.kind == 'vld' and not pz: x.rd = x.rd + [f"chk{i}"]
    F += ld
    if pz:
        regs = [B[c] + j for c in (1, 2, 3, 4, 0) for j in range(4)]
        chk = [f"v_max3_u32 v{fl}, v{regs[0]}, v{regs[1]}, v{regs[2]}"]
        for q in range(3, 19, 2): chk.append(f"v_max3_u32 v{fl}, v{fl}, v{regs[q]}, v{regs[q+1]}")
        chk += [f"v_max_u32 v{fl}, v{fl}, v{regs[19]}", f"v_cmp_eq_u32 vcc, -1, v{fl}"]
        pzspin.append((i, [x.replace(f"s{sT1}", f"s{sSpin}") for x in ldt], chk))
        if pc < 80 * 64: F.append(W([f"v{B[0]}"], pc - 8))
        F += at(mk(chk), pc - 7, pc - 1)
        br = at(mk([f"s_cbranch_vccnz PZSPIN{i}", f"PZRET{i}:"]), pc)
        br[1].wr = ['scc']
        F += br
    V = []
    tail = pv0 >= 80 * 64
    for c in (1, 2, 3, 4, 0):
        for j in range(4):
            x = B[c] + j; r0, r1 = RREG[c * 8 + 2 * j], RREG[c * 8 + 2 * j + 1]; t = vT1
            if tail: r0, r1 = acc(2, c) + 2 * j, acc(2, c) + 2 * j + 1
            if i == 0: V += [f"v_lshlrev_b32 v{r0}, 16, v{x}", f"v_and_b32 v{r1}, s{sC}, v{x}"]
            else: V += [f"v_lshlrev_b32 v{t}, 16, v{x}", f"v_and_b32 v{x}, s{sC}, v{x}", f"v_add_f32 v{r0}, v{r0}, v{t}", f"v_add_f32 v{r1}, v{r1}, v{x}"]
    if not tail and not pz: F.append(W([f"v{B[0]}"], pv0 - 1))
    F += spread(V, pv0, pv1)
    return F

def dma_op(j):
    D = [f"buffer_load_dwordx4 v{vDx[i%4]}, {srd(sWoS)}, s{sOp if i < 4 else sT0} offen offset:{(i%4)*1024}{OPT['wont']} lds" for i in range(8)]
    G = [[f"s_add_u32 m0, s{sWr}, s{sMw}", D[0]], [D[1]], [D[2]], [D[3]],
         [f"s_add_u32 m0, m0, 0x1000", f"s_add_u32 s{sT0}, s{sOp}, 0x8000", D[4]], [D[5]], [D[6]], [D[7]]]
    if j in (0, 2): adv = [f"s_add_u32 s{sOp}, s{sOp}, s{sOpd}"]
    elif j == 1: adv = [f"s_sub_u32 s{sOp}, s{sOp}, s{sOpd}", f"s_add_u32 s{sOp}, s{sOp}, 0x100000"]
    elif j % 2 == 0: adv = [f"s_add_u32 s{sOp}, s{sOp}, 0x100000"]
    else:
        i = (j + 1) // 2
        adv = [f"s_add_u32 s{sOp}, s{sSig}, {1+i}", f"s_and_b32 s{sOp}, s{sOp}, 7", f"s_lshl_b32 s{sOp}, s{sOp}, 7", f"s_add_u32 s{sOp}, s{sOp}, s{sOpB}"]
    G[-1] = G[-1] + adv
    return G

def build_k1(g2=False):
    periods = []
    def att(trans, upto=15):
        periods.append(per_a0(trans))
        for i in range(1, upto): periods.append(per_att(i))
        if upto == 15: periods.append(per_a15())
    if g2:
        for m in range(8): periods.append(per_qp(m, True))
        for m in range(8): periods.append(per_qp(m))
        att(False); att(True, 8)
    else:
        for r in range(2):
            for m in range(8): periods.append(per_qp(m))
            att(False)
        for j in range(4): periods.append(per_ds0(j, umajor=(j in (1, 2))))
        for i in range(2, 8):
            for r in range(2): periods.append(per_st(i, r))
    assert pool_ctr[0] % NPOOL == 0
    for n, P in enumerate(periods[:-1]):
        eb = getattr(P, 'eb', 0)
        if eb:
            periods[n + 1].bshift = 80 - LEAD - eb
            lim = eb - 7
            for i in sorted([i for i in P.f if i.kind == 'dsr'], key=lambda i: -i.pos):
                i.pos = min(i.pos, lim); lim = i.pos - 1
    def dma_for(n2):
        cur_n2[0] = n2
        if g2:
            if n2 < 16:
                G = dma_qp()
                if n2 == 8: G[0] = [f"s_sub_u32 s{sWo}, s{sWo}, 2048"] + (rot_ops() if OPT['g2rot'] else []) + G[0]
                return G
            j = 8 + n2 % 16
            if n2 == 32:
                G = dma_kv(SLOTB, 'K') + dma_kv(SLOTA, 'K')
                G[0] = [f"s_add_u32 s{sKVb}, s{sKVb}, 0x100000"] + G[0]
                return G
        else:
            if n2 >= 64: return []
            if n2 >= 48: return dma_op(n2 - 48)
            j = n2 % 24
        if j < 8:
            G = dma_qp()
            if j == 0: G[0] = next_round_ops()[0] + G[0]
            return G
        if j == 8: return dma_kv(SLOTB, 'K') + dma_kv(SLOTA, 'K')
        if j == 23: return dma_kv(SLOTB, 'V') + dma_kv(SLOTA, 'V')
        return dma_kv(SLOTB, 'V') + dma_kv(SLOTA, 'K')
    M = []; F = []
    for n, P in enumerate(periods):
        base = 80 * n
        assert len(P.m) == 80
        M += P.m
        late = getattr(P, 'late', False)
        if not late:
            for i in P.f: i.pos = round(i.pos * 256) / 256.0 + base; F.append(i)
        b0 = base - LEAD - getattr(P, 'bshift', 0)
        span = 80 + getattr(P, 'bshift', 0) - (getattr(periods[n + 1], 'bshift', 0) if n + 1 < len(periods) else 0)
        pre = [f"s_add_u32 s{sWr}, s{sRd}, s{sMw}",
               f"s_add_u32 s{sRd}, s{sRd}, {STAGE}",
               f"s_cmp_eq_u32 s{sRd}, {3*STAGE}",
               f"s_cselect_b32 s{sRd}, 0, s{sRd}"] + P.addr
        pi = at(mk(pre), b0 - 5, b0 - 0.1); pi[3].pos = pi[2].pos
        F += pi
        if late:
            for i in P.pre: i.pos = base; F.append(i)
            b0 = base
        if OPT['stamp'] and late: F += at(mk("s_memtime s[50:51]"), b0)
        elif OPT['stamp']: F += at(mk("s_memrealtime s[50:51]" if (OPT['probe'] or OPT['stamp'] == 3) else "s_memtime s[50:51]"), b0 - 0.05)
        bi = at(mk("s_barrier", tag='barwait'), b0)
        if late:
            bi[0].rd = ['a15tok']
            if OPT['stamp']: F[-1].rd = ['a15tok']
        F += bi
        if OPT['stamp']: F += at(mk(["s_mov_b32 m0, s45", "s_add_u32 s45, s45, 1", "v_writelane_b32 v235, s50, m0"]), b0 + 0.01)
        if late:
            for i in P.f: i.pos = round(i.pos * 256) / 256.0 + base; F.append(i)
        G = dma_for(n + 2)
        j = n % 24
        wo = [int(x) for x in OPT['wopf'].split(',') if x != '']
        if n in wo:
            G = G + [[f"buffer_load_dword v{vDum}, v{vPK}, {srd(sWoS)}, s{sPb} offen{OPT['wopfnt']}", f"s_add_u32 s{sPb}, s{sPb}, 8192"]]
            if n == wo[0]: G[-1] = [f"s_mov_b32 s{sPb}, s{sPi}"] + G[-1]
        if not G: continue
        slots = [b0 + 4 + 5 * q for q in range(13)] if len(G) <= 13 else [b0 + 3 + 5 * (q // 2) + (q % 2) for q in range(26)]
        if span != 80: slots = [x for x in [5 * ((b0 + 4) // 5) + 4 + 5 * q for q in range(30)] if x < b0 + span - 12]
        if span < 60: slots = [x for x in [5 * ((b0 + 4) // 5) + 3 + 5 * (q // 2) + (q % 2) for q in range(60)] if x < b0 + span - 10]
        if OPT['uni'] and span == 80 and len(G) == 8 and n + 2 < 48: slots = [b0 + OPT['uni'] + 10 * q for q in range(8)]
        if late: slots = [x for x in [b0 + 3 + 5 * (q // 2) + (q % 2) for q in range(26)] if x < b0 + 55]
        step = len(slots) / len(G)
        if OPT['dense'] and len(G) == 8 and n + 2 < 48:
            slots = [b0 + 3 + 5 * (q // 2) + (q % 2) for q in range(26)] if OPT['dense'] in (1, 3) else slots
            if OPT['dense'] == 3 and (n % 24) >= 9: slots = slots[18:]
            if OPT['dense'] == 4 and (n % 24) >= 9: slots = slots[5:]
            step = 1
        pg = place_groups(G, [slots[int(gi * step)] for gi in range(len(G))], b0)
        if OPT['cap'] and len(G) == 8 and n + 2 < 48 and ((n >= 8 + OPT['capfrom']) if g2 else ((n % 24) >= OPT['capfrom'])):
            for i in pg:
                cv = OPT['cap1'] if (OPT['cap1'] and n < (33 if g2 else 24)) else OPT['cap']
                if i.kind == 'dma': i.vm = cv - 1; i.text += f" ; cap{cv}"
        if OPT['capq'] and len(G) == 13 and n in (22, 23):
            for i in pg:
                if i.kind == 'dma': i.vm = OPT['capq'] - 1; i.text += " ; cap"
        if OPT['capo'] and n in (46, 47, 48, 49):
            for i in pg:
                if i.kind == 'dma': i.vm = OPT['capo'] - 1; i.text += " ; cap"
        F += pg
    def B0(n): return 80 * n - LEAD
    def mem_at(lines, p0, step=5):
        ins = mk(lines)
        for q, i in enumerate(ins): i.pos = p0 + step * q if isinstance(step, (int, float)) else step[q]
        if OPT['w64']:
            out = []
            for i in ins:
                if i.op == 'ds_write_b128':
                    m = re.match(r"ds_write_b128 (v\d+), ([va])\[(\d+):\d+\] offset:(\d+)", i.text)
                    a, t, r, o = m.group(1), m.group(2), int(m.group(3)), int(m.group(4))
                    out += at(mk([f"ds_write_b64 {a}, {t}[{r}:{r+1}] offset:{o}", f"ds_write_b64 {a}, {t}[{r+2}:{r+3}] offset:{o+8}"]), i.pos, i.pos + 2)
                else: out.append(i)
            ins = out
        return ins
    flat = [x for u in (2, 0, 1, 3) for c in range(5) for x in norm_ops(u, c, ('a', Oreg(2 * u, c)) if u < 3 else PK3[c])]
    q1 = 8 if g2 else 24
    fl = spread(flat, 5, 80 * 6 - LEAD)
    for i in fl: i.pos = round(i.pos * 256) / 256.0 + 80 * q1
    F += fl
    for n, k in ((q1 + 6, 2), (q1 + 7, 0), (q1 + 8, 1)):
        F += mem_at([xwr(('a', Oreg(2 * k, c)), k, c) for c in range(5)], B0(n) + 20, 5)
    if g2:
        F += mem_at([xrd(Bfrag(0, u, c), u, c, True) for u in range(3) for c in range(5)], 0, [80 * 31 + 3 + 5 * (q // 2) + (q % 2) for q in range(15)])
        mv = [f"v_accvgpr_mov_b32 a{Qreg(3,c)+i}, a{PK3[c][1]+i}" if PK3[c][0] == 'a' else f"v_accvgpr_write_b32 a{Qreg(3,c)+i}, v{PK3[c][1]+i}" for c in range(5) for i in range(4)]
        F += spread(mv, 80 * 31 + (31 if OPT['a15'] else 41), 80 * 31 + (52 if OPT['a15'] else 62))
        win = [(80 * 31 + 63, 80 * 32 + 5), (80 * 32 + 5, 80 * 32 + 22), (80 * 32 + 22, 80 * 32 + 39.5)]
        if OPT['a15']: win = [(80 * 31 + 54, 80 * 31 + 76), (80 * 31 + 76, 80 * 32 + 18), (80 * 32 + 18, 80 * 32 + 39.5)]
        for u in range(3):
            F += spread([x for c in range(5) for x in norm_ops(u, c, ('v', Preg(0, c)), xk=u)], *win[u])
        F += spread([x for c in range(5) for x in norm_ops(3, c, PK3[c], pk0=Preg(1, c))], 80 * 32 + 41, 80 * 32 + 62)
    else:
        F += op_extras(B0, mem_at)
    return finish(M, F)

def op_extras(B0, mem_at):
    F = []
    if OPT['qn']:
        for n in list(range(OPT['qlo'], OPT['qhi'])) + list(range(OPT['qlo2'], OPT['qhi2'])):
            for q in range(16): F += at(mk(f"s_nop {OPT['qn']}"), 80 * n + 5 * q + 2.5)
    rd47 = [xrd(Bfrag(0, u, c), u, c, True) for u in range(3) for c in range(5)]
    F += mem_at(rd47, 80 * 47 + 3, [80 * 47 + 3 + 5 * (q // 2) + (q % 2) for q in range(15)])
    rd47b = [xrd(Bfrag(1, u, c), u, c, False) for u in (2, 0) for c in range(5)]
    F += mem_at(rd47b, 0, [80 * 47 + 43 + 5 * (q // 3) + (q % 3) for q in range(10)])
    F.append(W([f"a{160+i}" for i in range(60)], 80 * 48 - 0.5))
    F += mem_at([xrd(Bfrag(1, 1, c), 1, c, False) for c in range(5)], 80 * 48 + 5)
    F += mem_at([xwr(PK3[c], 0, c) for c in range(5)], B0(48) + 5)
    nrm = lambda u: [x for c in range(5) for x in norm_ops(u, c, Bfrag(2, u, c))]
    if OPT['a15']:
        F += spread(nrm(0), 80 * 47 + 54, 80 * 48 + 20)
    else: F += spread(nrm(0), 80 * 47 + 63, 80 * 48 + 35)
    F += mem_at([xwr(Bfrag(2, 0, c), 2, c) for c in range(5)], 80 * 48 + 38, 4)
    F += spread(nrm(1), 80 * 48 + (20 if OPT['a15'] else 35), 80 * 49 + (0 if OPT['a15'] else 10))
    F += mem_at([xrd(Bfrag(1, 3, c), 0, c, False) for c in range(5)] + [xrd(Bfrag(3, 0, c), 2, c, False) for c in range(5)], B0(49) + 5)
    F += mem_at([xwr(Bfrag(2, 1, c), 1, c) for c in range(5)], 80 * 49 + 38, 4)
    F += spread(nrm(2), 80 * 49 + (0 if OPT['a15'] else 10), 80 * 49 + 60)
    F += spread(nrm(3), 80 * 49 + 60, 80 * 50 + 35)
    F += mem_at([xrd(Bfrag(3, 1, c), 1, c, False) for c in range(5)] + [xwr(Bfrag(2, 2, c), 0, c) for c in range(5)], B0(50) + 5)
    F += mem_at([xwr(Bfrag(2, 3, c), 2, c) for c in range(5)], 80 * 50 + 38, 4)
    F += mem_at([xrd(Bfrag(3, 2, c), 0, c, False) for c in range(5)] + [xrd(Bfrag(3, 3, c), 2, c, False) for c in range(5)], 0,
                [B0(51) + 3 + 5 * (q // 3) + (q % 3) for q in range(10)])
    eload = f"buffer_load_dword v{vEp}, off, {srd(sDbg)}, s{sSpin2} sc1"
    el = at(mk(eload), 80 * 46 + 30)
    F += el
    F += chk_ops(eload, vEp, f"s_cmp_lg_u32 s{sSpin}, 0", 80 * 47 + 70, "chke")
    late = [f"s_mov_b32 s{sTag}, s{sSpin}", f"s_mov_b32 s{sC}, 0xffff0000"]
    li = at(mk(late), 80 * 47 + 70.5, 80 * 47 + 72); li[0].rd = li[0].rd + ["chke"]
    F += li
    lv = [f"v_mov_b32 v{vTag}, s{sTag}", f"v_mov_b32 v{vTag+1}, s{sTag}",
          f"v_min_u32 v{vF0}, 16, v{vSt}", f"v_lshlrev_b32 v{vF0}, 26, v{vF0}"]
    F += spread(lv, 80 * 50 + 40, 80 * 50 + 60)
    F += spread([f"v_and_b32 v{vOut}, 0xf0, v{vSt}", f"v_lshlrev_b32 v{vOut}, 7, v{vOut}", f"v_lshrrev_b32 v{vOut+1}, 8, v{vSt}", f"v_lshl_add_u32 v{vOut}, v{vOut+1}, 4, v{vOut}"], 80 * 63 + 50, 80 * 63 + 60)
    F += at(mk([f"s_lshr_b32 s{sT1}, s{sWv}, 1", f"s_lshl_b32 s{sT1}, s{sT1}, 8", f"v_add_u32 v{vOb}, s{sT1}, v{vOb}"]), 80 * 51 + 2, 80 * 51 + 10)
    T = lambda x: 80 * x
    PZ = list(range(7 - OPT['pz'], 7))
    if PZ:
        pq = MSG[0]
        F += spread([f"v_mov_b32 v{pq+j}, -1" for j in range(4)], 80 * 48 + 2, 80 * 48 + 6)
        L = []
        for i in PZ:
            L += [f"s_add_u32 s{sT1}, s{sCm}, {i*20480 + 1024}"] + \
                 [f"buffer_store_dwordx4 {vr(pq)}, v{vSt}, {srd(sO)}, s{sT1} offen offset:{(c-1)*1024} sc1" for c in range(1, 5)] + \
                 [f"s_sub_u32 s{sT1}, s{sT1}, 1024", f"buffer_store_dwordx4 {vr(pq)}, v{vSt}, {srd(sO)}, s{sT1} offen sc1"]
        F += at(mk(L), 80 * 48 + 8, 80 * 50 + 70)
    for i, spec in enumerate(OPT['cs'].split(';')):
        q = spec.split(',')
        F += consume(i, *[round(T(float(x))) for x in q[:5]], q[5], i in PZ)
    F += spread([f"v_add_f32 v{acc(2,c)+j}, v{acc(2,c)+j}, v{RREG[c*8+j]}" for c in range(5) for j in range(8)], T(64.3), T(64.85))
    fin = []
    for c in range(5):
        a = acc(2, c)
        fin += [f"v_cvt_pk_bf16_f32 v{a+i}, v{a+2*i}, v{a+2*i+1}" for i in range(4)]
        fin += [f"buffer_store_dwordx4 {vr(a)}, v{vOut}, {srd(sOutS)}, s{sOutO} offen{OPT['outf']}", f"s_add_u32 s{sOutO}, s{sOutO}, 32768"]
    F += spread(fin, T(66.1), T(67))
    return F

def finish(M, F):
    dr = OPT['drop']
    if 'L' in dr: F = [i for i in F if not (i.kind == 'vld' and 'dwordx4' in i.op)]
    if 'F' in dr: F = [i for i in F if not ((i.kind == 'branch' and 'SPIN' in i.text))]
    if 'G' in dr: F = [i for i in F if not (i.kind == 'vld' and i.op == 'buffer_load_dword' and i.pos > 80 * 48)]
    if 'P' in dr: F = [i for i in F if not (i.kind == 'vst' and 'dwordx4' in i.op and i.pos < 80 * 64)]
    if 'N' in dr: F = [i for i in F if not (i.is_valu() and 80 * 24 + 4 < i.pos < 80 * 30 and i.op not in ('v_add_u32', 'v_writelane_b32'))]
    if 'X' in dr: F = [i for i in F if not (i.op == 'ds_read_b128' and 80 * 24 < i.pos < 80 * 31)]
    if 'Q' in dr: F = [i for i in F if not (i.kind == 'dma' and 80 * 23 < i.pos < 80 * 29)]
    if 'W' in dr: F = [i for i in F if not (i.op == 'ds_read_b64_tr_b16' and 80 * 24 < i.pos < 80 * 31)]
    if 'A' in dr: F = [i for i in F if not (i.op == 'v_add_f32' and 80 * 8 < i.pos < 80 * 48)]
    if 'B' in dr: F = [i for i in F if not (i.kind == 'branch' and 'RARE' in i.text)]
    if 'D' in dr: F = [i for i in F if i.kind != 'dma']
    if 'E' in dr: F = [i for i in F if i.kind != 'trans']
    if 'V' in dr: F = [i for i in F if not (i.kind == 'valu' and i.op in ('v_add_f32', 'v_cvt_pk_bf16_f32'))]
    if 'R' in dr: F = [i for i in F if i.kind != 'dsr']
    if 'S' in dr: F = [i for i in F if i.kind != 'vst']
    if 'C' in dr: F = [i for i in F if not (i.kind == 'branch' or i.kind == 'label')]
    for i in F:
        i.pos = round(i.pos * 256) / 256.0
        if i.kind == 'vld' and i.wr == [f"v{vDum}"]: i.wr = []
    seq = gap_schedule(M, F, OPT['early'], OPT['late']) if OPT['sched'] else merge_global(M, F)
    segs = [[]]
    for i in seq:
        if i.kind == 'barrier': segs.append([])
        segs[-1].append(i)
    return segs

def merge_global(M, F):
    fl = sorted(enumerate(F), key=lambda e: (e[1].pos, e[0]))
    out = []; j = 0
    for k, m in enumerate(M):
        while j < len(fl) and fl[j][1].pos <= k:
            out.append(fl[j][1]); j += 1
        out.append(m)
    out += [e[1] for e in fl[j:]]
    return out

def k1_setup():
    cexp = math.log2(math.e) / math.sqrt(128.0)
    n = OPT['cpf']
    CPF = "" if not n else f"""s_getpc_b64 s[62:63]
s_lshr_b32 s5, s2, 3
s_lshl_b32 s5, s5, 2
v_add_u32 v21, s5, v20
v_mul_u32_u24 v21, {n}, v21
v_min_u32 v22, {n-1}, v0
v_add_u32 v21, v21, v22
v_min_u32 v21, CODE_LINES, v21
v_lshlrev_b32 v21, 7, v21
global_load_dword v{vDum}, v21, s[62:63]"""
    A = mk(f"""
s_cmp_ge_u32 s2, 256
s_cbranch_scc1 K1_END
s_and_b32 s3, s2, 7
s_lshr_b32 s4, s3, 2
s_mul_i32 s4, s4, 40
s_add_u32 s6, s0, s4
s_addc_u32 s7, s1, 0
s_load_dwordx8 s[52:59], s[6:7], 0
s_load_dwordx2 s[60:61], s[0:1], 96
s_load_dwordx2 s[78:79], s[6:7], 32
s_load_dwordx2 s[{sOutS}:{sOutS+1}], s[0:1], 80
s_load_dwordx2 s[{sDbg}:{sDbg+1}], s[0:1], 88
s_memrealtime s[46:47]
v_lshrrev_b32 v20, 6, v0
v_and_b32 v0, 63, v0
v_readfirstlane_b32 s{sWv}, v20
{CPF}
v_lshrrev_b32 v20, 4, v0
v_bfe_u32 v21, v0, 2, 2
v_and_b32 v22, 3, v0
s_lshr_b32 s5, s2, 3
s_bfe_u32 s{62 if OPT['xmap'] == 0 else 63}, s3, 0x10001
s_and_b32 s{63 if OPT['xmap'] == 0 else 62}, s3, 1
s_lshr_b32 s71, s5, 2
s_lshl_b32 s62, s62, 3
s_add_u32 s64, s71, s62
s_and_b32 s4, s5, 3
s_lshl_b32 s65, s4, 1
s_lshl_b32 s63, s63, 4
s_add_u32 s63, s65, s63
s_lshr_b32 s66, s{sWv}, 1
s_and_b32 s67, s{sWv}, 1
s_add_u32 s65, s63, s66
s_lshl_b32 s{sMw}, s{sWv}, 12
s_lshl_b32 s{sMx}, s{sWv}, 10
s_add_u32 s{sMx}, s{sMx}, {XOFF}
s_lshl_b32 s{sWo}, s65, 8
s_lshl_b32 s68, s67, 17
s_add_u32 s{sWo}, s{sWo}, s68
s_mul_i32 s69, s64, 163840
s_mul_i32 s68, s{sWv}, 40960
s_add_u32 s{sKi}, s69, s68
s_lshl_b32 s70, s4, 1
s_add_u32 s70, s70, s71
s_and_b32 s70, s70, 7
s_mov_b32 s{sVi}, s3
v_lshlrev_b32 v25, 4, v22
v_lshl_add_u32 v25, v20, 6, v25
v_lshl_add_u32 v{vDkv0}, v21, 8, v25
v_xor_b32 v{vDkv1}, 32, v{vDkv0}
v_lshl_add_u32 v{vDw[0]}, v21, 13, v25
v_add_u32 v{vDw[1]}, {31744}, v{vDw[0]}
v_add_u32 v{vDw[2]}, {2*31744}, v{vDw[0]}
v_add_u32 v{vDw[3]}, {3*31744}, v{vDw[0]}
v_lshrrev_b32 v24, 5, v0
v_lshlrev_b32 v25, 1, v24
v_xor_b32 v25, v25, v22
v_lshlrev_b32 v25, 4, v25
v_and_b32 v23, 1, v20
v_lshl_add_u32 v25, v23, 6, v25
v_lshl_add_u32 v25, v21, 10, v25
v_lshl_add_u32 v{vDx[0]}, v24, 12, v25
v_add_u32 v{vDx[1]}, 7168, v{vDx[0]}
v_add_u32 v{vDx[2]}, {2*7168}, v{vDx[0]}
v_add_u32 v{vDx[3]}, {3*7168}, v{vDx[0]}
s_mov_b32 s{sX+2}, 2621440
s_mov_b32 s{sX+3}, 0x20000
s_mov_b32 s{sW+2}, 4194304
s_mov_b32 s{sW+3}, 0x20000
s_bfe_u32 s{sG2}, s2, {0x10000 + 5 + OPT['g2bit'] if OPT['g2'] else 0}
s_xor_b32 s{sG2}, s{sG2}, {OPT['g2inv']}
s_lshl_b32 s68, s{sG2}, 11
s_add_u32 s{sWo}, s{sWo}, s68
s_mul_i32 s68, s{sG2}, {STAGE}
s_add_u32 s{sWr}, s{sMw}, s68
s_waitcnt lgkmcnt(0)
s_mov_b32 s{sX}, s52
s_mov_b32 s{sX+1}, s53
s_mov_b32 s{sW}, s58
s_mov_b32 s{sW+1}, s59
s_mov_b32 s{sXb}, s{sKi}
s_mov_b32 s{sXc}, 0
s_mov_b32 s{sQr}, s70
s_mov_b32 s71, s{sVi}
""") + (mk(rot_ops()) if OPT['qrot0'] else [])
    for i in A:
        if i.kind == 'vld': i.wr = []
    pf = []
    D0 = mk([x for g in dma_qp() for x in g])
    D1 = mk(f"s_add_u32 s{sWr}, s{sWr}, {STAGE}", tag='vmreset') + mk([x for g in dma_qp() for x in g])
    B = mk(f"""
s_mul_i32 s68, s{sG2}, {2*STAGE}
s_sub_u32 s{sRd}, {2*STAGE}, s68
s_lshl_b32 s68, s64, 5
s_add_u32 s68, s68, s65
s_lshl_b32 s{sPb}, s68, 17
s_lshl_b32 s68, s67, 12
s_add_u32 s{sKVb}, s{sPb}, s68
s_mul_i32 s{sKi}, s2, {OPT['rot']*0x2000*OPT['ra']}
s_lshr_b32 s68, s2, {OPT['rsh']}
s_mul_i32 s68, s68, {OPT['rot']*0x2000*OPT['rb']}
s_add_u32 s{sKi}, s{sKi}, s68
s_and_b32 s{sKi}, s{sKi}, 0x1ffff
s_mov_b32 s{sVi}, s{sKi}
s_lshr_b32 s62, s71, 2
s_lshl_b32 s68, s62, 4
s_add_u32 s68, s68, s64
s_lshl_b32 s{sSpin2}, s68, 3
s_mul_i32 s{sMb}, s68, {8*163840}
s_mul_i32 s4, s67, 10240
s_add_u32 s{sMb}, s{sMb}, s4
s_lshl_b32 s{sFb}, s68, 14
s_lshl_b32 s4, s67, 7
s_add_u32 s{sFb}, s{sFb}, s4
s_add_u32 s{sFb}, s{sFb}, {FLAGB}
{"s_and_b32 s68, s71, 1" if OPT['xmap'] == 0 else "s_bfe_u32 s68, s71, 0x10001"}
s_lshl_b32 s68, s68, 2
s_and_b32 s4, s5, 3
s_add_u32 s{sSig}, s68, s4
s_mul_i32 s4, s64, {OPT['orot']}
s_add_u32 s{sSig}, s{sSig}, s4
s_and_b32 s{sSig}, s{sSig}, 7
s_mul_i32 s{sCm}, s{sSig}, 163840
s_add_u32 s{sCm}, s{sCm}, s{sMb}
s_mul_i32 s4, s66, 5120
s_add_u32 s{sCm}, s{sCm}, s4
s_lshl_b32 s{sCf}, s{sSig}, 11
s_add_u32 s{sCf}, s{sCf}, s{sFb}
s_lshl_b32 s4, s66, 2
s_add_u32 s{sCf}, s{sCf}, s4
s_lshl_b32 s4, s64, 1
s_add_u32 s4, s4, s67
s_mul_i32 s{sOutO}, s4, {80*2048}
s_lshl_b32 s4, s62, 10
s_add_u32 s{sOutO}, s{sOutO}, s4
s_lshl_b32 s4, s{sSig}, 7
s_add_u32 s{sOutO}, s{sOutO}, s4
s_lshl_b32 s4, s66, 6
s_add_u32 s{sOutO}, s{sOutO}, s4
s_lshl_b32 s{sOpB}, s65, 17
s_lshl_b32 s68, s67, 16
s_add_u32 s{sOpB}, s{sOpB}, s68
s_add_u32 s4, s{sSig}, s66
s_add_u32 s4, s4, 1
s_and_b32 s4, s4, 7
s_lshl_b32 s4, s4, 7
s_add_u32 s{sOp}, s{sOpB}, s4
s_lshl_b32 s68, s66, 18
s_sub_u32 s{sOpd}, 0x20000, s68
s_lshl_b32 s68, s66, 15
s_sub_u32 s{sPd}, 0x4000, s68
s_mov_b32 s{sC}, {f2h(cexp)}
s_mov_b32 s{sTh}, {f2h(OPT['thresh'])}
s_mov_b32 s{sRound}, 0
s_lshl_b32 s69, s66, 13
s_mul_i32 s70, s67, 10240
s_add_u32 s70, s70, {XOFF}
v_and_b32 v23, 1, v21
v_lshlrev_b32 v23, 1, v23
v_xor_b32 v23, v23, v20
v_lshlrev_b32 v23, 4, v23
v_lshl_add_u32 v23, v22, 6, v23
v_lshl_add_u32 v{vKb}, v21, 10, v23
v_add_u32 v{vKb}, s69, v{vKb}
v_lshl_add_u32 v{vXb}, v21, 9, v23
v_add_u32 v{vXb}, s70, v{vXb}
v_and_b32 v23, 1, v20
v_lshlrev_b32 v23, 5, v23
v_lshlrev_b32 v24, 3, v22
v_xor_b32 v23, v23, v24
v_lshl_add_u32 v23, v21, 6, v23
v_lshl_add_u32 v23, v20, 10, v23
v_add_u32 v{vV0b}, s69, v23
v_xor_b32 v{vV1b}, 32, v{vV0b}
v_lshlrev_b32 v23, 4, v22
v_lshl_add_u32 v23, v21, 6, v23
v_lshl_add_u32 v23, v20, 11, v23
v_add_u32 v{vWb}, s69, v23
{"v_mov_b32 v%d, v%d" % (vWb, vV0b) if OPT['wcf'] else ""}
v_lshlrev_b32 v{vSt}, 4, v0
v_lshlrev_b32 v{vPK}, 7, v0
v_and_b32 v23, 1, v20
v_lshlrev_b32 v23, 1, v23
v_xor_b32 v23, v23, v22
v_lshlrev_b32 v23, 4, v23
v_lshl_add_u32 v23, v21, 6, v23
v_lshl_add_u32 v23, v20, 9, v23
s_lshl_b32 s69, s66, 14
v_add_u32 v{vOb}, s69, v23
s_mul_i32 s69, s{sWv}, 5120
s_add_u32 s69, s69, {XOFF}
v_add_u32 v{vXo0}, s69, v{vSt}
v_add_u32 v{vXo2}, {2*STAGE}, v{vXo0}
s_xor_b32 s69, s{sWv}, 2
s_mul_i32 s69, s69, 5120
s_add_u32 s69, s69, {XOFF}
v_add_u32 v{vXp0}, s69, v{vSt}
v_add_u32 v{vXp2}, {2*STAGE}, v{vXp0}
s_mov_b32 s{sWoS}, s78
s_mov_b32 s{sWoS+1}, s79
s_mov_b32 s{sWoS+2}, 4194304
s_mov_b32 s{sWoS+3}, 0x20000
s_mov_b32 s{sK}, s54
s_mov_b32 s{sK+1}, s55
s_mov_b32 s{sK+2}, 67108864
s_mov_b32 s{sK+3}, 0x20000
s_mov_b32 s{sV}, s56
s_mov_b32 s{sV+1}, s57
s_mov_b32 s{sV+2}, 67108864
s_mov_b32 s{sV+3}, 0x20000
s_mov_b32 s{sO}, s60
s_mov_b32 s{sO+1}, s61
s_mov_b32 s{sO+2}, {FLAGB + 524288}
s_mov_b32 s{sO+3}, 0x20000
s_mov_b32 s{sOutS+2}, 5242880
s_mov_b32 s{sOutS+3}, 0x20000
s_mov_b32 s{sDbg+2}, 256
s_mov_b32 s{sDbg+3}, 0x20000
s_add_u32 s4, s{sSig}, s{sWv}
s_cmp_lg_u32 s4, 0
s_cbranch_scc1 K1_NOEP
s_or_b32 s4, s46, 1
v_mov_b32 v24, s4
v_lshlrev_b32 v25, 20, v0
buffer_store_dword v24, v25, {srd(sDbg)}, s{sSpin2} offen sc1 ; nc
K1_NOEP:
""")
    def stp(k): return mk(["s_memtime s[50:51]", "s_waitcnt lgkmcnt(0)", f"v_writelane_b32 v246, s50, {k}"]) if OPT['stamp'] == 2 else []
    return A + stp(2) + pf + D0 + stp(3) + (B + stp(4) + D1 if OPT['d1late'] else D1 + B) + stp(5) + (mk("s_waitcnt vmcnt(13)") if OPT['stamp'] == 2 else []) + stp(6)

def rare(name):
    par = min(name, 1)
    L = [f"RARE{name}:", "s_nop 15"]
    d, t2, f = TMP, TMP + 1, TMP + 2
    for c in range(5):
        L += colmax_ops(par, c, d, t2)
        L += [f"v_max_f32 v{d}, 0, v{d}", f"v_ceil_f32 v{d}, v{d}", f"v_exp_f32 v{f}, -v{d}"]
        if name == 2:
            for i in range(4):
                x = Preg(0, c) + i
                L += [f"v_lshlrev_b32 v{TMP+4}, 16, v{x}", f"v_and_b32 v{TMP+5}, 0xffff0000, v{x}", f"v_mul_f32 v{TMP+4}, v{TMP+4}, v{f}",
                      f"v_mul_f32 v{TMP+5}, v{TMP+5}, v{f}", f"v_cvt_pk_bf16_f32 v{x}, v{TMP+4}, v{TMP+5}"]
        L += [f"v_sub_f32 v{Mreg(c)+i}, v{Mreg(c)+i}, v{d}" for i in range(4)]
        L += [f"v_sub_f32 v{blk(c)+i}, v{blk(c)+i}, v{d}" for i in range(16)]
        L += [f"v_mul_f32 v{Lreg(c)}, v{Lreg(c)}, v{f}"]
        for t in range(8):
            L += [f"v_accvgpr_read_b32 v{TMP+4+i}, a{Oreg(t,c)+i}" for i in range(4)]
            L += [f"v_mul_f32 v{TMP+4+i}, v{TMP+4+i}, v{f}" for i in range(4)]
            L += [f"v_accvgpr_write_b32 a{Oreg(t,c)+i}, v{TMP+4+i}" for i in range(4)]
    L += softmax_ops(par)
    L += ["s_nop 3", f"s_setpc_b64 s[{sRet}:{sRet+1}]"]
    seq = mk(L); analyze_trace(seq)
    return seq

def segtext(s): return "\n".join(i.text for i in s)

def emit_k1():
    segs = build_k1()
    pre = segs[0]; S = segs[1:]
    assert len(S) == 64
    T = [segtext(s) for s in S]
    G2 = OPT['g2']
    if G2:
        segs2 = build_k1(True); pre2 = segs2[0]; S2 = segs2[1:]; T2 = [segtext(x) for x in S2]
    TWO = bool(OPT['cap1']) and G2
    k1 = 20
    while k1 < 24 and (TWO or T[k1] == T[k1 + 24]) and (not G2 or T2[k1 + 8] == T[k1]): k1 += 1
    k0 = 13
    while k0 > 0 and (TWO or T[k0 - 1] == T[k0 - 1 + 24]) and (not G2 or (T2[k0 - 1 + 8] == T[k0 - 1] and T2[k0 - 1 + 24] == T[k0 - 1 + 24])): k0 -= 1
    if not TWO and T[13] != T[37]: k0 = k1 = 22
    for k in range(k0, k1):
        assert (TWO or T[k] == T[k + 24]) and (not G2 or T2[k + 8] == T[k]), k
    if G2:
        assert T2[13 + 24] == T[13 + 24]
        j0 = 8 + k0
        while j0 > 8 and T2[j0 - 1] == T[j0 - 1 + 16]: j0 -= 1
    prog = []; trace = []
    lab = [0]; stubs = []
    def fixlabels(seq):
        for i in seq:
            if '@' in i.text:
                if i.kind == 'label' and 'B' in OPT['drop']: lab[0] += 1
                if i.kind == 'branch':
                    lab[0] += 1
                    tgt = i.text.split()[1].split('_')[0]
                    stubs.append((tgt, lab[0]))
                i.text = i.text.replace('@', str(lab[0]))
    def fold(lo, hi, S=S, T=T):
        p = []; t = []; k = lo
        while k < hi:
            done = False
            for L in (1, 2, 4):
                n = 1
                while k + (n + 1) * L <= hi and all(T[k + j] == T[k + n * L + j] for j in range(L)): n += 1
                if n >= 2:
                    body = [i for j in range(L) for i in S[k + j]]
                    fixlabels(body)
                    lab[0] += 1; ln = f"LP{lab[0]}"
                    init = mk(f"s_mov_b32 s{sCnt}, {n}")
                    tail = mk([f"s_sub_u32 s{sCnt}, s{sCnt}, 1", f"s_cmp_lg_u32 s{sCnt}, 0", f"s_cbranch_scc1 {ln}"])
                    p += init + mk(ln + ":") + body + tail
                    t += init + (body + tail) * min(n, 3)
                    print(f"  loop segs {k}..{k+n*L-1} L={L} n={n}", file=sys.stderr)
                    k += n * L; done = True; break
            if not done:
                fixlabels(S[k]); p += S[k]; t += S[k]; k += 1
        return p, t
    setup = k1_setup()
    p1, t1 = fold(0, k0)
    p2, t2 = fold(k0, k1)
    js = (j0 + 16) if G2 else 24 + k0
    p3, t3 = fold(k1, js)
    p3b, t3b = fold(js, 24 + k0)
    p4, t4 = fold(24 + (k0 if TWO else k1), 64)
    br = mk([f"s_cmp_eq_u32 s{sRound}, 1", "s_cbranch_scc1 K1_FINAL"])
    back = mk([f"s_add_u32 s{sRound}, s{sG2}, 1", "s_branch K1_OUTER"])
    if G2:
        br2 = mk([f"s_cmp_eq_u32 s{sRound}, 2", "s_cbranch_scc1 K1_TRANS"])
        sel = mk([f"s_cmp_lg_u32 s{sG2}, 0", "s_cbranch_scc1 K1_G2"])
        q1, u1 = fold(0, j0, S2, T2); jn = mk("s_branch K1_JOIN")
        q2, u2 = fold(8 + k1, 24 + k0, S2, T2); back2 = mk([f"s_mov_b32 s{sRound}, 1", "s_branch K1_OUTER"])
        print(f"  G2: j0={j0}", [model_cycles(x) for x in S2], file=sys.stderr)
    if OPT['stamp']:
        st0 = mk(["s_memtime s[72:73]", "s_memrealtime s[74:75]", "s_mov_b32 s45, 0", "v_mov_b32 v235, 0", "v_mov_b32 v246, 0"])
        setup = setup[:2] + st0 + setup[2:]
        st1 = mk(["s_memtime s[50:51]", "s_waitcnt lgkmcnt(0)", "v_writelane_b32 v246, s50, 0", "s_waitcnt vmcnt(0)", "s_memtime s[50:51]", "s_memrealtime s[76:77]", "s_waitcnt lgkmcnt(0)",
                  "v_writelane_b32 v246, s50, 1", "v_writelane_b32 v246, s72, 60", "v_writelane_b32 v246, s74, 61", "v_writelane_b32 v246, s76, 62",
                  f"s_lshl_b32 s50, s2, 2", f"s_add_u32 s50, s50, s{sWv}", "s_lshl_b32 s50, s50, 9", f"s_add_u32 s50, s50, {48<<20}",
                  f"v_lshrrev_b32 v245, 2, v{vSt}", f"s_mov_b32 s{sO+2}, {64<<20}",
                  f"buffer_store_dword v235, v245, {srd(sO)}, s50 offen", f"buffer_store_dword v246, v245, {srd(sO)}, s50 offen offset:256"])
        if OPT['probe']:
            pa, pb = OPT['probe'].split(',')
            L = ["s_cmp_lg_u32 s2, 9", "s_cbranch_scc1 K1_END", "s_memrealtime s[76:77]", "s_waitcnt lgkmcnt(0)"]
            L += [f"v_readlane_b32 s50, v235, {pa}"] if pa != 's' else ["s_mov_b32 s50, s74"]
            L += [f"v_readlane_b32 s51, v235, {pb}"] if pb != 'e' else ["s_mov_b32 s51, s76"]
            L += ["s_nop 3", "s_sub_u32 s50, s51, s50", "s_lshl_b32 s50, s50, 2", "PROBE_L:", "s_memrealtime s[72:73]", "s_waitcnt lgkmcnt(0)",
                  "s_sub_u32 s72, s72, s76", "s_cmp_lt_u32 s72, s50", "s_cbranch_scc1 PROBE_L"]
            st1 = mk(L)
        if OPT['dbg']:
            L = ["s_memtime s[50:51]", "s_memrealtime s[76:77]", "s_waitcnt lgkmcnt(0)",
                 "s_sub_u32 s50, s50, s72", "s_sub_u32 s76, s76, s74", "v_writelane_b32 v246, s50, 14", "v_writelane_b32 v246, s76, 15"]
            for q, ln in enumerate([0, 1, 4, 8, 9, 16, 24, 32, 33, 40, 48, 52, 56, 63]):
                L += [f"v_readlane_b32 s50, v235, {ln}", "s_nop 3", "s_sub_u32 s50, s50, s72", f"v_writelane_b32 v246, s50, {q}"]
            L += [f"s_lshl_b32 s50, s2, 2", f"s_add_u32 s50, s50, s{sWv}", f"s_cmp_lg_u32 s50, {OPT['dbg']-1}", "s_cbranch_scc1 K1_END",
                  f"s_mov_b32 s{sO+2}, {64<<20}", f"s_mov_b32 s50, {48<<20}",
                  f"v_lshrrev_b32 v245, 2, v{vSt}", f"buffer_store_dword v246, v245, {srd(sO)}, s50 offen"]
            st1 = mk(L)
        p4 += st1; t4 += st1
    if TWO:
        brg = mk([f"s_cmp_lg_u32 s{sG2}, 0", "s_cbranch_scc1 K1_TRANS"])
        brh = mk([f"s_cmp_lg_u32 s{sG2}, 0", "s_cbranch_scc1 K1_OUTER"])
        tf = mk("s_branch K1_FINAL")
        prog = setup + sel + pre + p1 + mk("K1_OUTER:") + p2 + brg + p3 + mk("K1_JOIN:") + p3b + brh + mk("K1_FINAL:") + p4 + mk(["K1_END0:", "s_endpgm"]) + \
               mk("K1_G2:") + pre2 + q1 + jn + mk("K1_TRANS:") + q2 + tf + mk(["K1_END:", "s_endpgm"])
        for _ in range(2):
            analyze_trace(setup + sel + pre + t1 + t2 + brg + t3 + t3b + brh + t4)
            analyze_trace(setup + sel + pre2 + u1 + jn + t3b + brh + t2 + brg + u2 + tf + t4)
    elif G2:
        prog = setup + sel + pre + p1 + mk("K1_OUTER:") + p2 + br + br2 + p3 + mk("K1_JOIN:") + p3b + back + \
               mk("K1_G2:") + pre2 + q1 + jn + mk("K1_TRANS:") + q2 + back2 + mk("K1_FINAL:") + p4 + mk(["K1_END:", "s_endpgm"])
        for _ in range(2):
            analyze_trace(setup + sel + pre + t1 + t2 + br + br2 + t3 + t3b + back + t2 + br + t4)
            analyze_trace(setup + sel + pre2 + u1 + jn + t3b + back + t2 + br + br2 + u2 + back2 + t2 + br + t4)
    else:
        prog = setup + pre + p1 + mk("K1_OUTER:") + p2 + br + p3 + p3b + back + mk("K1_FINAL:") + p4 + mk(["K1_END:", "s_endpgm"])
        analyze_trace(setup + pre + t1 + t2 + br + t3 + t3b + back + t2 + br + t4)
    out = emit(prog) + "\n"
    for tgt, n in stubs:
        out += f"{tgt}_{n}:\n  s_call_b64 s[{sRet}:{sRet+1}], {tgt}\n  s_branch RET_{n}\n"
    for k, (load, cmpop) in enumerate(spins):
        reg = load.split()[1].rstrip(',')
        out += f"""SPIN{k}:
  s_mov_b32 s{sSc}, 0
SPINL{k}:
  s_sleep 2
  {load}
  s_add_u32 s{sSc}, s{sSc}, 1
  s_waitcnt vmcnt(0)
  v_readfirstlane_b32 s{sSpin}, {reg}
  s_cmp_gt_u32 s{sSc}, 0x8000
  s_cbranch_scc1 SRET{k}
  {cmpop}
  s_cbranch_scc0 SPINL{k}
  s_branch SRET{k}
"""
    for i, ldt, chk in pzspin:
        seq = mk([f"PZSPIN{i}:", f"s_mov_b32 s{sSc}, 0", f"PZL{i}:", "s_sleep 1"] + ldt + [f"s_add_u32 s{sSc}, s{sSc}, 1", "s_waitcnt vmcnt(0)"] + chk +
                 [f"s_cmp_gt_u32 s{sSc}, 0x8000", f"s_cbranch_scc1 PZRET{i}", f"s_cbranch_vccnz PZL{i}", f"s_branch PZRET{i}"])
        analyze_trace(seq); out += emit(seq) + "\n"
    out += emit(rare(0)) + "\n" + emit(rare(1)) + "\n" + (emit(rare(2)) + "\n" if OPT['a15'] else "")
    print(f"  k0={k0} k1={k1}", file=sys.stderr)
    print("  model cycles/seg:", [model_cycles(x) for x in S], file=sys.stderr)
    return out

def kd(name, vg=512, acc=256):
    return f""".amdhsa_kernel {name}
  .amdhsa_next_free_vgpr {vg}
  .amdhsa_next_free_sgpr 102
  .amdhsa_accum_offset {acc}
  .amdhsa_group_segment_fixed_size 0
  .amdhsa_kernarg_size 104
  .amdhsa_user_sgpr_count 2
  .amdhsa_user_sgpr_kernarg_segment_ptr 1
  .amdhsa_system_sgpr_workgroup_id_x 1
.end_amdhsa_kernel
"""

K1 = NAME + "_kernel"
hdr = open("cdna_kernels/" + NAME + ".s.ref").read().split("; Override launch")[0]
o = hdr
o += f"; @launch grid=(256,1,1) block=(256,1,1) lds={3*STAGE}\n"
o += '.amdgcn_target "amdgcn-amd-amdhsa--gfx950"\n.text\n'
o += f".globl {K1}\n.p2align 8\n.type {K1},@function\n{K1}:\n" + emit_k1()
o += '.section .rodata,"a"\n.p2align 6\n' + kd(K1)
import subprocess, re
if "CODE_LINES" in o:
    open("_g.s", "w").write(o.replace("CODE_LINES", "0x100"))
    subprocess.run(["clang", "-x", "assembler", "-target", "amdgcn-amd-amdhsa", "-mcpu=gfx950", "-c", "_g.s", "-o", "_g.o"], check=True)
    t = subprocess.run(["llvm-objdump", "-t", "_g.o"], capture_output=True, text=True).stdout
    end = int([l for l in t.split("\n") if l.endswith(" K1_END")][0].split()[0], 16)
    print("  K1 main code bytes", end, file=sys.stderr)
    o = o.replace("CODE_LINES", hex(end // 128))
open(sys.argv[1], "w").write(o)
```

```python
import re

def regs_of(tok):
    tok = tok.strip()
    tok = re.sub(r'^(neg|abs)\((.*)\)$', r'\2', tok)
    tok = tok.lstrip('-').strip('|')
    m = re.fullmatch(r'([vas])(\d+)', tok)
    if m: return [tok]
    m = re.fullmatch(r'([vas])\[(\d+):(\d+)\]', tok)
    if m: return [f"{m.group(1)}{i}" for i in range(int(m.group(2)), int(m.group(3)) + 1)]
    if tok in ('m0', 'vcc', 'exec', 'scc'): return [tok]
    if tok in ('vcc_lo', 'vcc_hi'): return ['vcc']
    if tok in ('exec_lo', 'exec_hi'): return ['exec']
    return []

TRANS = ('v_exp_f32', 'v_log_f32', 'v_rcp_f32', 'v_rsq_f32', 'v_sqrt_f32', 'v_sin_f32', 'v_cos_f32')
SCC_W = ('s_add_', 's_sub_', 's_addc', 's_subb', 's_and_', 's_or_', 's_xor_', 's_lshl', 's_lshr', 's_ashr', 's_cmp', 's_min', 's_max', 's_andn2', 's_not', 's_bfe', 's_addk', 's_cmpk')

class I:
    __slots__ = ('text', 'op', 'kind', 'rd', 'wr', 'srcC', 'lgkm', 'vm', 'nop', 'pos', 'tag', 'passes', 'lds_rd', 'lds_wr')
    def __init__(self, text, pos=None, tag=None):
        self.text = text.strip(); self.pos = pos; self.tag = tag
        self.lgkm = None; self.vm = None; self.nop = 0; self.srcC = []; self.passes = 0
        self.lds_rd = None; self.lds_wr = None
        t = self.text.split(';')[0].strip()
        if t.endswith(':') or t == '' or t.startswith('.'):
            self.op = 'label'; self.kind = 'label'; self.rd = []; self.wr = []; return
        sp = t.split(None, 1); op = sp[0]; self.op = op
        rest = sp[1] if len(sp) > 1 else ''
        ops = [o.strip() for o in rest.split(',')] if rest else []
        mods = []
        if ops:
            l = ops[-1].split()
            ops[-1] = l[0] if l else ''
            mods = l[1:]
        R = lambda k: regs_of(ops[k]) if k < len(ops) else []
        allfrom = lambda k: [r for o in ops[k:] for r in regs_of(o)]
        rd = []; wr = []
        if op.startswith('v_mfma'):
            self.kind = 'mfma'; wr = R(0); rd = R(1) + R(2) + R(3); self.srcC = R(3)
            self.passes = 4 if '16x16x32' in op else 8
        elif op.startswith('ds_read'):
            self.kind = 'dsr'; wr = R(0); rd = R(1)
        elif op.startswith('ds_write'):
            self.kind = 'dsw'; rd = allfrom(0)
        elif op.startswith('buffer_load'):
            if 'lds' in mods:
                self.kind = 'dma'; rd = allfrom(0) + ['m0']
            else:
                self.kind = 'vld'; wr = R(0); rd = allfrom(1)
        elif op.startswith('global_load'):
            self.kind = 'vld'; wr = R(0); rd = allfrom(1)
        elif op.startswith('buffer_store'):
            self.kind = 'vst'; rd = allfrom(0)
        elif op.startswith('s_load') or op in ('s_memtime', 's_memrealtime'):
            self.kind = 'smem'; wr = R(0); rd = allfrom(1)
        elif op in ('s_waitcnt', 's_nop', 's_barrier', 's_endpgm', 's_setprio', 's_sleep'):
            self.kind = op[2:]
            if op == 's_barrier': wr = ['scc']
        elif op.startswith('s_cbranch') or op in ('s_branch', 's_call_b64', 's_setpc_b64'):
            self.kind = 'branch'
            if 'scc' in op: rd = ['scc']
            if 'vcc' in op: rd = ['vcc']
            if 'exec' in op: rd = ['exec']
        elif op.startswith('s_cmp'):
            self.kind = 'salu'; rd = allfrom(0); wr = ['scc']
        elif op.startswith('s_'):
            self.kind = 'salu'; wr = R(0); rd = allfrom(1)
            if op.startswith(SCC_W): wr = wr + ['scc']
            if op.startswith(('s_cselect', 's_addc', 's_subb')): rd = rd + ['scc']
            if op.startswith(('s_addk', 's_mulk')): rd = rd + R(0)
        elif op.startswith('v_'):
            self.kind = 'trans' if op.split('_e')[0] in TRANS or op in TRANS else 'valu'
            if op.startswith('v_permlane') and 'swap' in op:
                rd = R(0) + R(1); wr = R(0) + R(1); self.kind = 'perm'
            elif op.startswith('v_cmp'):
                wr = R(0); rd = allfrom(1)
            elif op.startswith(('v_fmac', 'v_dot2c', 'v_writelane')):
                wr = R(0); rd = allfrom(0)
            elif op.startswith(('v_add_co', 'v_sub_co', 'v_addc_co')):
                wr = R(0) + R(1); rd = allfrom(2)
            else:
                wr = R(0); rd = allfrom(1)
        else:
            raise ValueError("unknown op " + text)
        self.rd = rd; self.wr = wr
    def is_valu(self): return self.kind in ('valu', 'trans', 'perm')
    def __repr__(self): return self.text

def mk(lines, pos=None, tag=None):
    if isinstance(lines, str): lines = lines.strip().split('\n')
    return [I(l, pos, tag) for l in lines if l.strip() and not l.strip().startswith(';')]

def analyze_trace(trace):
    for _ in range(3):
        changed = _pass(trace)
        if not changed: break

def _pass(trace):
    changed = False
    ds = []
    vm = []
    hist = []
    ws = 0
    HL = 24
    nvm = 0; lastdma = -1; mark = -1
    for ins in trace:
        if ins.tag == 'vmreset': mark = lastdma
        if ins.kind == 'label': continue
        touched = set(ins.rd) | set(ins.wr)
        if ins.tag == 'barwait':
            n = min(nvm - 1 - mark, 63)
            if ins.vm is None or n < ins.vm: ins.vm = n; changed = True
            if ins.lgkm != 0: ins.lgkm = 0; changed = True
            mark = lastdma
        if ins.kind in ('vld', 'dma', 'vst') and not ins.text.endswith('; nc'):
            if ins.kind == 'dma' and not ins.text.endswith('; pf'): lastdma = nvm
            nvm += 1
        if ins.kind == 'waitcnt':
            m = re.search(r'lgkmcnt\((\d+)\)', ins.text)
            if m:
                n = int(m.group(1)); ds = ds[len(ds) - n:] if n < len(ds) else ds
                if n == 0: ds = []
            m = re.search(r'vmcnt\((\d+)\)', ins.text)
            if m:
                n = int(m.group(1)); vm = vm[len(vm) - n:] if n < len(vm) else vm
                if n == 0: vm = []
        need = None
        for k in range(len(ds) - 1, -1, -1):
            if ds[k] & touched:
                need = len(ds) - 1 - k; break
        if need is not None:
            if any('SMEM' in e for e in ds): need = 0
            need = min(need, 15)
            if ins.lgkm is None or need < ins.lgkm: ins.lgkm = need; changed = True
        needv = None
        for k in range(len(vm) - 1, -1, -1):
            if vm[k] & touched:
                needv = len(vm) - 1 - k; break
        if needv is not None:
            needv = min(needv, 63)
            if ins.vm is None or needv < ins.vm: ins.vm = needv; changed = True
        if ins.lgkm is not None:
            n = ins.lgkm; ds = ds[len(ds) - n:] if 0 < n < len(ds) else ([] if n == 0 else ds)
        if ins.vm is not None:
            n = ins.vm; vm = vm[len(vm) - n:] if 0 < n < len(vm) else ([] if n == 0 else vm)
        pre = 1 if (ins.lgkm is not None or ins.vm is not None) else 0
        req = 0
        rdS = set(ins.rd); wrS = set(ins.wr)
        for (p, pws) in (hist[-HL:] if ins.kind != 'wait' else []):
            dist = ws + pre - pws - 1
            need_ws = hazard(p, ins, rdS, wrS)
            if need_ws > dist: req = max(req, need_ws - dist)
        if req > ins.nop: ins.nop = req; changed = True
        ws += pre + ins.nop
        hist.append((ins, ws))
        if len(hist) > 64: hist = hist[-HL:]
        if ins.kind == 'nop':
            ws += int(ins.text.split()[1]) + 1
        elif ins.kind == 'wait':
            hist.pop()
        else:
            ws += 1
        if ins.kind == 'dsr': ds.append(set(ins.wr))
        elif ins.kind == 'dsw': ds.append(set())
        elif ins.kind == 'vld': vm.append(set(ins.wr))
        elif ins.kind in ('dma', 'vst') and not ins.text.endswith('; nc'): vm.append(set(ins.wr))
        elif ins.kind == 'smem': ds.append(set(ins.wr) | {'SMEM'})
    return changed

def hazard(p, c, rdS, wrS):
    n = 0
    pw = set(p.wr)
    if p.kind == 'mfma':
        big = {4: 8, 8: 12}[p.passes]; ovl = {4: 6, 8: 10}[p.passes]; war = {4: 3, 8: 7}[p.passes]
        if c.kind == 'mfma':
            cC = set(c.srcC)
            ab = rdS - cC if not (set(c.rd[:len(c.rd) - len(c.srcC)]) & cC) else set(c.rd[:len(c.rd) - len(c.srcC)])
            if pw & ab: n = max(n, big)
            if pw & cC:
                if not (list(p.wr) == list(c.srcC) and p.passes == c.passes): n = max(n, ovl)
            elif pw & wrS: n = max(n, ovl)
        else:
            if pw & (rdS | wrS): n = max(n, big)
            if c.is_valu() and (set(p.srcC) & wrS): n = max(n, war)
    elif p.is_valu():
        vw = {r for r in pw if r[0] in 'va' and r != 'vcc'}
        sw = pw - vw
        if c.kind == 'mfma' and (vw & rdS): n = max(n, 2)
        if c.kind == 'perm' and (vw & rdS): n = max(n, 2)
        if p.kind == 'trans' and c.is_valu() and c.kind != 'trans' and (vw & rdS): n = max(n, 1)
        if c.op.startswith(('v_readfirstlane', 'v_readlane')) and (vw & rdS): n = max(n, 1)
        if sw:
            if c.is_valu() and (sw & rdS): n = max(n, 2)
            if c.kind in ('vld', 'vst', 'dma') and (sw & rdS): n = max(n, 5)
            if c.kind in ('salu', 'branch') and (sw & rdS): n = max(n, 1)
    elif p.kind == 'salu':
        if 'm0' in pw and c.kind == 'dma': n = max(n, 1)
    elif p.kind == 'vst':
        if ('x4' in p.op or 'x3' in p.op):
            data = set(regs_of(p.text.split(None, 1)[1].split(',')[0]))
            if data & wrS: n = max(n, 2)
    return n

def emit(seq):
    out = []
    for ins in seq:
        if ins.kind == 'label':
            out.append(ins.text); continue
        w = []
        if ins.vm is not None: w.append(f"vmcnt({ins.vm})")
        if ins.lgkm is not None: w.append(f"lgkmcnt({ins.lgkm})")
        if w: out.append("  s_waitcnt " + " ".join(w))
        n = ins.nop
        while n > 0:
            k = min(n, 16); out.append(f"  s_nop {k-1}"); n -= k
        if ins.kind != 'wait': out.append("  " + ins.text)
    return "\n".join(out)

def merge(mf, fillers):
    fl = sorted(enumerate(fillers), key=lambda e: (e[1].pos, e[0]))
    out = []; j = 0
    for k, m in enumerate(mf):
        while j < len(fl) and fl[j][1].pos <= k:
            out.append(fl[j][1]); j += 1
        out.append(m)
    while j < len(fl):
        out.append(fl[j][1]); j += 1
    return out

def at(instrs, p0, p1=None):
    n = len(instrs)
    if p1 is None: p1 = p0
    for i, ins in enumerate(instrs):
        ins.pos = p0 + (p1 - p0) * i / max(n, 1)
    return instrs

def W(regs, pos=None):
    i = I("s_nop 0", pos); i.text = "; wait " + ",".join(regs[:1]); i.kind = 'wait'; i.op = 'wait'; i.rd = list(regs); i.wr = []
    return i

MEMK = ('dsr', 'dsw', 'dma', 'vld', 'vst')
def build_deps(ref):
    n = len(ref); preds = [set() for _ in range(n)]
    lastw = {}; readers = {}
    last = {'ds': None, 'vm': None, 'fenceM': None, 'fenceV': None, 'mfma': None}
    since_fM = []; since_fV = []
    for k, i in enumerate(ref):
        P = preds[k]
        for r in i.rd:
            if r in lastw: P.add(lastw[r])
        for r in i.wr:
            if r in lastw: P.add(lastw[r])
            for q in readers.get(r, ()): P.add(q)
        for r in i.rd: readers.setdefault(r, []).append(k)
        for r in i.wr: lastw[r] = k; readers[r] = []
        isds = i.kind in ('dsr', 'dsw', 'smem'); isvm = i.kind in ('dma', 'vld', 'vst')
        if isds:
            if last['ds'] is not None: P.add(last['ds'])
            last['ds'] = k
        if isvm:
            if last['vm'] is not None: P.add(last['vm'])
            last['vm'] = k
        isV = i.is_valu() or i.kind == 'mfma'
        if i.kind in ('barrier', 'waitcnt'):
            P.update(since_fM); since_fM = []
            if last['fenceM'] is not None: P.add(last['fenceM'])
            last['fenceM'] = k
        elif isds or isvm or i.kind == 'wait':
            if last['fenceM'] is not None: P.add(last['fenceM'])
            since_fM.append(k)
        if i.kind in ('branch', 'label'):
            P.update(since_fV); since_fV = []
            if last['fenceV'] is not None: P.add(last['fenceV'])
            last['fenceV'] = k
        elif isV:
            if last['fenceV'] is not None: P.add(last['fenceV'])
            since_fV.append(k)
        P.discard(k)
    return preds

def icost(i, first):
    k = i.kind
    if k == 'trans': return 8
    if k in ('valu', 'perm'): return 4
    if k in ('dsr', 'dsw'): return 8 if first else 12
    if k in ('dma', 'vld', 'vst'): return 12 if first else 16
    if k in ('label', 'glue'): return 0
    return 4

def gap_schedule(M, F, early=3.0, late=2.0, gap=16):
    fl = [e[1] for e in sorted(enumerate(F), key=lambda e: (e[1].pos, e[0]))]
    ref = []; j = 0; midx = []
    for k, m in enumerate(M):
        while j < len(fl) and fl[j].pos <= k: ref.append(fl[j]); j += 1
        m.pos = k; midx.append(len(ref)); ref.append(m)
    ref += fl[j:]
    for k, i in enumerate(ref):
        if 'scc' in i.rd:
            q = k - 1
            while 'scc' not in ref[q].wr: q -= 1
            assert ref[q].op.startswith('s_cmp'), (ref[q].text, i.text)
    preds = build_deps(ref)
    n = len(ref); done = [False] * n; when = [None] * n
    out = []
    cur = {'g': -1}
    def place(k):
        done[k] = True; when[k] = (cur['g'], len(out)); out.append(ref[k])
        if k + 1 < n and ref[k + 1].kind == 'glue' and not done[k + 1]: place(k + 1)
    def force(k):
        st = [k]; order = []
        seen = set()
        def rec(x):
            if done[x] or x in seen: return
            seen.add(x)
            for p in sorted(preds[x]): rec(p)
            order.append(x)
        rec(k)
        for x in sorted(order):
            if not done[x]: place(x)
    def ready(k):
        i = ref[k]
        for p in preds[k]:
            if not done[p]: return False
            q = ref[p]
            if q.kind == 'mfma' and (set(q.wr) & (set(i.rd) | set(i.wr))) and cur['g'] - when[p][0] < 4: return False
            if q.kind == 'trans' and i.is_valu() and (set(q.wr) & set(i.rd)) and len(out) - when[p][1] < 2: return False
            if q.is_valu() and i.kind == 'perm' and len(out) - when[p][1] < 3: return False
            if q.kind == 'salu' and 'm0' in q.wr and i.kind == 'dma' and len(out) - when[p][1] < 2: return False
            if q.kind == 'dsr' and i.kind == 'wait' and cur['g'] - when[p][0] < 5 and (set(q.wr) & set(i.rd)): return False
        return True
    lo = 0
    import sys
    sys.setrecursionlimit(100000)
    total = 0
    for g, mk_ in enumerate(midx):
        while lo < n and done[lo]: lo += 1
        k = lo
        while k < n and ref[k].pos <= g - late + 1e-9:
            if not done[k] and ref[k].kind != 'mfma': force(k)
            k += 1
        force(mk_)
        cur['g'] = g
        when[mk_] = (g, when[mk_][1])
        def cands():
            k = lo; r = []
            while k < n and ref[k].pos <= g + 1 + early:
                if not done[k] and ref[k].kind != 'mfma' and ready(k): r.append(k)
                k += 1
            return r
        budget = gap - 4
        c = cands()
        nv = [k for k in c if not ref[k].is_valu() and ref[k].pos <= g + 1 + (0.0 if ref[k].kind in MEMK + ('barrier', 'branch', 'label', 'wait') else early)]
        if nv:
            mem = [k for k in nv if ref[k].kind in MEMK]
            k = (mem or nv)[0]
            if nv[0] != k and ref[nv[0]].pos <= g - late + 1.5: k = nv[0]
            budget -= icost(ref[k], True); place(k)
            if ref[k].kind == 'branch':
                for q in range(k + 1, min(n, k + 4)):
                    if ref[q].kind == 'label' and not done[q]: place(q); break
        else:
            budget -= 4
        while budget > 0:
            c = cands()
            v = [k for k in c if ref[k].is_valu()]
            pick = None
            if budget >= 8:
                t = [k for k in v if ref[k].kind == 'trans']
                o = [k for k in v if ref[k].kind != 'trans']
                if t and (not o or ref[t[0]].pos <= ref[o[0]].pos + 2.0): pick = t[0]
                elif o: pick = o[0]
            else:
                o = [k for k in v if ref[k].kind != 'trans']
                if o: pick = o[0]
            if pick is None:
                s = [k for k in c if ref[k].kind in ('salu',) or (ref[k].kind == 'wait' and ref[k].pos <= g + 1)]
                if s: pick = s[0]
            if pick is None: break
            budget -= icost(ref[pick], False); place(pick)
    cur['g'] = len(midx) + 10
    for k in range(n):
        if not done[k]: force(k)
    return out

def model_cycles(seq, gap=16):
    tot = 0; cur = None; first = False
    def add(kind_cost, isv):
        pass
    g = 0; started = False
    for i in seq:
        items = []
        if i.kind in ('label', 'glue'): continue
        if i.vm is not None or i.lgkm is not None: items.append('s')
        for _ in range(i.nop): items.append('s')
        if i.kind != 'wait': items.append(i)
        for it in items:
            if it != 's' and it.kind == 'mfma':
                if started: tot += max(gap, g)
                started = True; g = 4; first = True; continue
            if it == 's': c = 4
            else:
                c = icost(it, first)
                if first and it.is_valu(): c += 4
            g += c; first = False
    tot += max(gap, g)
    return tot
```

```python
import sys, struct, math, re
from asmlib import *

NAME = "concat_heads__gqa_block_cached__mha_block_cached__near_ridge"
OPT = dict(dyn=0, m1=0x1f, m2=0xf80, tun='30,31,32,33', fin2=1, eb0=50, eb1=56, uni=4, cap1=0, capfrom=10, capq=0, capo=0, g2rot=0, g2inv=0, pair='OQA', outf='', cap=5, ra=5, rb=3, rsh=4, pz=0, pzl=63.3, pzc=64.87, pw=60, pw6=20, w64=0, pol='', qlo2=0, qhi2=0, qn=0, qlo=24, qhi=32, g2=1, g2bit=0, wcf=0, dense=0, a15=0, xmap=0, probe='', qrot0=0, qrot1=1, orot=1, wont='', d1late=1, fd=0.8, fd6=0.5, cs='55.3,56.0,56.05,57.1,57.4,M;55.4,56.1,57.45,58.5,59.1,M;57.6,58.6,59.15,60.2,60.8,M;59.6,60.6,60.85,61.9,62.5,M;61.4,62.3,62.55,63.5,63.99,M;62.6,63.1,63.15,64.9,65.4,0;63.8,64.05,64.1,65.5,66.0,2', pfdma=0, pfl=32, pfstep=0x4000, pfstart=0x4000, pad=0, cpf=6, dbg=0, trickle=1, wopf='', wopfnt='', play=1, lead=15, kvpf='', wxpf=0, pfd=2, sched=1, early=3.0, late=2.0, k2pf=3, pfnt=' nt', wxpfnt='', kvnt=" nt", ont=" nt", rot=1, k2ont=" nt", epi_periods=5, thresh=1024.0, k1only=0, k2only=0, stamp=0, stamp2=0, k2wnt='', k2depth=3, k2drop='', drop='', wnt='', xnt='')
for kv in sys.argv[2:]:
    k, v = kv.split("="); OPT[k] = v.replace("_", " ") if isinstance(OPT[k], str) else (int(v, 0) if isinstance(OPT[k], int) else float(v))
LEAD = OPT['lead']
def f2h(x): return "0x%08x" % struct.unpack("<I", struct.pack("<f", x))[0]
MF = "v_mfma_f32_16x16x32_bf16"
def vr(b, n=4): return f"v[{b}:{b+n-1}]"
def ar(b, n=4): return f"a[{b}:{b+n-1}]"

STAGE = 53248; SLOTA = 0; SLOTB = 16384; XOFF = 32768
sX, sW, sK, sV, sO = 8, 12, 16, 20, 24
sWv, sRd, sWr, sMw, sMx = 28, 29, 30, 31, 32
sKVb, sKi, sVi, sWo, sXo, sOo = 33, 34, 35, 36, 37, 38
sT0, sT1, sC, sTh, sCnt, sRound = 39, 40, 41, 42, 43, 44
sRet = 46
sT2, sT3 = 48, 49
def srd(b): return f"s[{b}:{b+3}]"
vKb, vV0b, vV1b, vWb, vXb = 1, 2, 3, 4, 5
vA0, vA1, vA2 = 6, 7, 8
vDkv0, vDkv1 = 9, 10
vDw = [11, 12, 13, 14]
vDx = [15, 16, 17, 18]
vSt = 19
vRl = [20, 21, 22, 23, 0]
BLK = 24
def blk(c): return BLK + 32 * c
def acc(t, c): return blk(c) + 4 * t
def Sreg(par, kt, c): return blk(c) + 8 * par + 4 * kt
def Preg(par, c): return blk(c) + 16 + 4 * par
def Mreg(c): return blk(c) + 24
def Lreg(c): return blk(c) + 28
def Treg(c): return blk(c) + 29
POOL = 184
NPOOL = 8
XF = 200
TMP = 248
ET = 216
vPF, vPK, vDum, vStamp = 232, 233, 234, 235
sPF, sPK = 80, 84
sPFo, sPFs, sPFr, sPb, sPi, sRot = 88, 89, 90, 91, 92, 93
def Oreg(t, c): return (t * 5 + c) * 4
def Qreg(s, c): return 160 + (s * 5 + c) * 4

vXo0, vXo2, vXp0, vXp2 = 236, 237, 238, 239
vPK2 = 247; sPj = 48
vOb = 244
PK3 = [('a', 240), ('a', 244), ('a', 248), ('a', 252), ('v', 240)]
sWoS = 96 - 28
sOp, sOpd, sPo = 94, 95, 38
MSG = [blk(c) + 28 for c in range(5)]
HOLD = [ET, ET + 4, ET + 8]
vTag, vFl, vF0, vT1, vFl2 = 208, 210, 211, 213, 214
vOut = 15; vEp = 232
RREG = list(range(ET + 12, ET + 16)) + list(range(TMP, TMP + 8)) + [232, 233, 234, 236, 237, 238, 239, 245, 247, 215, 212] + \
       [1, 2, 3, 4, 5, 8, 9, 10, 11, 12, 13, 14, 20, 21, 22, 23, 0]
assert len(set(RREG)) == 40
sOutS, sDbg = 80, 84
sSig, sMb, sFb, sCm, sCf, sTag, sOutO, sSpin, sSpin2, sOpB, sPd = 88, 89, 90, 93, 48, 96, 97, 98, 99, 100, 101
sTa, sSc = 4, 5
sXb, sXc, sQr = 6, 7, 3
sG2 = 92
sDyn = 76
FLAGB = 41943040
def rr(f): return f"{f[0]}[{f[1]}:{f[1]+3}]"
def Bfrag(hh, u, c):
    if hh == 0: return ('a', 160 + (u * 5 + c) * 4) if u < 3 else PK3[c]
    if hh == 1: return ('v', blk(c) + 16 + 4 * u) if u < 3 else ('a', 220 + 4 * c)
    if hh == 2: return ('a', Oreg(2 * u, c))
    return ('a', Oreg(2 * u + 1, c))
def xarea(k, c, own):
    if k < 2: return (vXo0 if own else vXp0), k * STAGE + c * 1024
    return (vXo2 if own else vXp2), c * 1024
def xrd(dst, k, c, own):
    a, o = xarea(k, c, own); return f"ds_read_b128 {rr(dst)}, v{a} offset:{o}"
def xwr(src, k, c):
    a, o = xarea(k, c, True); return f"ds_write_b128 v{a}, {rr(src)} offset:{o}"

class Period:
    def __init__(self): self.m = []; self.f = []; self.dma = []; self.addr = []

pool_ctr = [0]
def next_frag():
    r = POOL + 4 * (pool_ctr[0] % NPOOL); pool_ctr[0] += 1
    return r

def rpos(k0):
    p = k0 - LEAD + 1
    if k0 == 70: p -= 3
    if k0 == 75: p -= 5
    return p
def fwait(P, k0, r):
    P.f.append(W([f"v{r+i}" for i in range(4)], k0))
def rdK(P, k0, slot, kt, s):
    r = next_frag()
    P.f += at(mk(f"ds_read_b128 {vr(r)}, v{vA0} offset:{slot + kt*4096 + s*256}", tag='rd'), rpos(k0))
    fwait(P, k0, r)
    return r
def rdV(P, k0, slot, t):
    r = next_frag(); a = vA1 if t % 2 == 0 else vA2
    P.f += at(mk([f"ds_read_b64_tr_b16 {vr(r,2)}, v{a} offset:{slot + (t//2)*256}",
                  f"ds_read_b64_tr_b16 {vr(r+2,2)}, v{a} offset:{slot + (t//2)*256 + 4096}"], tag='rd'), rpos(k0), rpos(k0) + 2)
    fwait(P, k0, r)
    return r
def rdW(P, k0, slot, t):
    r = next_frag(); s, e = t // 2, t % 2
    P.f += at(mk([f"ds_read_b64_tr_b16 {vr(r,2)}, v{vA0} offset:{slot + s*256 + e*8}",
                  f"ds_read_b64_tr_b16 {vr(r+2,2)}, v{vA0} offset:{slot + s*256 + e*8 + 1024}"], tag='rd'), rpos(k0), rpos(k0) + 2)
    fwait(P, k0, r)
    return r

def grpQK(P, slot, par, kt, s, cinit):
    k0 = len(P.m); r = rdK(P, k0, slot, kt, s)
    for c in range(5):
        D = vr(Sreg(par, kt, c))
        C = D if s > 0 else ("0" if cinit == 'zero' else vr(Mreg(c)))
        P.m += mk(f"{MF} {D}, {vr(r)}, {ar(Qreg(s,c))}, {C}")
def grpPV(P, slot, par, t, first):
    k0 = len(P.m); r = rdV(P, k0, slot, t)
    for c in range(5):
        D = ar(Oreg(t, c))
        P.m += mk(f"{MF} {D}, {vr(r)}, {vr(Preg(par,c))}, {'0' if first else D}")

def pairup(P, lo=0, hi=80):
    M = P.m
    init = {}
    def parts(i):
        t = i.text.split(None, 1)[1]; o = [x.strip() for x in t.split(',')]; return o
    for i in M[lo:hi]:
        o = parts(i)
        if o[3] != o[0]: init[o[0]] = o[3]
    out = M[:lo]
    for k in range(lo, hi, 10):
        g0, g1 = M[k:k + 5], M[k + 5:k + 10]
        if (k // 10) % 2 == 1: g0, g1 = g0[::-1], g1[::-1]
        for c in range(5):
            out += [g0[c], g1[c]] if c % 2 == 0 else [g1[c], g0[c]]
    out += M[hi:]
    new = []
    for q, i in enumerate(out):
        if lo <= q < hi:
            o = parts(i)
            o[3] = init.pop(o[0]) if o[0] in init else o[0]
            i = mk(f"{MF} " + ", ".join(o))[0]
        new.append(i)
    P.m = new
    for w in P.f:
        if w.kind == 'wait' and lo <= w.pos < hi and w.pos == int(w.pos) and int(w.pos - lo) % 10 == 5: w.pos -= 5.25
    return P

def softmax_ops(par, et=ET):
    ops = []; tc = [0]
    def tmp2():
        r = et + 2 * (tc[0] % 8); tc[0] += 1; return r
    pend = []
    for kt in range(2):
        for c in range(5):
            for h in range(2):
                e = tmp2(); s = Sreg(par, kt, c) + 2 * h
                cur = [f"v_exp_f32 v{e}, v{s}", f"v_exp_f32 v{e+1}, v{s+1}"]
                post = [f"v_cvt_pk_bf16_f32 v{Preg(par,c)+2*kt+h}, v{e}, v{e+1}"]
                if kt == 0 and h == 0:
                    post += [f"v_add_f32 v{Treg(c)}, v{e}, v{e+1}"]
                else:
                    post += [f"v_add_f32 v{Treg(c)}, v{Treg(c)}, v{e}", f"v_add_f32 v{Treg(c)}, v{Treg(c)}, v{e+1}"]
                ops += [cur[0]] + pend[:1] + [cur[1]] + pend[1:]
                pend = post
    ops += pend
    return ops

def cost(t):
    return 2.0 if t.startswith(('v_exp', 'v_rcp')) else 1.0
def spread(lines, p0, p1, tag=None):
    ins = mk(lines, tag=tag); tot = sum(cost(i.text) for i in ins); a = 0
    for i in ins:
        i.pos = p0 + (p1 - p0) * a / tot; a += cost(i.text)
    return ins

chk_ctr = [0]
def check_ops(par):
    return [f"v_max3_f32 v{TMP}, v{Treg(0)}, v{Treg(1)}, v{Treg(2)}",
            f"v_max3_f32 v{TMP}, v{TMP}, v{Treg(3)}, v{Treg(4)}",
            f"v_cmp_nge_f32 vcc, s{sTh}, v{TMP}",
            f"s_cbranch_vccnz RARE{par}_@",
            f"RET_@:"]
def ladd_ops(first=False):
    if first: return [f"v_mov_b32 v{Lreg(c)}, v{Treg(c)}" for c in range(5)]
    return [f"v_add_f32 v{Lreg(c)}, v{Lreg(c)}, v{Treg(c)}" for c in range(5)]

def colmax_ops(par, c, d, t2):
    s = Sreg(par, 0, c)
    return [f"v_max3_f32 v{d}, v{s}, v{s+1}, v{s+2}",
            f"v_max3_f32 v{t2}, v{s+3}, v{s+4}, v{s+5}",
            f"v_max3_f32 v{d}, v{d}, v{s+6}, v{s+7}",
            f"v_max_f32 v{d}, v{d}, v{t2}",
            f"v_mov_b32 v{t2}, v{d}",
            f"v_permlane16_swap_b32 v{d}, v{t2}",
            f"v_max_f32 v{d}, v{d}, v{t2}",
            f"v_mov_b32 v{t2}, v{d}",
            f"v_permlane32_swap_b32 v{d}, v{t2}",
            f"v_max_f32 v{d}, v{d}, v{t2}"]
def interleave(lists):
    out = []
    for i in range(max(len(l) for l in lists)):
        for l in lists:
            if i < len(l): out.append(l[i])
    return out

cur_n2 = [0]
def kvflag(which):
    p = OPT['pol']
    if not p: return OPT['kvnt']
    ch = p[(2 if cur_n2[0] >= 24 else 0) + (0 if which == 'K' else 1)]
    return ' nt' if ch == 'n' else ''
def dma_kv(slot, which):
    sd, si = (sK, sKi) if which == 'K' else (sV, sVi)
    t = sT0 if slot == SLOTA else sT1
    L = [f"s_add_u32 s{t}, s{sKVb}, s{si}",
         f"s_add_u32 s{si}, s{si}, 0x2000",
         f"s_and_b32 s{si}, s{si}, 0x1ffff",
         f"s_add_u32 m0, s{sWr}, {slot}" if slot else f"s_mov_b32 m0, s{sWr}"]
    D = [f"buffer_load_dwordx4 v{vDkv0 if j%2==0 else vDkv1}, {srd(sd)}, s{t} offen offset:{j*1024}{kvflag(which)} lds" for j in range(4)]
    return [L + D[:1]] + [[d] for d in D[1:]]
def dma_qp():
    G = []
    for slot in (SLOTA, SLOTB):
        L = [f"s_add_u32 m0, s{sWr}, {slot}" if slot else f"s_mov_b32 m0, s{sWr}"]
        if slot: L = [f"s_add_u32 s{sWo}, s{sWo}, 0x40000"] + L
        D = [f"buffer_load_dwordx4 v{vDw[j]}, {srd(sW)}, s{sWo} offen offset:{j*1024}{OPT['wnt']} lds" for j in range(4)]
        G += [L + D[:1]] + [[d] for d in D[1:]]
    G[-1] = G[-1] + [f"s_add_u32 s{sWo}, s{sWo}, 0x40000", f"s_and_b32 s{sWo}, s{sWo}, 0x3fffff"]
    L = [f"s_add_u32 s{sXo}, s{sXb}, s{sXc}", f"s_add_u32 m0, s{sWr}, s{sMx}"]
    D = [f"buffer_load_dwordx4 v{vDx[j]}, {srd(sX)}, s{sXo} offen offset:{j*1024}{OPT['xnt']} lds" for j in range(4)]
    G += [L + D[:1]] + [[d] for d in D[1:]]
    G += [[f"s_add_u32 m0, m0, 0x1000", f"s_add_u32 s{sT0}, s{sXo}, 0x8000",
           f"buffer_load_dwordx4 v{vDx[0]}, {srd(sX)}, s{sT0} offen{OPT['xnt']} lds", f"s_add_u32 s{sXc}, s{sXc}, 128", f"s_and_b32 s{sXc}, s{sXc}, 0x3ff"]]
    return G
def next_round_ops():
    return [[f"s_add_u32 s{sKVb}, s{sKVb}, 0x100000",
             f"s_add_u32 s{sWo}, s{sWo}, 2048"] + (rot_ops() if OPT['qrot1'] != OPT['qrot0'] else [])]
def rot_ops():
    return [f"s_lshl_b32 s{sT0}, s{sQr}, 19", f"s_add_u32 s{sWo}, s{sWo}, s{sT0}", f"s_lshl_b32 s{sXc}, s{sQr}, 7"]

def place_groups(G, slots, lo):
    out = []; prev = lo + 0.1
    for g, p in zip(G, slots):
        ins = mk(g); seen = False
        for q, i in enumerate(ins):
            if i.kind in MEMK: i.pos = p; seen = True
            else: i.pos = (p + 0.25) if seen else (p - 2.5)
            i.pos = max(i.pos, prev + 1.0 / 64); prev = i.pos
        out += ins
    return out

def pf_wx(newround):
    L = []
    if newround:
        L = [f"s_add_u32 s{sPFo}, s{sPFo}, s{sPFr}"]
    return [L + [f"buffer_load_dword v{vDum}, v{vPF}, {srd(sPF)}, s{sPFo} offen{OPT['wxpfnt']}", f"s_add_u32 s{sPFo}, s{sPFo}, s{sPFs}"]]
def pf_kv(first):
    L = [f"s_add_u32 s{sPj}, s{sRot}, {OPT['pfstart']}", f"s_and_b32 s{sPj}, s{sPj}, 0x1ffff"] if first else []
    if OPT['pfdma']:
        G = []
        for q in range(OPT['pfdma']):
            pre = (L + [f"s_add_u32 s{sT3}, s{sPb}, s{sPj}", f"s_add_u32 m0, s{sMx}, {3*STAGE - XOFF}"]) if q == 0 else []
            G.append(pre + [f"buffer_load_dwordx4 v{vSt}, {srd(sPK)}, s{sT3} offen{OPT['pfnt']} lds ; pf", f"s_add_u32 s{sT3}, s{sT3}, 1024"])
        G[-1] += [f"s_add_u32 s{sPj}, s{sPj}, {OPT['pfstep']}", f"s_and_b32 s{sPj}, s{sPj}, 0x1ffff"]
        return G
    return [L + [f"s_add_u32 s{sT3}, s{sPb}, s{sPj}", f"buffer_load_dword v{vDum}, v{vPK2}, {srd(sPK)}, s{sT3} offen{OPT['pfnt']}",
             f"s_add_u32 s{sPj}, s{sPj}, {OPT['pfstep']}", f"s_and_b32 s{sPj}, s{sPj}, 0x1ffff"]]

def addr_att(): return [f"v_add_u32 v{vA0}, s{sRd}, v{vKb}", f"v_add_u32 v{vA1}, s{sRd}, v{vV0b}", f"v_add_u32 v{vA2}, s{sRd}, v{vV1b}"]
def addr_qp(): return [f"v_add_u32 v{vA0}, s{sRd}, v{vWb}", f"v_add_u32 v{vA1}, s{sRd}, v{vXb}"]

def qfin_ops(s):
    ops = []
    for c in range(5):
        a = acc(2 * s, c)
        o = [f"v_mul_f32 v{a+i}, s{sC}, v{a+i}" for i in range(8)]
        o += [f"v_cvt_pk_bf16_f32 v{a+2*i}, v{a+2*i}, v{a+2*i+1}" for i in range(4)]
        o += [f"v_accvgpr_write_b32 a{Qreg(s,c)+i}, v{a+2*i}" for i in range(4)]
        ops += o
    return ops

def per_qp(m, agpr=False):
    P = Period(); P.addr = addr_qp()
    for ks in range(2):
        slot = SLOTA if ks == 0 else SLOTB
        k0 = len(P.m)
        xr = [XF + 4 * (ks * 5 + c) for c in range(5)]
        xl = mk([f"ds_read_b128 {ar(xr[c])}, v{vA1} offset:{c*2048 + ks*256}" for c in range(5)], tag='rd')
        xp = [-LEAD + 3, -LEAD + 4, -LEAD + 5, -LEAD + 8, -LEAD + 9] if ks == 0 else [3, 8, 13, 18, 23]
        for i, p in zip(xl, xp): i.pos = p
        P.f += xl
        P.f.append(W([f"a{xr[c]+i}" for c in range(5) for i in range(4)], k0 - 0.5))
        for t in range(8):
            k0 = len(P.m); r = rdW(P, k0, slot, t)
            for c in range(5):
                D = ar(Oreg(t, c)) if agpr else vr(acc(t, c))
                P.m += mk(f"{MF} {D}, {vr(r)}, {ar(xr[c])}, {'0' if (m == 0 and ks == 0) else D}")
    if 'Q' in OPT['pair']: pairup(P)
    if m == 7 and agpr:
        P.f += spread([f"v_mov_b32 v{vRl[c]}, s{sC}" for c in range(5)], 20, 40)
    elif m == 7:
        P.f += spread(qfin_ops(0), 53, 66)
        P.f += spread(qfin_ops(1), 66, 80)
    return P

def per_a0(trans=False):
    P = Period(); P.addr = addr_att()
    for s in range(4):
        for kt in range(2): grpQK(P, SLOTB, 0, kt, s, 'zero')
    if not trans:
        P.f += spread(qfin_ops(2), 0.5, 19.5)
        P.f += spread(qfin_ops(3), 19.6, 29.5)
    mx = interleave([colmax_ops(0, c, ET + 2 * c, ET + 2 * c + 1) +
                     [f"v_sub_f32 v{Mreg(c)+i}, 0, v{ET+2*c}" for i in range(4)] for c in range(5)])
    P.f += at(mk(mx), 40)
    for kt in range(2):
        for s in range(4): grpQK(P, SLOTA, 1, kt, s, 'negm')
    sub = [f"v_add_f32 v{Sreg(0,kt,c)+i}, v{Sreg(0,kt,c)+i}, v{Mreg(c)}" for kt in range(2) for c in range(5) for i in range(4)]
    P.f += spread(sub + softmax_ops(0) + ladd_ops(True), 40.5, 80)
    P.eb = OPT['eb0']
    return P

def per_att(i):
    P = Period(); P.addr = addr_att()
    par = i % 2
    if 'A' in OPT['pair']:
        for g in range(0, 8, 2):
            grpPV(P, SLOTB, par ^ 1, g, i == 1); grpPV(P, SLOTB, par ^ 1, g + 1, i == 1)
            grpQK(P, SLOTA, par ^ 1, g // 4, g % 4, 'negm'); grpQK(P, SLOTA, par ^ 1, g // 4, g % 4 + 1, 'negm')
        pairup(P)
    else:
      for g in range(8):
        grpPV(P, SLOTB, par ^ 1, g, i == 1)
        grpQK(P, SLOTA, par ^ 1, g // 4, g % 4, 'negm')
    if i == 1: P.eb = OPT['eb1']
    P.f += spread(softmax_ops(par), 2.5, 78.5)
    P.f += at(mk(check_ops(par)), 80)
    if not (OPT['a15'] and i == 14): P.f += at(mk(ladd_ops()), 80.5, 82.4)
    if OPT['pad']: P.f += spread([f"v_mov_b32 v247, v247"] * (OPT['pad'] // 4), 3, 78)
    return P

def rl_ops():
    L = []
    for c in range(5):
        d = Lreg(c); t2 = Treg(c)
        L.append([f"v_mov_b32 v{t2}, v{d}", f"v_permlane16_swap_b32 v{d}, v{t2}", f"v_add_f32 v{d}, v{d}, v{t2}",
                  f"v_mov_b32 v{t2}, v{d}", f"v_permlane32_swap_b32 v{d}, v{t2}", f"v_add_f32 v{d}, v{d}, v{t2}",
                  f"v_rcp_f32 v{vRl[c]}, v{d}"])
    return interleave(L)

def per_a15():
    P = Period(); P.addr = addr_att()
    if OPT['a15']:
        P.late = True
        for g in range(8): grpPV(P, SLOTB, 0, g, False)
        for g in range(8): grpPV(P, SLOTA, 1, g, False)
        q = 0
        for i in P.f:
            if i.kind == 'dsr' and i.pos <= 0: i.pos = 0; q += 1
        pre = at(mk(ladd_ops() + softmax_ops(1) + check_ops(2)), 0)
        pre[-1].wr = ['a15tok']
        P.pre = pre
        P.f += spread(ladd_ops() + rl_ops(), 1, 30)
        return P
    for g in range(8): grpPV(P, SLOTB, 0, g, False)
    P.f += spread(softmax_ops(1), 2.5, 39.5)
    P.f += at(mk(check_ops(1)), 40)
    for g in range(8): grpPV(P, SLOTA, 1, g, False)
    P.f += spread(ladd_ops() + rl_ops(), 40.5, 62)
    return P

def epi_ops():
    out = []
    for u in range(4):
        for c in range(5):
            k = u * 5 + c
            o = []
            if k % 4 == 0:
                o += [f"s_add_u32 s{sT2}, s{sOo}, {k*1024}"]
            o += [f"v_accvgpr_read_b32 v{TMP+i}, a{Oreg(2*u + i//4, c) + i%4}" for i in range(8)]
            o += [f"v_mul_f32 v{TMP+i}, v{vRl[c]}, v{TMP+i}" for i in range(8)]
            o += [f"v_cvt_pk_bf16_f32 v{TMP+i}, v{TMP+2*i}, v{TMP+2*i+1}" for i in range(4)]
            o += [f"buffer_store_dwordx4 {vr(TMP)}, v{vSt}, {srd(sO)}, s{sT2} offen offset:{(k%4)*1024}{OPT['ont']}"]
            out.append(o)
    out[-1] += [f"s_add_u32 s{sOo}, s{sOo}, {8*20480}"]
    return out

def norm_ops(u, c, dst, xk=None, pk0=None):
    o = [f"v_accvgpr_read_b32 v{TMP+i}, a{Oreg(2*u + i//4, c) + i%4}" for i in range(8)]
    o += [f"v_mul_f32 v{TMP+i}, v{vRl[c]}, v{TMP+i}" for i in range(8)]
    pk = ET + 4 * ((u * 5 + c) % 4) if dst[0] == 'a' else dst[1]
    if pk0 is not None and dst[0] == 'a': pk = pk0
    o += [f"v_cvt_pk_bf16_f32 v{pk+i}, v{TMP+2*i}, v{TMP+2*i+1}" for i in range(4)]
    if dst[0] == 'a': o += [f"v_accvgpr_write_b32 a{dst[1]+i}, v{pk+i}" for i in range(4)]
    if xk is not None: o += [xwr(dst, xk, c)]
    return o

op_ctr = [0]
def op_frag():
    r = POOL + 4 * (op_ctr[0] % 6); op_ctr[0] += 1
    return r
def op_group(P, areg, o, t, hh, u, first):
    k0 = len(P.m); r = op_frag()
    P.f += at(mk([f"ds_read_b64_tr_b16 {vr(r,2)}, v{areg} offset:{o}",
                  f"ds_read_b64_tr_b16 {vr(r+2,2)}, v{areg} offset:{o + 2048}"], tag='rd'), rpos(k0), rpos(k0) + 2)
    fwait(P, k0, r)
    for c in range(5):
        D = vr(acc(t, c))
        P.m += mk(f"{MF} {D}, {vr(r)}, {rr(Bfrag(hh,u,c))}, {'0' if first else D}")
tokc = [0]
def pub_ops(sp, p0, p1, hold=None, c1=None):
    L = []
    for c in range(5):
        a = acc(2 * sp, c); pk = HOLD[tokc[0] % 3] if hold is None else hold[c]; tokc[0] += 1
        L += [f"v_cvt_pk_bf16_f32 v{pk+i}, v{a+2*i}, v{a+2*i+1}" for i in range(4)]
        if c == 4: L += [f"s_add_u32 s{sPo}, s{sPo}, 4096"]
        L += [f"buffer_store_dwordx4 {vr(pk)}, v{vSt}, {srd(sO)}, s{sPo} offen offset:{(c%4)*1024} sc1"]
    L += [f"s_add_u32 s{sPo}, s{sPo}, 1024"]
    ins = spread(L, p0, p1)
    if c1 is not None:
        cv = [i for i in ins if i.is_valu()]
        for q, i in enumerate(cv): i.pos = min(i.pos, p0 + (c1 - p0) * q / len(cv))
    tok = f"tok{tokc[0]}"
    [i for i in ins if i.kind == 'vst'][-1].wr = [tok]
    return ins, tok
def dest_ops(i):
    return [x.replace(f"s{sT3}", f"s{freg(i)}") for x in dest_ops0(i)]
def freg(i): return sT3 if (i is not None and i % 2 == 0) else 91
def dest_ops0(i):
    if i is None:
        L = [f"s_lshr_b32 s{sT1}, s{sWv}, 1", f"s_add_u32 s{sT3}, s{sSig}, s{sT1}", f"s_add_u32 s{sT3}, s{sT3}, 1", f"s_and_b32 s{sT3}, s{sT3}, 7",
             f"s_mul_i32 s{sPo}, s{sT3}, 163840", f"s_add_u32 s{sPo}, s{sPo}, s{sMb}", f"s_lshl_b32 s{sT3}, s{sT3}, 11", f"s_add_u32 s{sT3}, s{sT3}, s{sFb}",
             f"s_lshl_b32 s{sTa}, s{sT1}, 8", f"s_add_u32 s{sT3}, s{sT3}, s{sTa}", f"s_mul_i32 s{sT1}, s{sT1}, 20480", f"s_add_u32 s{sPo}, s{sPo}, s{sT1}"]
    else:
        L = [f"s_add_u32 s{sT3}, s{sSig}, {1+i}", f"s_and_b32 s{sT3}, s{sT3}, 7", f"s_sub_u32 s{sT3}, s{sT3}, s{sSig}",
             f"s_mul_i32 s{sPo}, s{sT3}, 163840", f"s_add_u32 s{sPo}, s{sPo}, s{sCm}", f"s_add_u32 s{sPo}, s{sPo}, {i*20480}",
             f"s_lshl_b32 s{sT3}, s{sT3}, 11", f"s_add_u32 s{sT3}, s{sT3}, s{sCf}"]
    return L
def flag_ops(i, tok, pos):
    w = W([tok], pos - 1)
    if i is None: st = mk(f"buffer_store_dwordx2 {vr(vTag,2)}, v{vF0}, {srd(sO)}, s{freg(i)} offen sc1")
    else: st = mk(f"buffer_store_dword v{vTag}, v{vF0}, {srd(sO)}, s{freg(i)} offen offset:{i*256} sc1")
    st[0].rd = st[0].rd + [tok]; st[0].pos = pos
    return [w] + st
def per_ds0(hh, umajor=False):
    P = Period(); P.addr = [f"v_add_u32 v{vA0}, s{sRd}, v{vOb}"]
    order = [(u, t) for u in range(4) for t in range(4)] if umajor else [(u, 2 * sp + e) for sp in range(2) for u in range(4) for e in range(2)]
    if 'O' in OPT['pair'] and not umajor: order = [(up + d, 2 * sp + e) for sp in range(2) for up in (0, 2) for e in range(2) for d in range(2)]
    for (u, t) in order:
        op_group(P, vA0, u * 4096 + (t // 2) * 256 + (t % 2) * 8, t, hh, u, hh == 0 and u == 0)
    if 'O' in OPT['pair']: pairup(P)
    if hh == 3:
        P.f += at(mk(dest_ops(None)), 20, 40)
        if OPT['pw'] <= 30:
            i0, _ = pub_ops(0, 45, 75); i1, tok = pub_ops(1, 85, 112); e = 112
        else:
            i0, _ = pub_ops(0, 45, 45 + OPT['pw'], MSG, 75); e = 45 + 2 * OPT['pw']
            i1, tok = pub_ops(1, 45 + OPT['pw'], e)
        P.f += i0 + i1 + flag_ops(None, tok, e + round(80 * OPT['fd']))
    return P
def per_st(i, r):
    P = Period(); P.addr = [f"v_add_u32 v{vA0}, s{sRd}, v{vOb}", f"v_add_u32 v{vA1}, s{sPd}, v{vA0}"]
    order = [(u, e) for u in range(4) for e in range(2)]
    if 'O' in OPT['pair']: order = [(up + d, e) for up in (0, 2) for e in range(2) for d in range(2)]
    for par in range(2):
        for (u, e) in order:
            op_group(P, vA1 if par else vA0, u * 4096 + e * 8, 2 * (i % 2) + e, 2 * r + par, u, r == 0 and par == 0 and u == 0)
    if 'O' in OPT['pair']: pairup(P)
    if r == 1 and i < 7:
        P.f += at(mk(dest_ops(i)), 66, 80)
        e = 84 + (OPT['pw'] if i < 7 - max(1, OPT['pz']) else OPT['pw6'])
        ins, tok = pub_ops(i % 2, 84, e)
        P.f += ins
        if i < 7 - OPT['pz']: P.f += flag_ops(i, tok, e + round(80 * (OPT['fd'] if i < 6 else OPT['fd6'])))
    return P
spins = []
pzspin = []
def chk_ops(load, reg, cmpop, pos, tokname):
    k = len(spins); spins.append((load, cmpop))
    ins = mk([f"v_readfirstlane_b32 s{sSpin}, v{reg}", cmpop, f"s_cbranch_scc0 SPIN{k}", f"SRET{k}:"])
    ins[0].pos = pos - 2
    for x in ins[1:]: x.pos = pos
    ins[-1].wr = [tokname]
    return [W([f"v{reg}"], pos - 3)] + ins
def consume(i, pf, pc, pl, pv0, pv1, buf, pz=False):
    B = {'M': MSG, '1': [acc(2, c) for c in range(5)], '0': [acc(0, c) for c in range(5)], '2': [acc(1, c) for c in range(5)]}[buf]
    fl = vFl if i % 2 == 0 else vFl2
    ldt = [f"s_add_u32 s{sT1}, s{sCm}, {i*20480 + 1024}"] + \
          [f"buffer_load_dwordx4 {vr(B[c])}, v{vSt}, {srd(sO)}, s{sT1} offen offset:{(c-1)*1024} sc1" for c in range(1, 5)] + \
          [f"s_sub_u32 s{sT1}, s{sT1}, 1024", f"buffer_load_dwordx4 {vr(B[0])}, v{vSt}, {srd(sO)}, s{sT1} offen sc1"]
    F = []
    if not pz:
        load = f"buffer_load_dword v{fl}, off, {srd(sO)}, s{sCf} offset:{i*256} sc1"
        F += at(mk(load), pf)
        F += chk_ops(load, fl, f"s_cmp_eq_u32 s{sSpin}, s{sTag}", pc, f"chk{i}")
    ld = mk(ldt)
    for q, x in enumerate(ld):
        x.pos = pl + max(0, 2 * q - 1)
        if x.kind == 'vld' and not pz: x.rd = x.rd + [f"chk{i}"]
    F += ld
    if pz:
        regs = [B[c] + j for c in (1, 2, 3, 4, 0) for j in range(4)]
        chk = [f"v_max3_u32 v{fl}, v{regs[0]}, v{regs[1]}, v{regs[2]}"]
        for q in range(3, 19, 2): chk.append(f"v_max3_u32 v{fl}, v{fl}, v{regs[q]}, v{regs[q+1]}")
        chk += [f"v_max_u32 v{fl}, v{fl}, v{regs[19]}", f"v_cmp_eq_u32 vcc, -1, v{fl}"]
        pzspin.append((i, [x.replace(f"s{sT1}", f"s{sSpin}") for x in ldt], chk))
        if pc < 80 * 64: F.append(W([f"v{B[0]}"], pc - 8))
        F += at(mk(chk), pc - 7, pc - 1)
        br = at(mk([f"s_cbranch_vccnz PZSPIN{i}", f"PZRET{i}:"]), pc)
        br[1].wr = ['scc']
        F += br
    V = []
    tail = pv0 >= 80 * 64
    for c in (1, 2, 3, 4, 0):
        for j in range(4):
            x = B[c] + j; r0, r1 = RREG[c * 8 + 2 * j], RREG[c * 8 + 2 * j + 1]; t = vT1
            if tail: r0, r1 = acc(2, c) + 2 * j, acc(2, c) + 2 * j + 1
            if i == 0: V += [f"v_lshlrev_b32 v{r0}, 16, v{x}", f"v_and_b32 v{r1}, s{sC}, v{x}"]
            else: V += [f"v_lshlrev_b32 v{t}, 16, v{x}", f"v_and_b32 v{x}, s{sC}, v{x}", f"v_add_f32 v{r0}, v{r0}, v{t}", f"v_add_f32 v{r1}, v{r1}, v{x}"]
    if not tail and not pz: F.append(W([f"v{B[0]}"], pv0 - 1))
    F += spread(V, pv0, pv1)
    return F

def dma_op(j):
    D = [f"buffer_load_dwordx4 v{vDx[i%4]}, {srd(sWoS)}, s{sOp if i < 4 else sT0} offen offset:{(i%4)*1024}{OPT['wont']} lds" for i in range(8)]
    G = [[f"s_add_u32 m0, s{sWr}, s{sMw}", D[0]], [D[1]], [D[2]], [D[3]],
         [f"s_add_u32 m0, m0, 0x1000", f"s_add_u32 s{sT0}, s{sOp}, 0x8000", D[4]], [D[5]], [D[6]], [D[7]]]
    if j in (0, 2): adv = [f"s_add_u32 s{sOp}, s{sOp}, s{sOpd}"]
    elif j == 1: adv = [f"s_sub_u32 s{sOp}, s{sOp}, s{sOpd}", f"s_add_u32 s{sOp}, s{sOp}, 0x100000"]
    elif j % 2 == 0: adv = [f"s_add_u32 s{sOp}, s{sOp}, 0x100000"]
    else:
        i = (j + 1) // 2
        adv = [f"s_add_u32 s{sOp}, s{sSig}, {1+i}", f"s_and_b32 s{sOp}, s{sOp}, 7", f"s_lshl_b32 s{sOp}, s{sOp}, 7", f"s_add_u32 s{sOp}, s{sOp}, s{sOpB}"]
    G[-1] = G[-1] + adv
    return G

def build_k1(g2=False):
    periods = []
    def att(trans, upto=15):
        periods.append(per_a0(trans))
        for i in range(1, upto): periods.append(per_att(i))
        if upto == 15: periods.append(per_a15())
    if g2:
        for m in range(8): periods.append(per_qp(m, True))
        for m in range(8): periods.append(per_qp(m))
        att(False); att(True, 8)
    else:
        for r in range(2):
            for m in range(8): periods.append(per_qp(m))
            att(False)
        for j in range(4): periods.append(per_ds0(j, umajor=(j in (1, 2))))
        for i in range(2, 8):
            for r in range(2): periods.append(per_st(i, r))
    assert pool_ctr[0] % NPOOL == 0
    for n, P in enumerate(periods[:-1]):
        eb = getattr(P, 'eb', 0)
        if eb:
            periods[n + 1].bshift = 80 - LEAD - eb
            lim = eb - 7
            for i in sorted([i for i in P.f if i.kind == 'dsr'], key=lambda i: -i.pos):
                i.pos = min(i.pos, lim); lim = i.pos - 1
    def dma_for(n2):
        cur_n2[0] = n2
        if g2:
            if n2 < 16:
                G = dma_qp()
                if n2 == 8: G[0] = [f"s_sub_u32 s{sWo}, s{sWo}, 2048"] + (rot_ops() if OPT['g2rot'] else []) + G[0]
                return G
            j = 8 + n2 % 16
            if n2 == 32:
                G = dma_kv(SLOTB, 'K') + dma_kv(SLOTA, 'K')
                G[0] = [f"s_add_u32 s{sKVb}, s{sKVb}, 0x100000"] + G[0]
                return G
        else:
            if n2 >= 64: return []
            if n2 >= 48: return dma_op(n2 - 48)
            j = n2 % 24
        if j < 8:
            G = dma_qp()
            if j == 0: G[0] = next_round_ops()[0] + G[0]
            return G
        if j == 8: return dma_kv(SLOTB, 'K') + dma_kv(SLOTA, 'K')
        if j == 23: return dma_kv(SLOTB, 'V') + dma_kv(SLOTA, 'V')
        return dma_kv(SLOTB, 'V') + dma_kv(SLOTA, 'K')
    M = []; F = []
    for n, P in enumerate(periods):
        base = 80 * n
        assert len(P.m) == 80
        M += P.m
        late = getattr(P, 'late', False)
        if not late:
            for i in P.f: i.pos = round(i.pos * 256) / 256.0 + base; F.append(i)
        b0 = base - LEAD - getattr(P, 'bshift', 0)
        span = 80 + getattr(P, 'bshift', 0) - (getattr(periods[n + 1], 'bshift', 0) if n + 1 < len(periods) else 0)
        pre = [f"s_add_u32 s{sWr}, s{sRd}, s{sMw}",
               f"s_add_u32 s{sRd}, s{sRd}, {STAGE}",
               f"s_cmp_eq_u32 s{sRd}, {3*STAGE}",
               f"s_cselect_b32 s{sRd}, 0, s{sRd}"] + P.addr
        pi = at(mk(pre), b0 - 5, b0 - 0.1); pi[3].pos = pi[2].pos
        F += pi
        if late:
            for i in P.pre: i.pos = base; F.append(i)
            b0 = base
        if OPT['stamp'] and late: F += at(mk("s_memtime s[50:51]"), b0)
        elif OPT['stamp']: F += at(mk("s_memrealtime s[50:51]" if (OPT['probe'] or OPT['stamp'] == 3) else "s_memtime s[50:51]"), b0 - 0.05)
        bi = at(mk("s_barrier", tag='barwait'), b0)
        if late:
            bi[0].rd = ['a15tok']
            if OPT['stamp']: F[-1].rd = ['a15tok']
        F += bi
        if OPT['stamp']: F += at(mk(["s_mov_b32 m0, s45", "s_add_u32 s45, s45, 1", "v_writelane_b32 v235, s50, m0"]), b0 + 0.01)
        if late:
            for i in P.f: i.pos = round(i.pos * 256) / 256.0 + base; F.append(i)
        G = dma_for(n + 2)
        j = n % 24
        wo = [int(x) for x in OPT['wopf'].split(',') if x != '']
        if n in wo:
            G = G + [[f"buffer_load_dword v{vDum}, v{vPK}, {srd(sWoS)}, s{sPb} offen{OPT['wopfnt']}", f"s_add_u32 s{sPb}, s{sPb}, 8192"]]
            if n == wo[0]: G[-1] = [f"s_mov_b32 s{sPb}, s{sPi}"] + G[-1]
        if not G: continue
        slots = [b0 + 4 + 5 * q for q in range(13)] if len(G) <= 13 else [b0 + 3 + 5 * (q // 2) + (q % 2) for q in range(26)]
        if span != 80: slots = [x for x in [5 * ((b0 + 4) // 5) + 4 + 5 * q for q in range(30)] if x < b0 + span - 12]
        if span < 60: slots = [x for x in [5 * ((b0 + 4) // 5) + 3 + 5 * (q // 2) + (q % 2) for q in range(60)] if x < b0 + span - 10]
        if OPT['uni'] and span == 80 and len(G) == 8 and n + 2 < 48: slots = [b0 + OPT['uni'] + 10 * q for q in range(8)]
        if late: slots = [x for x in [b0 + 3 + 5 * (q // 2) + (q % 2) for q in range(26)] if x < b0 + 55]
        step = len(slots) / len(G)
        if OPT['dense'] and len(G) == 8 and n + 2 < 48:
            slots = [b0 + 3 + 5 * (q // 2) + (q % 2) for q in range(26)] if OPT['dense'] in (1, 3) else slots
            if OPT['dense'] == 3 and (n % 24) >= 9: slots = slots[18:]
            if OPT['dense'] == 4 and (n % 24) >= 9: slots = slots[5:]
            step = 1
        pg = place_groups(G, [slots[int(gi * step)] for gi in range(len(G))], b0)
        if OPT['cap'] and len(G) == 8 and n + 2 < 48 and ((n >= 8 + OPT['capfrom'] and str(n) not in OPT['tun'].split(',')) if g2 else ((n % 24) >= OPT['capfrom'])):
            for i in pg:
                cv = OPT['cap1'] if (OPT['cap1'] and n < (33 if g2 else 24)) else OPT['cap']
                if OPT['dyn']: cv = OPT['dyn']
                if i.kind == 'dma': i.vm = cv - 1; i.text += f" ; cap{cv}"
            if OPT['dyn']:
                extra = []
                for i in pg:
                    if i.kind == 'dma':
                        t = mk([f"s_bitcmp0_b32 s{sDyn}, 0", "s_cbranch_scc1 TIGHT_#", "TRET_#:"])
                        t[0].op = 's_cmp_bit'; t[0].wr = ['scc']; t[0].rd = [f"s{sDyn}"]
                        t[1].kind = 'salu'; t[1].wr = ['tgt']; t[1].rd = ['scc']
                        t[2].kind = 'glue'; t[2].rd = ['tgt']; t[2].wr = ['tgt2']
                        for x in t: x.pos = i.pos - 1
                        i.rd = i.rd + ['tgt2']
                        extra += t
                sh = mk(f"s_lshr_b32 s{sDyn}, s{sDyn}, 1"); sh[0].pos = max(i.pos for i in pg) + 0.3
                pg = extra + pg + sh
        if OPT['capq'] and len(G) == 13 and n in (22, 23):
            for i in pg:
                if i.kind == 'dma': i.vm = OPT['capq'] - 1; i.text += " ; cap"
        if OPT['capo'] and n in (46, 47, 48, 49):
            for i in pg:
                if i.kind == 'dma': i.vm = OPT['capo'] - 1; i.text += " ; cap"
        F += pg
    def B0(n): return 80 * n - LEAD
    def mem_at(lines, p0, step=5):
        ins = mk(lines)
        for q, i in enumerate(ins): i.pos = p0 + step * q if isinstance(step, (int, float)) else step[q]
        if OPT['w64']:
            out = []
            for i in ins:
                if i.op == 'ds_write_b128':
                    m = re.match(r"ds_write_b128 (v\d+), ([va])\[(\d+):\d+\] offset:(\d+)", i.text)
                    a, t, r, o = m.group(1), m.group(2), int(m.group(3)), int(m.group(4))
                    out += at(mk([f"ds_write_b64 {a}, {t}[{r}:{r+1}] offset:{o}", f"ds_write_b64 {a}, {t}[{r+2}:{r+3}] offset:{o+8}"]), i.pos, i.pos + 2)
                else: out.append(i)
            ins = out
        return ins
    flat = [x for u in (2, 0, 1, 3) for c in range(5) for x in norm_ops(u, c, ('a', Oreg(2 * u, c)) if u < 3 else PK3[c])]
    q1 = 8 if g2 else 24
    fl = spread(flat, 5, 80 * 6 - LEAD)
    for i in fl: i.pos = round(i.pos * 256) / 256.0 + 80 * q1
    F += fl
    for n, k in ((q1 + 6, 2), (q1 + 7, 0), (q1 + 8, 1)):
        F += mem_at([xwr(('a', Oreg(2 * k, c)), k, c) for c in range(5)], B0(n) + 20, 5)
    if g2:
        F += mem_at([xrd(Bfrag(0, u, c), u, c, True) for u in range(3) for c in range(5)], 0, [80 * 31 + 3 + 5 * (q // 2) + (q % 2) for q in range(15)])
        mv = [f"v_accvgpr_mov_b32 a{Qreg(3,c)+i}, a{PK3[c][1]+i}" if PK3[c][0] == 'a' else f"v_accvgpr_write_b32 a{Qreg(3,c)+i}, v{PK3[c][1]+i}" for c in range(5) for i in range(4)]
        F += spread(mv, 80 * 31 + (31 if OPT['a15'] else 41), 80 * 31 + (52 if OPT['a15'] else 62))
        win = [(80 * 31 + 63, 80 * 32 + 5), (80 * 32 + 5, 80 * 32 + 22), (80 * 32 + 22, 80 * 32 + 39.5)]
        if OPT['a15']: win = [(80 * 31 + 54, 80 * 31 + 76), (80 * 31 + 76, 80 * 32 + 18), (80 * 32 + 18, 80 * 32 + 39.5)]
        for u in range(3):
            F += spread([x for c in range(5) for x in norm_ops(u, c, ('v', Preg(0, c)), xk=u)], *win[u])
        F += spread([x for c in range(5) for x in norm_ops(3, c, PK3[c], pk0=Preg(1, c))], 80 * 32 + 41, 80 * 32 + 62)
    else:
        F += op_extras(B0, mem_at)
    return finish(M, F)

def op_extras(B0, mem_at):
    F = []
    if OPT['qn']:
        for n in list(range(OPT['qlo'], OPT['qhi'])) + list(range(OPT['qlo2'], OPT['qhi2'])):
            for q in range(16): F += at(mk(f"s_nop {OPT['qn']}"), 80 * n + 5 * q + 2.5)
    rd47 = [xrd(Bfrag(0, u, c), u, c, True) for u in range(3) for c in range(5)]
    F += mem_at(rd47, 80 * 47 + 3, [80 * 47 + 3 + 5 * (q // 2) + (q % 2) for q in range(15)])
    rd47b = [xrd(Bfrag(1, u, c), u, c, False) for u in (2, 0) for c in range(5)]
    F += mem_at(rd47b, 0, [80 * 47 + 43 + 5 * (q // 3) + (q % 3) for q in range(10)])
    F.append(W([f"a{160+i}" for i in range(60)], 80 * 48 - 0.5))
    F += mem_at([xrd(Bfrag(1, 1, c), 1, c, False) for c in range(5)], 80 * 48 + 5)
    F += mem_at([xwr(PK3[c], 0, c) for c in range(5)], B0(48) + 5)
    nrm = lambda u: [x for c in range(5) for x in norm_ops(u, c, Bfrag(2, u, c))]
    if OPT['a15']:
        F += spread(nrm(0), 80 * 47 + 54, 80 * 48 + 20)
    else: F += spread(nrm(0), 80 * 47 + 63, 80 * 48 + 35)
    F += mem_at([xwr(Bfrag(2, 0, c), 2, c) for c in range(5)], 80 * 48 + 38, 4)
    F += spread(nrm(1), 80 * 48 + (20 if OPT['a15'] else 35), 80 * 49 + (0 if OPT['a15'] else 10))
    F += mem_at([xrd(Bfrag(1, 3, c), 0, c, False) for c in range(5)] + [xrd(Bfrag(3, 0, c), 2, c, False) for c in range(5)], B0(49) + 5)
    F += mem_at([xwr(Bfrag(2, 1, c), 1, c) for c in range(5)], 80 * 49 + 38, 4)
    F += spread(nrm(2), 80 * 49 + (0 if OPT['a15'] else 10), 80 * 49 + 60)
    F += spread(nrm(3), 80 * 49 + 60, 80 * 50 + 35)
    F += mem_at([xrd(Bfrag(3, 1, c), 1, c, False) for c in range(5)] + [xwr(Bfrag(2, 2, c), 0, c) for c in range(5)], B0(50) + 5)
    F += mem_at([xwr(Bfrag(2, 3, c), 2, c) for c in range(5)], 80 * 50 + 38, 4)
    F += mem_at([xrd(Bfrag(3, 2, c), 0, c, False) for c in range(5)] + [xrd(Bfrag(3, 3, c), 2, c, False) for c in range(5)], 0,
                [B0(51) + 3 + 5 * (q // 3) + (q % 3) for q in range(10)])
    eload = f"buffer_load_dword v{vEp}, off, {srd(sDbg)}, s{sSpin2} sc1"
    el = at(mk(eload), 80 * 46 + 30)
    F += el
    F += chk_ops(eload, vEp, f"s_cmp_lg_u32 s{sSpin}, 0", 80 * 47 + 70, "chke")
    late = [f"s_mov_b32 s{sTag}, s{sSpin}", f"s_mov_b32 s{sC}, 0xffff0000"]
    li = at(mk(late), 80 * 47 + 70.5, 80 * 47 + 72); li[0].rd = li[0].rd + ["chke"]
    F += li
    lv = [f"v_mov_b32 v{vTag}, s{sTag}", f"v_mov_b32 v{vTag+1}, s{sTag}",
          f"v_min_u32 v{vF0}, 16, v{vSt}", f"v_lshlrev_b32 v{vF0}, 26, v{vF0}"]
    F += spread(lv, 80 * 50 + 40, 80 * 50 + 60)
    F += spread([f"v_and_b32 v{vOut}, 0xf0, v{vSt}", f"v_lshlrev_b32 v{vOut}, 7, v{vOut}", f"v_lshrrev_b32 v{vOut+1}, 8, v{vSt}", f"v_lshl_add_u32 v{vOut}, v{vOut+1}, 4, v{vOut}"], 80 * 63 + 50, 80 * 63 + 60)
    F += at(mk([f"s_lshr_b32 s{sT1}, s{sWv}, 1", f"s_lshl_b32 s{sT1}, s{sT1}, 8", f"v_add_u32 v{vOb}, s{sT1}, v{vOb}"]), 80 * 51 + 2, 80 * 51 + 10)
    T = lambda x: 80 * x
    PZ = list(range(7 - OPT['pz'], 7))
    if PZ:
        pq = MSG[0]
        F += spread([f"v_mov_b32 v{pq+j}, -1" for j in range(4)], 80 * 48 + 2, 80 * 48 + 6)
        L = []
        for i in PZ:
            L += [f"s_add_u32 s{sT1}, s{sCm}, {i*20480 + 1024}"] + \
                 [f"buffer_store_dwordx4 {vr(pq)}, v{vSt}, {srd(sO)}, s{sT1} offen offset:{(c-1)*1024} sc1" for c in range(1, 5)] + \
                 [f"s_sub_u32 s{sT1}, s{sT1}, 1024", f"buffer_store_dwordx4 {vr(pq)}, v{vSt}, {srd(sO)}, s{sT1} offen sc1"]
        F += at(mk(L), 80 * 48 + 8, 80 * 50 + 70)
    for i, spec in enumerate(OPT['cs'].split(';')):
        q = spec.split(',')
        F += consume(i, *[round(T(float(x))) for x in q[:5]], q[5], i in PZ)
    F += spread([f"v_add_f32 v{acc(2,c)+j}, v{acc(2,c)+j}, v{RREG[c*8+j]}" for c in range(5) for j in range(8)], T(64.3), T(64.85))
    fin = []
    for q, c in enumerate((1, 2, 3, 4, 0) if OPT['fin2'] else range(5)):
        a = acc(2, c)
        L = [f"v_cvt_pk_bf16_f32 v{a+i}, v{a+2*i}, v{a+2*i+1}" for i in range(4)]
        L += [f"s_add_u32 s{sT0}, s{sOutO}, {c*32768}", f"buffer_store_dwordx4 {vr(a)}, v{vOut}, {srd(sOutS)}, s{sT0} offen{OPT['outf']}"]
        if OPT['fin2']: F += at(mk(L), T(65.5) + 8 * (q + 1) - 0.25)
        else: fin += L
    if fin: F += spread(fin, T(66.1), T(67))
    return F

def finish(M, F):
    dr = OPT['drop']
    if 'L' in dr: F = [i for i in F if not (i.kind == 'vld' and 'dwordx4' in i.op)]
    if 'F' in dr: F = [i for i in F if not ((i.kind == 'branch' and 'SPIN' in i.text))]
    if 'G' in dr: F = [i for i in F if not (i.kind == 'vld' and i.op == 'buffer_load_dword' and i.pos > 80 * 48)]
    if 'P' in dr: F = [i for i in F if not (i.kind == 'vst' and 'dwordx4' in i.op and i.pos < 80 * 64)]
    if 'N' in dr: F = [i for i in F if not (i.is_valu() and 80 * 24 + 4 < i.pos < 80 * 30 and i.op not in ('v_add_u32', 'v_writelane_b32'))]
    if 'X' in dr: F = [i for i in F if not (i.op == 'ds_read_b128' and 80 * 24 < i.pos < 80 * 31)]
    if 'Q' in dr: F = [i for i in F if not (i.kind == 'dma' and 80 * 23 < i.pos < 80 * 29)]
    if 'W' in dr: F = [i for i in F if not (i.op == 'ds_read_b64_tr_b16' and 80 * 24 < i.pos < 80 * 31)]
    if 'A' in dr: F = [i for i in F if not (i.op == 'v_add_f32' and 80 * 8 < i.pos < 80 * 48)]
    if 'B' in dr: F = [i for i in F if not (i.kind == 'branch' and 'RARE' in i.text)]
    if 'D' in dr: F = [i for i in F if i.kind != 'dma']
    if 'E' in dr: F = [i for i in F if i.kind != 'trans']
    if 'V' in dr: F = [i for i in F if not (i.kind == 'valu' and i.op in ('v_add_f32', 'v_cvt_pk_bf16_f32'))]
    if 'R' in dr: F = [i for i in F if i.kind != 'dsr']
    if 'S' in dr: F = [i for i in F if i.kind != 'vst']
    if 'C' in dr: F = [i for i in F if not (i.kind == 'branch' or i.kind == 'label')]
    for i in F:
        i.pos = round(i.pos * 256) / 256.0
        if i.kind == 'vld' and i.wr == [f"v{vDum}"]: i.wr = []
    seq = gap_schedule(M, F, OPT['early'], OPT['late']) if OPT['sched'] else merge_global(M, F)
    segs = [[]]
    for i in seq:
        if i.kind == 'barrier': segs.append([])
        segs[-1].append(i)
    return segs

def merge_global(M, F):
    fl = sorted(enumerate(F), key=lambda e: (e[1].pos, e[0]))
    out = []; j = 0
    for k, m in enumerate(M):
        while j < len(fl) and fl[j][1].pos <= k:
            out.append(fl[j][1]); j += 1
        out.append(m)
    out += [e[1] for e in fl[j:]]
    return out

def k1_setup():
    cexp = math.log2(math.e) / math.sqrt(128.0)
    n = OPT['cpf']
    CPF = "" if not n else f"""s_getpc_b64 s[62:63]
s_lshr_b32 s5, s2, 3
s_lshl_b32 s5, s5, 2
v_add_u32 v21, s5, v20
v_mul_u32_u24 v21, {n}, v21
v_min_u32 v22, {n-1}, v0
v_add_u32 v21, v21, v22
v_min_u32 v21, CODE_LINES, v21
v_lshlrev_b32 v21, 7, v21
global_load_dword v{vDum}, v21, s[62:63]"""
    A = mk(f"""
s_cmp_ge_u32 s2, 256
s_cbranch_scc1 K1_END
s_and_b32 s3, s2, 7
s_lshr_b32 s4, s3, 2
s_mul_i32 s4, s4, 40
s_add_u32 s6, s0, s4
s_addc_u32 s7, s1, 0
s_load_dwordx8 s[52:59], s[6:7], 0
s_load_dwordx2 s[60:61], s[0:1], 96
s_load_dwordx2 s[78:79], s[6:7], 32
s_load_dwordx2 s[{sOutS}:{sOutS+1}], s[0:1], 80
s_load_dwordx2 s[{sDbg}:{sDbg+1}], s[0:1], 88
s_memrealtime s[46:47]
v_lshrrev_b32 v20, 6, v0
v_and_b32 v0, 63, v0
v_readfirstlane_b32 s{sWv}, v20
{CPF}
v_lshrrev_b32 v20, 4, v0
v_bfe_u32 v21, v0, 2, 2
v_and_b32 v22, 3, v0
s_lshr_b32 s5, s2, 3
s_bfe_u32 s{62 if OPT['xmap'] == 0 else 63}, s3, 0x10001
s_and_b32 s{63 if OPT['xmap'] == 0 else 62}, s3, 1
s_lshr_b32 s71, s5, 2
s_lshl_b32 s62, s62, 3
s_add_u32 s64, s71, s62
s_and_b32 s4, s5, 3
s_lshl_b32 s65, s4, 1
s_lshl_b32 s63, s63, 4
s_add_u32 s63, s65, s63
s_lshr_b32 s66, s{sWv}, 1
s_and_b32 s67, s{sWv}, 1
s_add_u32 s65, s63, s66
s_lshl_b32 s{sMw}, s{sWv}, 12
s_lshl_b32 s{sMx}, s{sWv}, 10
s_add_u32 s{sMx}, s{sMx}, {XOFF}
s_lshl_b32 s{sWo}, s65, 8
s_lshl_b32 s68, s67, 17
s_add_u32 s{sWo}, s{sWo}, s68
s_mul_i32 s69, s64, 163840
s_mul_i32 s68, s{sWv}, 40960
s_add_u32 s{sKi}, s69, s68
s_lshl_b32 s70, s4, 1
s_add_u32 s70, s70, s71
s_and_b32 s70, s70, 7
s_mov_b32 s{sVi}, s3
v_lshlrev_b32 v25, 4, v22
v_lshl_add_u32 v25, v20, 6, v25
v_lshl_add_u32 v{vDkv0}, v21, 8, v25
v_xor_b32 v{vDkv1}, 32, v{vDkv0}
v_lshl_add_u32 v{vDw[0]}, v21, 13, v25
v_add_u32 v{vDw[1]}, {31744}, v{vDw[0]}
v_add_u32 v{vDw[2]}, {2*31744}, v{vDw[0]}
v_add_u32 v{vDw[3]}, {3*31744}, v{vDw[0]}
v_lshrrev_b32 v24, 5, v0
v_lshlrev_b32 v25, 1, v24
v_xor_b32 v25, v25, v22
v_lshlrev_b32 v25, 4, v25
v_and_b32 v23, 1, v20
v_lshl_add_u32 v25, v23, 6, v25
v_lshl_add_u32 v25, v21, 10, v25
v_lshl_add_u32 v{vDx[0]}, v24, 12, v25
v_add_u32 v{vDx[1]}, 7168, v{vDx[0]}
v_add_u32 v{vDx[2]}, {2*7168}, v{vDx[0]}
v_add_u32 v{vDx[3]}, {3*7168}, v{vDx[0]}
s_mov_b32 s{sX+2}, 2621440
s_mov_b32 s{sX+3}, 0x20000
s_mov_b32 s{sW+2}, 4194304
s_mov_b32 s{sW+3}, 0x20000
s_bfe_u32 s{sG2}, s2, {0x10000 + 5 + OPT['g2bit'] if OPT['g2'] else 0}
s_xor_b32 s{sG2}, s{sG2}, {OPT['g2inv']}
s_lshl_b32 s68, s{sG2}, 11
s_add_u32 s{sWo}, s{sWo}, s68
s_mul_i32 s68, s{sG2}, {STAGE}
s_add_u32 s{sWr}, s{sMw}, s68
s_waitcnt lgkmcnt(0)
s_mov_b32 s{sX}, s52
s_mov_b32 s{sX+1}, s53
s_mov_b32 s{sW}, s58
s_mov_b32 s{sW+1}, s59
s_mov_b32 s{sXb}, s{sKi}
s_mov_b32 s{sXc}, 0
s_mov_b32 s{sQr}, s70
s_mov_b32 s71, s{sVi}
""") + (mk(rot_ops()) if OPT['qrot0'] else [])
    for i in A:
        if i.kind == 'vld': i.wr = []
    pf = []
    D0 = mk([x for g in dma_qp() for x in g])
    D1 = mk(f"s_add_u32 s{sWr}, s{sWr}, {STAGE}", tag='vmreset') + mk([x for g in dma_qp() for x in g])
    B = mk(f"""
s_mul_i32 s68, s{sG2}, {2*STAGE}
s_sub_u32 s{sRd}, {2*STAGE}, s68
s_lshl_b32 s68, s64, 5
s_add_u32 s68, s68, s65
s_lshl_b32 s{sPb}, s68, 17
s_lshl_b32 s68, s67, 12
s_add_u32 s{sKVb}, s{sPb}, s68
s_mul_i32 s{sKi}, s2, {OPT['rot']*0x2000*OPT['ra']}
s_lshr_b32 s68, s2, {OPT['rsh']}
s_mul_i32 s68, s68, {OPT['rot']*0x2000*OPT['rb']}
s_add_u32 s{sKi}, s{sKi}, s68
s_and_b32 s{sKi}, s{sKi}, 0x1ffff
s_mov_b32 s{sVi}, s{sKi}
s_lshr_b32 s62, s71, 2
s_lshl_b32 s68, s62, 4
s_add_u32 s68, s68, s64
s_lshl_b32 s{sSpin2}, s68, 3
s_mul_i32 s{sMb}, s68, {8*163840}
s_mul_i32 s4, s67, 10240
s_add_u32 s{sMb}, s{sMb}, s4
s_lshl_b32 s{sFb}, s68, 14
s_lshl_b32 s4, s67, 7
s_add_u32 s{sFb}, s{sFb}, s4
s_add_u32 s{sFb}, s{sFb}, {FLAGB}
{"s_and_b32 s68, s71, 1" if OPT['xmap'] == 0 else "s_bfe_u32 s68, s71, 0x10001"}
s_lshl_b32 s68, s68, 2
s_and_b32 s4, s5, 3
s_add_u32 s{sSig}, s68, s4
s_mul_i32 s4, s64, {OPT['orot']}
s_add_u32 s{sSig}, s{sSig}, s4
s_and_b32 s{sSig}, s{sSig}, 7
s_mul_i32 s{sCm}, s{sSig}, 163840
s_add_u32 s{sCm}, s{sCm}, s{sMb}
s_mul_i32 s4, s66, 5120
s_add_u32 s{sCm}, s{sCm}, s4
s_lshl_b32 s{sCf}, s{sSig}, 11
s_add_u32 s{sCf}, s{sCf}, s{sFb}
s_lshl_b32 s4, s66, 2
s_add_u32 s{sCf}, s{sCf}, s4
s_lshl_b32 s4, s64, 1
s_add_u32 s4, s4, s67
s_mul_i32 s{sOutO}, s4, {80*2048}
s_lshl_b32 s4, s62, 10
s_add_u32 s{sOutO}, s{sOutO}, s4
s_lshl_b32 s4, s{sSig}, 7
s_add_u32 s{sOutO}, s{sOutO}, s4
s_lshl_b32 s4, s66, 6
s_add_u32 s{sOutO}, s{sOutO}, s4
s_lshl_b32 s{sOpB}, s65, 17
s_lshl_b32 s68, s67, 16
s_add_u32 s{sOpB}, s{sOpB}, s68
s_add_u32 s4, s{sSig}, s66
s_add_u32 s4, s4, 1
s_and_b32 s4, s4, 7
s_lshl_b32 s4, s4, 7
s_add_u32 s{sOp}, s{sOpB}, s4
s_lshl_b32 s68, s66, 18
s_sub_u32 s{sOpd}, 0x20000, s68
s_lshl_b32 s68, s66, 15
s_sub_u32 s{sPd}, 0x4000, s68
s_mov_b32 s{sC}, {f2h(cexp)}
s_mov_b32 s{sTh}, {f2h(OPT['thresh'])}
s_mov_b32 s{sRound}, 0
s_mul_i32 s{sDyn}, s{sG2}, {OPT['m2'] - OPT['m1']}
s_add_u32 s{sDyn}, s{sDyn}, {OPT['m1']}
s_lshl_b32 s69, s66, 13
s_mul_i32 s70, s67, 10240
s_add_u32 s70, s70, {XOFF}
v_and_b32 v23, 1, v21
v_lshlrev_b32 v23, 1, v23
v_xor_b32 v23, v23, v20
v_lshlrev_b32 v23, 4, v23
v_lshl_add_u32 v23, v22, 6, v23
v_lshl_add_u32 v{vKb}, v21, 10, v23
v_add_u32 v{vKb}, s69, v{vKb}
v_lshl_add_u32 v{vXb}, v21, 9, v23
v_add_u32 v{vXb}, s70, v{vXb}
v_and_b32 v23, 1, v20
v_lshlrev_b32 v23, 5, v23
v_lshlrev_b32 v24, 3, v22
v_xor_b32 v23, v23, v24
v_lshl_add_u32 v23, v21, 6, v23
v_lshl_add_u32 v23, v20, 10, v23
v_add_u32 v{vV0b}, s69, v23
v_xor_b32 v{vV1b}, 32, v{vV0b}
v_lshlrev_b32 v23, 4, v22
v_lshl_add_u32 v23, v21, 6, v23
v_lshl_add_u32 v23, v20, 11, v23
v_add_u32 v{vWb}, s69, v23
{"v_mov_b32 v%d, v%d" % (vWb, vV0b) if OPT['wcf'] else ""}
v_lshlrev_b32 v{vSt}, 4, v0
v_lshlrev_b32 v{vPK}, 7, v0
v_and_b32 v23, 1, v20
v_lshlrev_b32 v23, 1, v23
v_xor_b32 v23, v23, v22
v_lshlrev_b32 v23, 4, v23
v_lshl_add_u32 v23, v21, 6, v23
v_lshl_add_u32 v23, v20, 9, v23
s_lshl_b32 s69, s66, 14
v_add_u32 v{vOb}, s69, v23
s_mul_i32 s69, s{sWv}, 5120
s_add_u32 s69, s69, {XOFF}
v_add_u32 v{vXo0}, s69, v{vSt}
v_add_u32 v{vXo2}, {2*STAGE}, v{vXo0}
s_xor_b32 s69, s{sWv}, 2
s_mul_i32 s69, s69, 5120
s_add_u32 s69, s69, {XOFF}
v_add_u32 v{vXp0}, s69, v{vSt}
v_add_u32 v{vXp2}, {2*STAGE}, v{vXp0}
s_mov_b32 s{sWoS}, s78
s_mov_b32 s{sWoS+1}, s79
s_mov_b32 s{sWoS+2}, 4194304
s_mov_b32 s{sWoS+3}, 0x20000
s_mov_b32 s{sK}, s54
s_mov_b32 s{sK+1}, s55
s_mov_b32 s{sK+2}, 67108864
s_mov_b32 s{sK+3}, 0x20000
s_mov_b32 s{sV}, s56
s_mov_b32 s{sV+1}, s57
s_mov_b32 s{sV+2}, 67108864
s_mov_b32 s{sV+3}, 0x20000
s_mov_b32 s{sO}, s60
s_mov_b32 s{sO+1}, s61
s_mov_b32 s{sO+2}, {FLAGB + 524288}
s_mov_b32 s{sO+3}, 0x20000
s_mov_b32 s{sOutS+2}, 5242880
s_mov_b32 s{sOutS+3}, 0x20000
s_mov_b32 s{sDbg+2}, 256
s_mov_b32 s{sDbg+3}, 0x20000
s_add_u32 s4, s{sSig}, s{sWv}
s_cmp_lg_u32 s4, 0
s_cbranch_scc1 K1_NOEP
s_or_b32 s4, s46, 1
v_mov_b32 v24, s4
v_lshlrev_b32 v25, 20, v0
buffer_store_dword v24, v25, {srd(sDbg)}, s{sSpin2} offen sc1 ; nc
K1_NOEP:
""")
    def stp(k): return mk(["s_memtime s[50:51]", "s_waitcnt lgkmcnt(0)", f"v_writelane_b32 v246, s50, {k}"]) if OPT['stamp'] == 2 else []
    return A + stp(2) + pf + D0 + stp(3) + (B + stp(4) + D1 if OPT['d1late'] else D1 + B) + stp(5) + (mk("s_waitcnt vmcnt(13)") if OPT['stamp'] == 2 else []) + stp(6)

def rare(name):
    par = min(name, 1)
    L = [f"RARE{name}:", "s_nop 15"]
    d, t2, f = TMP, TMP + 1, TMP + 2
    for c in range(5):
        L += colmax_ops(par, c, d, t2)
        L += [f"v_max_f32 v{d}, 0, v{d}", f"v_ceil_f32 v{d}, v{d}", f"v_exp_f32 v{f}, -v{d}"]
        if name == 2:
            for i in range(4):
                x = Preg(0, c) + i
                L += [f"v_lshlrev_b32 v{TMP+4}, 16, v{x}", f"v_and_b32 v{TMP+5}, 0xffff0000, v{x}", f"v_mul_f32 v{TMP+4}, v{TMP+4}, v{f}",
                      f"v_mul_f32 v{TMP+5}, v{TMP+5}, v{f}", f"v_cvt_pk_bf16_f32 v{x}, v{TMP+4}, v{TMP+5}"]
        L += [f"v_sub_f32 v{Mreg(c)+i}, v{Mreg(c)+i}, v{d}" for i in range(4)]
        L += [f"v_sub_f32 v{blk(c)+i}, v{blk(c)+i}, v{d}" for i in range(16)]
        L += [f"v_mul_f32 v{Lreg(c)}, v{Lreg(c)}, v{f}"]
        for t in range(8):
            L += [f"v_accvgpr_read_b32 v{TMP+4+i}, a{Oreg(t,c)+i}" for i in range(4)]
            L += [f"v_mul_f32 v{TMP+4+i}, v{TMP+4+i}, v{f}" for i in range(4)]
            L += [f"v_accvgpr_write_b32 a{Oreg(t,c)+i}, v{TMP+4+i}" for i in range(4)]
    L += softmax_ops(par)
    L += ["s_nop 3", f"s_setpc_b64 s[{sRet}:{sRet+1}]"]
    seq = mk(L); analyze_trace(seq)
    return seq

def segtext(s): return "\n".join(i.text for i in s)

def emit_k1():
    segs = build_k1()
    pre = segs[0]; S = segs[1:]
    assert len(S) == 64
    T = [segtext(s) for s in S]
    G2 = OPT['g2']
    if G2:
        segs2 = build_k1(True); pre2 = segs2[0]; S2 = segs2[1:]; T2 = [segtext(x) for x in S2]
    TWO = bool(OPT['cap1']) and G2
    k1 = 20
    while k1 < 24 and (TWO or T[k1] == T[k1 + 24]) and (not G2 or T2[k1 + 8] == T[k1]): k1 += 1
    k0 = 13
    while k0 > 0 and (TWO or T[k0 - 1] == T[k0 - 1 + 24]) and (not G2 or (T2[k0 - 1 + 8] == T[k0 - 1] and T2[k0 - 1 + 24] == T[k0 - 1 + 24])): k0 -= 1
    if not TWO and T[13] != T[37]: k0 = k1 = 22
    for k in range(k0, k1):
        assert (TWO or T[k] == T[k + 24]) and (not G2 or T2[k + 8] == T[k]), k
    if G2:
        assert T2[13 + 24] == T[13 + 24]
        j0 = 8 + k0
        while j0 > 8 and T2[j0 - 1] == T[j0 - 1 + 16]: j0 -= 1
    prog = []; trace = []
    lab = [0]; stubs = []
    tl = [0]
    def fixlabels(seq):
        for i in seq:
            if '#' in i.text:
                if i.text.startswith('s_cbranch'): tl[0] += 1
                i.text = i.text.replace('#', str(tl[0]))
                if i.kind == 'glue': i.kind = 'label'
            if '@' in i.text:
                if i.kind == 'label' and 'B' in OPT['drop']: lab[0] += 1
                if i.kind == 'branch':
                    lab[0] += 1
                    tgt = i.text.split()[1].split('_')[0]
                    stubs.append((tgt, lab[0]))
                i.text = i.text.replace('@', str(lab[0]))
    def fold(lo, hi, S=S, T=T):
        p = []; t = []; k = lo
        while k < hi:
            done = False
            for L in (1, 2, 4):
                n = 1
                while k + (n + 1) * L <= hi and all(T[k + j] == T[k + n * L + j] for j in range(L)): n += 1
                if n >= 2:
                    body = [i for j in range(L) for i in S[k + j]]
                    fixlabels(body)
                    lab[0] += 1; ln = f"LP{lab[0]}"
                    init = mk(f"s_mov_b32 s{sCnt}, {n}")
                    tail = mk([f"s_sub_u32 s{sCnt}, s{sCnt}, 1", f"s_cmp_lg_u32 s{sCnt}, 0", f"s_cbranch_scc1 {ln}"])
                    p += init + mk(ln + ":") + body + tail
                    t += init + (body + tail) * min(n, 3)
                    print(f"  loop segs {k}..{k+n*L-1} L={L} n={n}", file=sys.stderr)
                    k += n * L; done = True; break
            if not done:
                fixlabels(S[k]); p += S[k]; t += S[k]; k += 1
        return p, t
    setup = k1_setup()
    p1, t1 = fold(0, k0)
    p2, t2 = fold(k0, k1)
    js = (j0 + 16) if G2 else 24 + k0
    p3, t3 = fold(k1, js)
    p3b, t3b = fold(js, 24 + k0)
    p4, t4 = fold(24 + (k0 if TWO else k1), 64)
    br = mk([f"s_cmp_eq_u32 s{sRound}, 1", "s_cbranch_scc1 K1_FINAL"])
    back = mk([f"s_add_u32 s{sRound}, s{sG2}, 1", "s_branch K1_OUTER"])
    if G2:
        br2 = mk([f"s_cmp_eq_u32 s{sRound}, 2", "s_cbranch_scc1 K1_TRANS"])
        sel = mk([f"s_cmp_lg_u32 s{sG2}, 0", "s_cbranch_scc1 K1_G2"])
        q1, u1 = fold(0, j0, S2, T2); jn = mk("s_branch K1_JOIN")
        q2, u2 = fold(8 + k1, 24 + k0, S2, T2); back2 = mk([f"s_mov_b32 s{sRound}, 1", "s_branch K1_OUTER"])
        print(f"  G2: j0={j0}", [model_cycles(x) for x in S2], file=sys.stderr)
    if OPT['stamp']:
        st0 = mk(["s_memtime s[72:73]", "s_memrealtime s[74:75]", "s_mov_b32 s45, 0", "v_mov_b32 v235, 0", "v_mov_b32 v246, 0"])
        setup = setup[:2] + st0 + setup[2:]
        st1 = mk(["s_memtime s[50:51]", "s_waitcnt lgkmcnt(0)", "v_writelane_b32 v246, s50, 0", "s_waitcnt vmcnt(0)", "s_memtime s[50:51]", "s_memrealtime s[66:67]", "s_waitcnt lgkmcnt(0)",
                  "v_writelane_b32 v246, s50, 1", "v_writelane_b32 v246, s72, 60", "v_writelane_b32 v246, s74, 61", "v_writelane_b32 v246, s66, 62",
                  f"s_lshl_b32 s50, s2, 2", f"s_add_u32 s50, s50, s{sWv}", "s_lshl_b32 s50, s50, 9", f"s_add_u32 s50, s50, {48<<20}",
                  f"v_lshrrev_b32 v245, 2, v{vSt}", f"s_mov_b32 s{sO+2}, {64<<20}",
                  f"buffer_store_dword v235, v245, {srd(sO)}, s50 offen", f"buffer_store_dword v246, v245, {srd(sO)}, s50 offen offset:256"])
        if OPT['probe']:
            pa, pb = OPT['probe'].split(',')
            L = ["s_cmp_lg_u32 s2, 9", "s_cbranch_scc1 K1_END", "s_memrealtime s[66:67]", "s_waitcnt lgkmcnt(0)"]
            L += [f"v_readlane_b32 s50, v235, {pa}"] if pa != 's' else ["s_mov_b32 s50, s74"]
            L += [f"v_readlane_b32 s51, v235, {pb}"] if pb != 'e' else ["s_mov_b32 s51, s76"]
            L += ["s_nop 3", "s_sub_u32 s50, s51, s50", "s_lshl_b32 s50, s50, 2", "PROBE_L:", "s_memrealtime s[72:73]", "s_waitcnt lgkmcnt(0)",
                  "s_sub_u32 s72, s72, s76", "s_cmp_lt_u32 s72, s50", "s_cbranch_scc1 PROBE_L"]
            st1 = mk(L)
        if OPT['dbg']:
            L = ["s_memtime s[50:51]", "s_memrealtime s[66:67]", "s_waitcnt lgkmcnt(0)",
                 "s_sub_u32 s50, s50, s72", "s_sub_u32 s76, s76, s74", "v_writelane_b32 v246, s50, 14", "v_writelane_b32 v246, s76, 15"]
            for q, ln in enumerate([0, 1, 4, 8, 9, 16, 24, 32, 33, 40, 48, 52, 56, 63]):
                L += [f"v_readlane_b32 s50, v235, {ln}", "s_nop 3", "s_sub_u32 s50, s50, s72", f"v_writelane_b32 v246, s50, {q}"]
            L += [f"s_lshl_b32 s50, s2, 2", f"s_add_u32 s50, s50, s{sWv}", f"s_cmp_lg_u32 s50, {OPT['dbg']-1}", "s_cbranch_scc1 K1_END",
                  f"s_mov_b32 s{sO+2}, {64<<20}", f"s_mov_b32 s50, {48<<20}",
                  f"v_lshrrev_b32 v245, 2, v{vSt}", f"buffer_store_dword v246, v245, {srd(sO)}, s50 offen"]
            st1 = mk(L)
        p4 += st1; t4 += st1
    if TWO:
        brg = mk([f"s_cmp_lg_u32 s{sG2}, 0", "s_cbranch_scc1 K1_TRANS"])
        brh = mk([f"s_cmp_lg_u32 s{sG2}, 0", "s_cbranch_scc1 K1_OUTER"])
        tf = mk("s_branch K1_FINAL")
        prog = setup + sel + pre + p1 + mk("K1_OUTER:") + p2 + brg + p3 + mk("K1_JOIN:") + p3b + brh + mk("K1_FINAL:") + p4 + mk(["K1_END0:", "s_endpgm"]) + \
               mk("K1_G2:") + pre2 + q1 + jn + mk("K1_TRANS:") + q2 + tf + mk(["K1_END:", "s_endpgm"])
        for _ in range(2):
            analyze_trace(setup + sel + pre + t1 + t2 + brg + t3 + t3b + brh + t4)
            analyze_trace(setup + sel + pre2 + u1 + jn + t3b + brh + t2 + brg + u2 + tf + t4)
    elif G2:
        prog = setup + sel + pre + p1 + mk("K1_OUTER:") + p2 + br + br2 + p3 + mk("K1_JOIN:") + p3b + back + \
               mk("K1_G2:") + pre2 + q1 + jn + mk("K1_TRANS:") + q2 + back2 + mk("K1_FINAL:") + p4 + mk(["K1_END:", "s_endpgm"])
        for _ in range(2):
            analyze_trace(setup + sel + pre + t1 + t2 + br + br2 + t3 + t3b + back + t2 + br + t4)
            analyze_trace(setup + sel + pre2 + u1 + jn + t3b + back + t2 + br + br2 + u2 + back2 + t2 + br + t4)
    else:
        prog = setup + pre + p1 + mk("K1_OUTER:") + p2 + br + p3 + p3b + back + mk("K1_FINAL:") + p4 + mk(["K1_END:", "s_endpgm"])
        analyze_trace(setup + pre + t1 + t2 + br + t3 + t3b + back + t2 + br + t4)
    out = emit(prog) + "\n"
    for tgt, n in stubs:
        out += f"{tgt}_{n}:\n  s_call_b64 s[{sRet}:{sRet+1}], {tgt}\n  s_branch RET_{n}\n"
    for k in range(1, tl[0] + 1):
        out += f"TIGHT_{k}:\n  s_waitcnt vmcnt({OPT['cap']-1})\n  s_branch TRET_{k}\n"
    for k, (load, cmpop) in enumerate(spins):
        reg = load.split()[1].rstrip(',')
        out += f"""SPIN{k}:
  s_mov_b32 s{sSc}, 0
SPINL{k}:
  s_sleep 2
  {load}
  s_add_u32 s{sSc}, s{sSc}, 1
  s_waitcnt vmcnt(0)
  v_readfirstlane_b32 s{sSpin}, {reg}
  s_cmp_gt_u32 s{sSc}, 0x8000
  s_cbranch_scc1 SRET{k}
  {cmpop}
  s_cbranch_scc0 SPINL{k}
  s_branch SRET{k}
"""
    for i, ldt, chk in pzspin:
        seq = mk([f"PZSPIN{i}:", f"s_mov_b32 s{sSc}, 0", f"PZL{i}:", "s_sleep 1"] + ldt + [f"s_add_u32 s{sSc}, s{sSc}, 1", "s_waitcnt vmcnt(0)"] + chk +
                 [f"s_cmp_gt_u32 s{sSc}, 0x8000", f"s_cbranch_scc1 PZRET{i}", f"s_cbranch_vccnz PZL{i}", f"s_branch PZRET{i}"])
        analyze_trace(seq); out += emit(seq) + "\n"
    out += emit(rare(0)) + "\n" + emit(rare(1)) + "\n" + (emit(rare(2)) + "\n" if OPT['a15'] else "")
    print(f"  k0={k0} k1={k1}", file=sys.stderr)
    print("  model cycles/seg:", [model_cycles(x) for x in S], file=sys.stderr)
    return out

def kd(name, vg=512, acc=256):
    return f""".amdhsa_kernel {name}
  .amdhsa_next_free_vgpr {vg}
  .amdhsa_next_free_sgpr 102
  .amdhsa_accum_offset {acc}
  .amdhsa_group_segment_fixed_size 0
  .amdhsa_kernarg_size 104
  .amdhsa_user_sgpr_count 2
  .amdhsa_user_sgpr_kernarg_segment_ptr 1
  .amdhsa_system_sgpr_workgroup_id_x 1
.end_amdhsa_kernel
"""

K1 = NAME + "_kernel"
hdr = open("cdna_kernels/" + NAME + ".s.ref").read().split("; Override launch")[0]
o = hdr
o += f"; @launch grid=(256,1,1) block=(256,1,1) lds={3*STAGE}\n"
o += '.amdgcn_target "amdgcn-amd-amdhsa--gfx950"\n.text\n'
o += f".globl {K1}\n.p2align 8\n.type {K1},@function\n{K1}:\n" + emit_k1()
o += '.section .rodata,"a"\n.p2align 6\n' + kd(K1)
import subprocess, re
if "CODE_LINES" in o:
    open("_g.s", "w").write(o.replace("CODE_LINES", "0x100"))
    subprocess.run(["clang", "-x", "assembler", "-target", "amdgcn-amd-amdhsa", "-mcpu=gfx950", "-c", "_g.s", "-o", "_g.o"], check=True)
    t = subprocess.run(["llvm-objdump", "-t", "_g.o"], capture_output=True, text=True).stdout
    end = int([l for l in t.split("\n") if l.endswith(" K1_END")][0].split()[0], 16)
    print("  K1 main code bytes", end, file=sys.stderr)
    o = o.replace("CODE_LINES", hex(end // 128))
open(sys.argv[1], "w").write(o)
```

```python
import sys, struct, math, re
from asmlib import *

NAME = "concat_heads__gqa_block_cached__mha_block_cached__near_ridge"
OPT = dict(capp='56', g2thr=3, wph=0, dyn=0, m1=0x1f, m2=0xf80, tun='30,31,32,33', fin2=1, eb0=50, eb1=56, uni=4, cap1=0, capfrom=10, capq=0, capo=0, g2rot=0, g2inv=0, pair='OQA', outf='', cap=5, ra=5, rb=3, rsh=4, pz=0, pzl=63.3, pzc=64.87, pw=60, pw6=20, w64=0, pol='', qlo2=0, qhi2=0, qn=0, qlo=24, qhi=32, g2=1, g2bit=0, wcf=0, dense=0, a15=0, xmap=0, probe='', qrot0=0, qrot1=1, orot=1, wont='', d1late=1, fd=0.8, fd6=0.5, cs='55.3,56.0,56.05,57.1,57.4,M;55.4,56.1,57.45,58.5,59.1,M;57.6,58.6,59.15,60.2,60.8,M;59.6,60.6,60.85,61.9,62.5,M;61.4,62.3,62.55,63.5,63.99,M;62.6,63.1,63.15,64.9,65.4,0;63.8,64.05,64.1,65.5,66.0,2', pfdma=0, pfl=32, pfstep=0x4000, pfstart=0x4000, pad=0, cpf=6, dbg=0, trickle=1, wopf='', wopfnt='', play=1, lead=15, kvpf='', wxpf=0, pfd=2, sched=1, early=3.0, late=2.0, k2pf=3, pfnt=' nt', wxpfnt='', kvnt=" nt", ont=" nt", rot=1, k2ont=" nt", epi_periods=5, thresh=1024.0, k1only=0, k2only=0, stamp=0, stamp2=0, k2wnt='', k2depth=3, k2drop='', drop='', wnt='', xnt='')
for kv in sys.argv[2:]:
    k, v = kv.split("="); OPT[k] = v.replace("_", " ") if isinstance(OPT[k], str) else (int(v, 0) if isinstance(OPT[k], int) else float(v))
LEAD = OPT['lead']
def f2h(x): return "0x%08x" % struct.unpack("<I", struct.pack("<f", x))[0]
MF = "v_mfma_f32_16x16x32_bf16"
def vr(b, n=4): return f"v[{b}:{b+n-1}]"
def ar(b, n=4): return f"a[{b}:{b+n-1}]"

STAGE = 53248; SLOTA = 0; SLOTB = 16384; XOFF = 32768
sX, sW, sK, sV, sO = 8, 12, 16, 20, 24
sWv, sRd, sWr, sMw, sMx = 28, 29, 30, 31, 32
sKVb, sKi, sVi, sWo, sXo, sOo = 33, 34, 35, 36, 37, 38
sT0, sT1, sC, sTh, sCnt, sRound = 39, 40, 41, 42, 43, 44
sRet = 46
sT2, sT3 = 48, 49
def srd(b): return f"s[{b}:{b+3}]"
vKb, vV0b, vV1b, vWb, vXb = 1, 2, 3, 4, 5
vA0, vA1, vA2 = 6, 7, 8
vDkv0, vDkv1 = 9, 10
vDw = [11, 12, 13, 14]
vDx = [15, 16, 17, 18]
vSt = 19
vRl = [20, 21, 22, 23, 0]
BLK = 24
def blk(c): return BLK + 32 * c
def acc(t, c): return blk(c) + 4 * t
def Sreg(par, kt, c): return blk(c) + 8 * par + 4 * kt
def Preg(par, c): return blk(c) + 16 + 4 * par
def Mreg(c): return blk(c) + 24
def Lreg(c): return blk(c) + 28
def Treg(c): return blk(c) + 29
POOL = 184
NPOOL = 8
XF = 200
TMP = 248
ET = 216
vPF, vPK, vDum, vStamp = 232, 233, 234, 235
sPF, sPK = 80, 84
sPFo, sPFs, sPFr, sPb, sPi, sRot = 88, 89, 90, 91, 92, 93
def Oreg(t, c): return (t * 5 + c) * 4
def Qreg(s, c): return 160 + (s * 5 + c) * 4

vXo0, vXo2, vXp0, vXp2 = 236, 237, 238, 239
vPK2 = 247; sPj = 48
vOb = 244
PK3 = [('a', 240), ('a', 244), ('a', 248), ('a', 252), ('v', 240)]
sWoS = 96 - 28
sOp, sOpd, sPo = 94, 95, 38
MSG = [blk(c) + 28 for c in range(5)]
HOLD = [ET, ET + 4, ET + 8]
vTag, vFl, vF0, vT1, vFl2 = 208, 210, 211, 213, 214
vOut = 15; vEp = 232
RREG = list(range(ET + 12, ET + 16)) + list(range(TMP, TMP + 8)) + [232, 233, 234, 236, 237, 238, 239, 245, 247, 215, 212] + \
       [1, 2, 3, 4, 5, 8, 9, 10, 11, 12, 13, 14, 20, 21, 22, 23, 0]
assert len(set(RREG)) == 40
sOutS, sDbg = 80, 84
sSig, sMb, sFb, sCm, sCf, sTag, sOutO, sSpin, sSpin2, sOpB, sPd = 88, 89, 90, 93, 48, 96, 97, 98, 99, 100, 101
sTa, sSc = 4, 5
sXb, sXc, sQr = 6, 7, 3
sG2 = 92
sDyn = 76
FLAGB = 41943040
def rr(f): return f"{f[0]}[{f[1]}:{f[1]+3}]"
def Bfrag(hh, u, c):
    if hh == 0: return ('a', 160 + (u * 5 + c) * 4) if u < 3 else PK3[c]
    if hh == 1: return ('v', blk(c) + 16 + 4 * u) if u < 3 else ('a', 220 + 4 * c)
    if hh == 2: return ('a', Oreg(2 * u, c))
    return ('a', Oreg(2 * u + 1, c))
def xarea(k, c, own):
    if k < 2: return (vXo0 if own else vXp0), k * STAGE + c * 1024
    return (vXo2 if own else vXp2), c * 1024
def xrd(dst, k, c, own):
    a, o = xarea(k, c, own); return f"ds_read_b128 {rr(dst)}, v{a} offset:{o}"
def xwr(src, k, c):
    a, o = xarea(k, c, True); return f"ds_write_b128 v{a}, {rr(src)} offset:{o}"

class Period:
    def __init__(self): self.m = []; self.f = []; self.dma = []; self.addr = []

pool_ctr = [0]
def next_frag():
    r = POOL + 4 * (pool_ctr[0] % NPOOL); pool_ctr[0] += 1
    return r

def rpos(k0):
    p = k0 - LEAD + 1
    if k0 == 70: p -= 3
    if k0 == 75: p -= 5
    return p
def fwait(P, k0, r):
    P.f.append(W([f"v{r+i}" for i in range(4)], k0))
def rdK(P, k0, slot, kt, s):
    r = next_frag()
    P.f += at(mk(f"ds_read_b128 {vr(r)}, v{vA0} offset:{slot + kt*4096 + s*256}", tag='rd'), rpos(k0))
    fwait(P, k0, r)
    return r
def rdV(P, k0, slot, t):
    r = next_frag(); a = vA1 if t % 2 == 0 else vA2
    P.f += at(mk([f"ds_read_b64_tr_b16 {vr(r,2)}, v{a} offset:{slot + (t//2)*256}",
                  f"ds_read_b64_tr_b16 {vr(r+2,2)}, v{a} offset:{slot + (t//2)*256 + 4096}"], tag='rd'), rpos(k0), rpos(k0) + 2)
    fwait(P, k0, r)
    return r
def rdW(P, k0, slot, t):
    r = next_frag(); s, e = t // 2, t % 2
    P.f += at(mk([f"ds_read_b64_tr_b16 {vr(r,2)}, v{vA0} offset:{slot + s*256 + e*8}",
                  f"ds_read_b64_tr_b16 {vr(r+2,2)}, v{vA0} offset:{slot + s*256 + e*8 + 1024}"], tag='rd'), rpos(k0), rpos(k0) + 2)
    fwait(P, k0, r)
    return r

def grpQK(P, slot, par, kt, s, cinit):
    k0 = len(P.m); r = rdK(P, k0, slot, kt, s)
    for c in range(5):
        D = vr(Sreg(par, kt, c))
        C = D if s > 0 else ("0" if cinit == 'zero' else vr(Mreg(c)))
        P.m += mk(f"{MF} {D}, {vr(r)}, {ar(Qreg(s,c))}, {C}")
def grpPV(P, slot, par, t, first):
    k0 = len(P.m); r = rdV(P, k0, slot, t)
    for c in range(5):
        D = ar(Oreg(t, c))
        P.m += mk(f"{MF} {D}, {vr(r)}, {vr(Preg(par,c))}, {'0' if first else D}")

def pairup(P, lo=0, hi=80):
    M = P.m
    init = {}
    def parts(i):
        t = i.text.split(None, 1)[1]; o = [x.strip() for x in t.split(',')]; return o
    for i in M[lo:hi]:
        o = parts(i)
        if o[3] != o[0]: init[o[0]] = o[3]
    out = M[:lo]
    for k in range(lo, hi, 10):
        g0, g1 = M[k:k + 5], M[k + 5:k + 10]
        if (k // 10) % 2 == 1: g0, g1 = g0[::-1], g1[::-1]
        for c in range(5):
            out += [g0[c], g1[c]] if c % 2 == 0 else [g1[c], g0[c]]
    out += M[hi:]
    new = []
    for q, i in enumerate(out):
        if lo <= q < hi:
            o = parts(i)
            o[3] = init.pop(o[0]) if o[0] in init else o[0]
            i = mk(f"{MF} " + ", ".join(o))[0]
        new.append(i)
    P.m = new
    for w in P.f:
        if w.kind == 'wait' and lo <= w.pos < hi and w.pos == int(w.pos) and int(w.pos - lo) % 10 == 5: w.pos -= 5.25
    return P

def softmax_ops(par, et=ET):
    ops = []; tc = [0]
    def tmp2():
        r = et + 2 * (tc[0] % 8); tc[0] += 1; return r
    pend = []
    for kt in range(2):
        for c in range(5):
            for h in range(2):
                e = tmp2(); s = Sreg(par, kt, c) + 2 * h
                cur = [f"v_exp_f32 v{e}, v{s}", f"v_exp_f32 v{e+1}, v{s+1}"]
                post = [f"v_cvt_pk_bf16_f32 v{Preg(par,c)+2*kt+h}, v{e}, v{e+1}"]
                if kt == 0 and h == 0:
                    post += [f"v_add_f32 v{Treg(c)}, v{e}, v{e+1}"]
                else:
                    post += [f"v_add_f32 v{Treg(c)}, v{Treg(c)}, v{e}", f"v_add_f32 v{Treg(c)}, v{Treg(c)}, v{e+1}"]
                ops += [cur[0]] + pend[:1] + [cur[1]] + pend[1:]
                pend = post
    ops += pend
    return ops

def cost(t):
    return 2.0 if t.startswith(('v_exp', 'v_rcp')) else 1.0
def spread(lines, p0, p1, tag=None):
    ins = mk(lines, tag=tag); tot = sum(cost(i.text) for i in ins); a = 0
    for i in ins:
        i.pos = p0 + (p1 - p0) * a / tot; a += cost(i.text)
    return ins

chk_ctr = [0]
def check_ops(par):
    return [f"v_max3_f32 v{TMP}, v{Treg(0)}, v{Treg(1)}, v{Treg(2)}",
            f"v_max3_f32 v{TMP}, v{TMP}, v{Treg(3)}, v{Treg(4)}",
            f"v_cmp_nge_f32 vcc, s{sTh}, v{TMP}",
            f"s_cbranch_vccnz RARE{par}_@",
            f"RET_@:"]
def ladd_ops(first=False):
    if first: return [f"v_mov_b32 v{Lreg(c)}, v{Treg(c)}" for c in range(5)]
    return [f"v_add_f32 v{Lreg(c)}, v{Lreg(c)}, v{Treg(c)}" for c in range(5)]

def colmax_ops(par, c, d, t2):
    s = Sreg(par, 0, c)
    return [f"v_max3_f32 v{d}, v{s}, v{s+1}, v{s+2}",
            f"v_max3_f32 v{t2}, v{s+3}, v{s+4}, v{s+5}",
            f"v_max3_f32 v{d}, v{d}, v{s+6}, v{s+7}",
            f"v_max_f32 v{d}, v{d}, v{t2}",
            f"v_mov_b32 v{t2}, v{d}",
            f"v_permlane16_swap_b32 v{d}, v{t2}",
            f"v_max_f32 v{d}, v{d}, v{t2}",
            f"v_mov_b32 v{t2}, v{d}",
            f"v_permlane32_swap_b32 v{d}, v{t2}",
            f"v_max_f32 v{d}, v{d}, v{t2}"]
def interleave(lists):
    out = []
    for i in range(max(len(l) for l in lists)):
        for l in lists:
            if i < len(l): out.append(l[i])
    return out

cur_n2 = [0]
def kvflag(which):
    p = OPT['pol']
    if not p: return OPT['kvnt']
    ch = p[(2 if cur_n2[0] >= 24 else 0) + (0 if which == 'K' else 1)]
    return ' nt' if ch == 'n' else ''
def dma_kv(slot, which):
    sd, si = (sK, sKi) if which == 'K' else (sV, sVi)
    t = sT0 if slot == SLOTA else sT1
    L = [f"s_add_u32 s{t}, s{sKVb}, s{si}",
         f"s_add_u32 s{si}, s{si}, 0x2000",
         f"s_and_b32 s{si}, s{si}, 0x1ffff",
         f"s_add_u32 m0, s{sWr}, {slot}" if slot else f"s_mov_b32 m0, s{sWr}"]
    D = [f"buffer_load_dwordx4 v{vDkv0 if j%2==0 else vDkv1}, {srd(sd)}, s{t} offen offset:{j*1024}{kvflag(which)} lds" for j in range(4)]
    return [L + D[:1]] + [[d] for d in D[1:]]
def dma_qp():
    G = []
    for slot in (SLOTA, SLOTB):
        L = [f"s_add_u32 m0, s{sWr}, {slot}" if slot else f"s_mov_b32 m0, s{sWr}"]
        if slot: L = [f"s_add_u32 s{sWo}, s{sWo}, 0x40000"] + L
        D = [f"buffer_load_dwordx4 v{vDw[j]}, {srd(sW)}, s{sWo} offen offset:{j*1024}{OPT['wnt']} lds" for j in range(4)]
        G += [L + D[:1]] + [[d] for d in D[1:]]
    G[-1] = G[-1] + [f"s_add_u32 s{sWo}, s{sWo}, 0x40000", f"s_and_b32 s{sWo}, s{sWo}, 0x3fffff"]
    L = [f"s_add_u32 s{sXo}, s{sXb}, s{sXc}", f"s_add_u32 m0, s{sWr}, s{sMx}"]
    D = [f"buffer_load_dwordx4 v{vDx[j]}, {srd(sX)}, s{sXo} offen offset:{j*1024}{OPT['xnt']} lds" for j in range(4)]
    G += [L + D[:1]] + [[d] for d in D[1:]]
    G += [[f"s_add_u32 m0, m0, 0x1000", f"s_add_u32 s{sT0}, s{sXo}, 0x8000",
           f"buffer_load_dwordx4 v{vDx[0]}, {srd(sX)}, s{sT0} offen{OPT['xnt']} lds", f"s_add_u32 s{sXc}, s{sXc}, 128", f"s_and_b32 s{sXc}, s{sXc}, 0x3ff"]]
    return G
def next_round_ops():
    return [[f"s_add_u32 s{sKVb}, s{sKVb}, 0x100000",
             f"s_add_u32 s{sWo}, s{sWo}, 2048"] + (rot_ops() if OPT['qrot1'] != OPT['qrot0'] else [])]
def rot_ops():
    return [f"s_lshl_b32 s{sT0}, s{sQr}, 19", f"s_add_u32 s{sWo}, s{sWo}, s{sT0}", f"s_lshl_b32 s{sXc}, s{sQr}, 7"]

def place_groups(G, slots, lo):
    out = []; prev = lo + 0.1
    for g, p in zip(G, slots):
        ins = mk(g); seen = False
        for q, i in enumerate(ins):
            if i.kind in MEMK: i.pos = p; seen = True
            else: i.pos = (p + 0.25) if seen else (p - 2.5)
            i.pos = max(i.pos, prev + 1.0 / 64); prev = i.pos
        out += ins
    return out

def pf_wx(newround):
    L = []
    if newround:
        L = [f"s_add_u32 s{sPFo}, s{sPFo}, s{sPFr}"]
    return [L + [f"buffer_load_dword v{vDum}, v{vPF}, {srd(sPF)}, s{sPFo} offen{OPT['wxpfnt']}", f"s_add_u32 s{sPFo}, s{sPFo}, s{sPFs}"]]
def pf_kv(first):
    L = [f"s_add_u32 s{sPj}, s{sRot}, {OPT['pfstart']}", f"s_and_b32 s{sPj}, s{sPj}, 0x1ffff"] if first else []
    if OPT['pfdma']:
        G = []
        for q in range(OPT['pfdma']):
            pre = (L + [f"s_add_u32 s{sT3}, s{sPb}, s{sPj}", f"s_add_u32 m0, s{sMx}, {3*STAGE - XOFF}"]) if q == 0 else []
            G.append(pre + [f"buffer_load_dwordx4 v{vSt}, {srd(sPK)}, s{sT3} offen{OPT['pfnt']} lds ; pf", f"s_add_u32 s{sT3}, s{sT3}, 1024"])
        G[-1] += [f"s_add_u32 s{sPj}, s{sPj}, {OPT['pfstep']}", f"s_and_b32 s{sPj}, s{sPj}, 0x1ffff"]
        return G
    return [L + [f"s_add_u32 s{sT3}, s{sPb}, s{sPj}", f"buffer_load_dword v{vDum}, v{vPK2}, {srd(sPK)}, s{sT3} offen{OPT['pfnt']}",
             f"s_add_u32 s{sPj}, s{sPj}, {OPT['pfstep']}", f"s_and_b32 s{sPj}, s{sPj}, 0x1ffff"]]

def addr_att(): return [f"v_add_u32 v{vA0}, s{sRd}, v{vKb}", f"v_add_u32 v{vA1}, s{sRd}, v{vV0b}", f"v_add_u32 v{vA2}, s{sRd}, v{vV1b}"]
def addr_qp(): return [f"v_add_u32 v{vA0}, s{sRd}, v{vWb}", f"v_add_u32 v{vA1}, s{sRd}, v{vXb}"]

def qfin_ops(s):
    ops = []
    for c in range(5):
        a = acc(2 * s, c)
        o = [f"v_mul_f32 v{a+i}, s{sC}, v{a+i}" for i in range(8)]
        o += [f"v_cvt_pk_bf16_f32 v{a+2*i}, v{a+2*i}, v{a+2*i+1}" for i in range(4)]
        o += [f"v_accvgpr_write_b32 a{Qreg(s,c)+i}, v{a+2*i}" for i in range(4)]
        ops += o
    return ops

def per_qp(m, agpr=False):
    P = Period(); P.addr = addr_qp()
    for ks in range(2):
        slot = SLOTA if ks == 0 else SLOTB
        k0 = len(P.m)
        xr = [XF + 4 * (ks * 5 + c) for c in range(5)]
        xl = mk([f"ds_read_b128 {ar(xr[c])}, v{vA1} offset:{c*2048 + ks*256}" for c in range(5)], tag='rd')
        xp = [-LEAD + 3, -LEAD + 4, -LEAD + 5, -LEAD + 8, -LEAD + 9] if ks == 0 else [3, 8, 13, 18, 23]
        for i, p in zip(xl, xp): i.pos = p
        P.f += xl
        P.f.append(W([f"a{xr[c]+i}" for c in range(5) for i in range(4)], k0 - 0.5))
        for t in range(8):
            k0 = len(P.m); r = rdW(P, k0, slot, t)
            for c in range(5):
                D = ar(Oreg(t, c)) if agpr else vr(acc(t, c))
                P.m += mk(f"{MF} {D}, {vr(r)}, {ar(xr[c])}, {'0' if (m == 0 and ks == 0) else D}")
    if 'Q' in OPT['pair']: pairup(P)
    if m == 7 and agpr:
        P.f += spread([f"v_mov_b32 v{vRl[c]}, s{sC}" for c in range(5)], 20, 40)
    elif m == 7:
        P.f += spread(qfin_ops(0), 53, 66)
        P.f += spread(qfin_ops(1), 66, 80)
    return P

def per_a0(trans=False):
    P = Period(); P.addr = addr_att()
    for s in range(4):
        for kt in range(2): grpQK(P, SLOTB, 0, kt, s, 'zero')
    if not trans:
        P.f += spread(qfin_ops(2), 0.5, 19.5)
        P.f += spread(qfin_ops(3), 19.6, 29.5)
    mx = interleave([colmax_ops(0, c, ET + 2 * c, ET + 2 * c + 1) +
                     [f"v_sub_f32 v{Mreg(c)+i}, 0, v{ET+2*c}" for i in range(4)] for c in range(5)])
    P.f += at(mk(mx), 40)
    for kt in range(2):
        for s in range(4): grpQK(P, SLOTA, 1, kt, s, 'negm')
    sub = [f"v_add_f32 v{Sreg(0,kt,c)+i}, v{Sreg(0,kt,c)+i}, v{Mreg(c)}" for kt in range(2) for c in range(5) for i in range(4)]
    P.f += spread(sub + softmax_ops(0) + ladd_ops(True), 40.5, 80)
    P.eb = OPT['eb0']
    return P

def per_att(i):
    P = Period(); P.addr = addr_att()
    par = i % 2
    if 'A' in OPT['pair']:
        for g in range(0, 8, 2):
            grpPV(P, SLOTB, par ^ 1, g, i == 1); grpPV(P, SLOTB, par ^ 1, g + 1, i == 1)
            grpQK(P, SLOTA, par ^ 1, g // 4, g % 4, 'negm'); grpQK(P, SLOTA, par ^ 1, g // 4, g % 4 + 1, 'negm')
        pairup(P)
    else:
      for g in range(8):
        grpPV(P, SLOTB, par ^ 1, g, i == 1)
        grpQK(P, SLOTA, par ^ 1, g // 4, g % 4, 'negm')
    if i == 1: P.eb = OPT['eb1']
    P.f += spread(softmax_ops(par), 2.5, 78.5)
    P.f += at(mk(check_ops(par)), 80)
    if not (OPT['a15'] and i == 14): P.f += at(mk(ladd_ops()), 80.5, 82.4)
    if OPT['pad']: P.f += spread([f"v_mov_b32 v247, v247"] * (OPT['pad'] // 4), 3, 78)
    return P

def rl_ops():
    L = []
    for c in range(5):
        d = Lreg(c); t2 = Treg(c)
        L.append([f"v_mov_b32 v{t2}, v{d}", f"v_permlane16_swap_b32 v{d}, v{t2}", f"v_add_f32 v{d}, v{d}, v{t2}",
                  f"v_mov_b32 v{t2}, v{d}", f"v_permlane32_swap_b32 v{d}, v{t2}", f"v_add_f32 v{d}, v{d}, v{t2}",
                  f"v_rcp_f32 v{vRl[c]}, v{d}"])
    return interleave(L)

def per_a15():
    P = Period(); P.addr = addr_att()
    if OPT['a15']:
        P.late = True
        for g in range(8): grpPV(P, SLOTB, 0, g, False)
        for g in range(8): grpPV(P, SLOTA, 1, g, False)
        q = 0
        for i in P.f:
            if i.kind == 'dsr' and i.pos <= 0: i.pos = 0; q += 1
        pre = at(mk(ladd_ops() + softmax_ops(1) + check_ops(2)), 0)
        pre[-1].wr = ['a15tok']
        P.pre = pre
        P.f += spread(ladd_ops() + rl_ops(), 1, 30)
        return P
    for g in range(8): grpPV(P, SLOTB, 0, g, False)
    P.f += spread(softmax_ops(1), 2.5, 39.5)
    P.f += at(mk(check_ops(1)), 40)
    for g in range(8): grpPV(P, SLOTA, 1, g, False)
    P.f += spread(ladd_ops() + rl_ops(), 40.5, 62)
    return P

def epi_ops():
    out = []
    for u in range(4):
        for c in range(5):
            k = u * 5 + c
            o = []
            if k % 4 == 0:
                o += [f"s_add_u32 s{sT2}, s{sOo}, {k*1024}"]
            o += [f"v_accvgpr_read_b32 v{TMP+i}, a{Oreg(2*u + i//4, c) + i%4}" for i in range(8)]
            o += [f"v_mul_f32 v{TMP+i}, v{vRl[c]}, v{TMP+i}" for i in range(8)]
            o += [f"v_cvt_pk_bf16_f32 v{TMP+i}, v{TMP+2*i}, v{TMP+2*i+1}" for i in range(4)]
            o += [f"buffer_store_dwordx4 {vr(TMP)}, v{vSt}, {srd(sO)}, s{sT2} offen offset:{(k%4)*1024}{OPT['ont']}"]
            out.append(o)
    out[-1] += [f"s_add_u32 s{sOo}, s{sOo}, {8*20480}"]
    return out

def norm_ops(u, c, dst, xk=None, pk0=None):
    o = [f"v_accvgpr_read_b32 v{TMP+i}, a{Oreg(2*u + i//4, c) + i%4}" for i in range(8)]
    o += [f"v_mul_f32 v{TMP+i}, v{vRl[c]}, v{TMP+i}" for i in range(8)]
    pk = ET + 4 * ((u * 5 + c) % 4) if dst[0] == 'a' else dst[1]
    if pk0 is not None and dst[0] == 'a': pk = pk0
    o += [f"v_cvt_pk_bf16_f32 v{pk+i}, v{TMP+2*i}, v{TMP+2*i+1}" for i in range(4)]
    if dst[0] == 'a': o += [f"v_accvgpr_write_b32 a{dst[1]+i}, v{pk+i}" for i in range(4)]
    if xk is not None: o += [xwr(dst, xk, c)]
    return o

op_ctr = [0]
def op_frag():
    r = POOL + 4 * (op_ctr[0] % 6); op_ctr[0] += 1
    return r
def op_group(P, areg, o, t, hh, u, first):
    k0 = len(P.m); r = op_frag()
    P.f += at(mk([f"ds_read_b64_tr_b16 {vr(r,2)}, v{areg} offset:{o}",
                  f"ds_read_b64_tr_b16 {vr(r+2,2)}, v{areg} offset:{o + 2048}"], tag='rd'), rpos(k0), rpos(k0) + 2)
    fwait(P, k0, r)
    for c in range(5):
        D = vr(acc(t, c))
        P.m += mk(f"{MF} {D}, {vr(r)}, {rr(Bfrag(hh,u,c))}, {'0' if first else D}")
tokc = [0]
def pub_ops(sp, p0, p1, hold=None, c1=None):
    L = []
    for c in range(5):
        a = acc(2 * sp, c); pk = HOLD[tokc[0] % 3] if hold is None else hold[c]; tokc[0] += 1
        L += [f"v_cvt_pk_bf16_f32 v{pk+i}, v{a+2*i}, v{a+2*i+1}" for i in range(4)]
        if c == 4: L += [f"s_add_u32 s{sPo}, s{sPo}, 4096"]
        L += [f"buffer_store_dwordx4 {vr(pk)}, v{vSt}, {srd(sO)}, s{sPo} offen offset:{(c%4)*1024} sc1"]
    L += [f"s_add_u32 s{sPo}, s{sPo}, 1024"]
    ins = spread(L, p0, p1)
    if c1 is not None:
        cv = [i for i in ins if i.is_valu()]
        for q, i in enumerate(cv): i.pos = min(i.pos, p0 + (c1 - p0) * q / len(cv))
    tok = f"tok{tokc[0]}"
    [i for i in ins if i.kind == 'vst'][-1].wr = [tok]
    return ins, tok
def dest_ops(i):
    return [x.replace(f"s{sT3}", f"s{freg(i)}") for x in dest_ops0(i)]
def freg(i): return sT3 if (i is not None and i % 2 == 0) else 91
def dest_ops0(i):
    if i is None:
        L = [f"s_lshr_b32 s{sT1}, s{sWv}, 1", f"s_add_u32 s{sT3}, s{sSig}, s{sT1}", f"s_add_u32 s{sT3}, s{sT3}, 1", f"s_and_b32 s{sT3}, s{sT3}, 7",
             f"s_mul_i32 s{sPo}, s{sT3}, 163840", f"s_add_u32 s{sPo}, s{sPo}, s{sMb}", f"s_lshl_b32 s{sT3}, s{sT3}, 11", f"s_add_u32 s{sT3}, s{sT3}, s{sFb}",
             f"s_lshl_b32 s{sTa}, s{sT1}, 8", f"s_add_u32 s{sT3}, s{sT3}, s{sTa}", f"s_mul_i32 s{sT1}, s{sT1}, 20480", f"s_add_u32 s{sPo}, s{sPo}, s{sT1}"]
    else:
        L = [f"s_add_u32 s{sT3}, s{sSig}, {1+i}", f"s_and_b32 s{sT3}, s{sT3}, 7", f"s_sub_u32 s{sT3}, s{sT3}, s{sSig}",
             f"s_mul_i32 s{sPo}, s{sT3}, 163840", f"s_add_u32 s{sPo}, s{sPo}, s{sCm}", f"s_add_u32 s{sPo}, s{sPo}, {i*20480}",
             f"s_lshl_b32 s{sT3}, s{sT3}, 11", f"s_add_u32 s{sT3}, s{sT3}, s{sCf}"]
    return L
def flag_ops(i, tok, pos):
    w = W([tok], pos - 1)
    if i is None: st = mk(f"buffer_store_dwordx2 {vr(vTag,2)}, v{vF0}, {srd(sO)}, s{freg(i)} offen sc1")
    else: st = mk(f"buffer_store_dword v{vTag}, v{vF0}, {srd(sO)}, s{freg(i)} offen offset:{i*256} sc1")
    st[0].rd = st[0].rd + [tok]; st[0].pos = pos
    return [w] + st
def per_ds0(hh, umajor=False):
    P = Period(); P.addr = [f"v_add_u32 v{vA0}, s{sRd}, v{vOb}"]
    order = [(u, t) for u in range(4) for t in range(4)] if umajor else [(u, 2 * sp + e) for sp in range(2) for u in range(4) for e in range(2)]
    if 'O' in OPT['pair'] and not umajor: order = [(up + d, 2 * sp + e) for sp in range(2) for up in (0, 2) for e in range(2) for d in range(2)]
    for (u, t) in order:
        op_group(P, vA0, u * 4096 + (t // 2) * 256 + (t % 2) * 8, t, hh, u, hh == 0 and u == 0)
    if 'O' in OPT['pair']: pairup(P)
    if hh == 3:
        P.f += at(mk(dest_ops(None)), 20, 40)
        if OPT['pw'] <= 30:
            i0, _ = pub_ops(0, 45, 75); i1, tok = pub_ops(1, 85, 112); e = 112
        else:
            i0, _ = pub_ops(0, 45, 45 + OPT['pw'], MSG, 75); e = 45 + 2 * OPT['pw']
            i1, tok = pub_ops(1, 45 + OPT['pw'], e)
        P.f += i0 + i1 + flag_ops(None, tok, e + round(80 * OPT['fd']))
    return P
def per_st(i, r):
    P = Period(); P.addr = [f"v_add_u32 v{vA0}, s{sRd}, v{vOb}", f"v_add_u32 v{vA1}, s{sPd}, v{vA0}"]
    order = [(u, e) for u in range(4) for e in range(2)]
    if 'O' in OPT['pair']: order = [(up + d, e) for up in (0, 2) for e in range(2) for d in range(2)]
    for par in range(2):
        for (u, e) in order:
            op_group(P, vA1 if par else vA0, u * 4096 + e * 8, 2 * (i % 2) + e, 2 * r + par, u, r == 0 and par == 0 and u == 0)
    if 'O' in OPT['pair']: pairup(P)
    if r == 1 and i < 7:
        P.f += at(mk(dest_ops(i)), 66, 80)
        e = 84 + (OPT['pw'] if i < 7 - max(1, OPT['pz']) else OPT['pw6'])
        ins, tok = pub_ops(i % 2, 84, e)
        P.f += ins
        if i < 7 - OPT['pz']: P.f += flag_ops(i, tok, e + round(80 * (OPT['fd'] if i < 6 else OPT['fd6'])))
    return P
spins = []
pzspin = []
def chk_ops(load, reg, cmpop, pos, tokname):
    k = len(spins); spins.append((load, cmpop))
    ins = mk([f"v_readfirstlane_b32 s{sSpin}, v{reg}", cmpop, f"s_cbranch_scc0 SPIN{k}", f"SRET{k}:"])
    ins[0].pos = pos - 2
    for x in ins[1:]: x.pos = pos
    ins[-1].wr = [tokname]
    return [W([f"v{reg}"], pos - 3)] + ins
def consume(i, pf, pc, pl, pv0, pv1, buf, pz=False):
    B = {'M': MSG, '1': [acc(2, c) for c in range(5)], '0': [acc(0, c) for c in range(5)], '2': [acc(1, c) for c in range(5)]}[buf]
    fl = vFl if i % 2 == 0 else vFl2
    ldt = [f"s_add_u32 s{sT1}, s{sCm}, {i*20480 + 1024}"] + \
          [f"buffer_load_dwordx4 {vr(B[c])}, v{vSt}, {srd(sO)}, s{sT1} offen offset:{(c-1)*1024} sc1" for c in range(1, 5)] + \
          [f"s_sub_u32 s{sT1}, s{sT1}, 1024", f"buffer_load_dwordx4 {vr(B[0])}, v{vSt}, {srd(sO)}, s{sT1} offen sc1"]
    F = []
    if not pz:
        load = f"buffer_load_dword v{fl}, off, {srd(sO)}, s{sCf} offset:{i*256} sc1"
        F += at(mk(load), pf)
        F += chk_ops(load, fl, f"s_cmp_eq_u32 s{sSpin}, s{sTag}", pc, f"chk{i}")
    ld = mk(ldt)
    for q, x in enumerate(ld):
        x.pos = pl + max(0, 2 * q - 1)
        if x.kind == 'vld' and not pz: x.rd = x.rd + [f"chk{i}"]
    F += ld
    if pz:
        regs = [B[c] + j for c in (1, 2, 3, 4, 0) for j in range(4)]
        chk = [f"v_max3_u32 v{fl}, v{regs[0]}, v{regs[1]}, v{regs[2]}"]
        for q in range(3, 19, 2): chk.append(f"v_max3_u32 v{fl}, v{fl}, v{regs[q]}, v{regs[q+1]}")
        chk += [f"v_max_u32 v{fl}, v{fl}, v{regs[19]}", f"v_cmp_eq_u32 vcc, -1, v{fl}"]
        pzspin.append((i, [x.replace(f"s{sT1}", f"s{sSpin}") for x in ldt], chk))
        if pc < 80 * 64: F.append(W([f"v{B[0]}"], pc - 8))
        F += at(mk(chk), pc - 7, pc - 1)
        br = at(mk([f"s_cbranch_vccnz PZSPIN{i}", f"PZRET{i}:"]), pc)
        br[1].wr = ['scc']
        F += br
    V = []
    tail = pv0 >= 80 * 64
    for c in (1, 2, 3, 4, 0):
        for j in range(4):
            x = B[c] + j; r0, r1 = RREG[c * 8 + 2 * j], RREG[c * 8 + 2 * j + 1]; t = vT1
            if tail: r0, r1 = acc(2, c) + 2 * j, acc(2, c) + 2 * j + 1
            if i == 0: V += [f"v_lshlrev_b32 v{r0}, 16, v{x}", f"v_and_b32 v{r1}, s{sC}, v{x}"]
            else: V += [f"v_lshlrev_b32 v{t}, 16, v{x}", f"v_and_b32 v{x}, s{sC}, v{x}", f"v_add_f32 v{r0}, v{r0}, v{t}", f"v_add_f32 v{r1}, v{r1}, v{x}"]
    if not tail and not pz: F.append(W([f"v{B[0]}"], pv0 - 1))
    F += spread(V, pv0, pv1)
    return F

def dma_op(j):
    D = [f"buffer_load_dwordx4 v{vDx[i%4]}, {srd(sWoS)}, s{sOp if i < 4 else sT0} offen offset:{(i%4)*1024}{OPT['wont']} lds" for i in range(8)]
    G = [[f"s_add_u32 m0, s{sWr}, s{sMw}", D[0]], [D[1]], [D[2]], [D[3]],
         [f"s_add_u32 m0, m0, 0x1000", f"s_add_u32 s{sT0}, s{sOp}, 0x8000", D[4]], [D[5]], [D[6]], [D[7]]]
    if j in (0, 2): adv = [f"s_add_u32 s{sOp}, s{sOp}, s{sOpd}"]
    elif j == 1: adv = [f"s_sub_u32 s{sOp}, s{sOp}, s{sOpd}", f"s_add_u32 s{sOp}, s{sOp}, 0x100000"]
    elif j % 2 == 0: adv = [f"s_add_u32 s{sOp}, s{sOp}, 0x100000"]
    else:
        i = (j + 1) // 2
        adv = [f"s_add_u32 s{sOp}, s{sSig}, {1+i}", f"s_and_b32 s{sOp}, s{sOp}, 7", f"s_lshl_b32 s{sOp}, s{sOp}, 7", f"s_add_u32 s{sOp}, s{sOp}, s{sOpB}"]
    G[-1] = G[-1] + adv
    return G

def build_k1(g2=False):
    periods = []
    def att(trans, upto=15):
        periods.append(per_a0(trans))
        for i in range(1, upto): periods.append(per_att(i))
        if upto == 15: periods.append(per_a15())
    if g2:
        for m in range(8): periods.append(per_qp(m, True))
        for m in range(8): periods.append(per_qp(m))
        att(False); att(True, 8)
    else:
        for r in range(2):
            for m in range(8): periods.append(per_qp(m))
            att(False)
        for j in range(4): periods.append(per_ds0(j, umajor=(j in (1, 2))))
        for i in range(2, 8):
            for r in range(2): periods.append(per_st(i, r))
    assert pool_ctr[0] % NPOOL == 0
    for n, P in enumerate(periods[:-1]):
        eb = getattr(P, 'eb', 0)
        if eb:
            periods[n + 1].bshift = 80 - LEAD - eb
            lim = eb - 7
            for i in sorted([i for i in P.f if i.kind == 'dsr'], key=lambda i: -i.pos):
                i.pos = min(i.pos, lim); lim = i.pos - 1
    def dma_for(n2):
        cur_n2[0] = n2
        if g2:
            if n2 < 16:
                G = dma_qp()
                if n2 == 8: G[0] = [f"s_sub_u32 s{sWo}, s{sWo}, 2048"] + (rot_ops() if OPT['g2rot'] else []) + G[0]
                return G
            j = 8 + n2 % 16
            if n2 == 32:
                G = dma_kv(SLOTB, 'K') + dma_kv(SLOTA, 'K')
                G[0] = [f"s_add_u32 s{sKVb}, s{sKVb}, 0x100000"] + G[0]
                return G
        else:
            if n2 >= 64: return []
            if n2 >= 48: return dma_op(n2 - 48)
            j = n2 % 24
        if j < 8:
            G = dma_qp()
            if j == 0: G[0] = next_round_ops()[0] + G[0]
            return G
        if j == 8: return dma_kv(SLOTB, 'K') + dma_kv(SLOTA, 'K')
        if j == 23: return dma_kv(SLOTB, 'V') + dma_kv(SLOTA, 'V')
        return dma_kv(SLOTB, 'V') + dma_kv(SLOTA, 'K')
    M = []; F = []
    for n, P in enumerate(periods):
        base = 80 * n
        assert len(P.m) == 80
        M += P.m
        late = getattr(P, 'late', False)
        if not late:
            for i in P.f: i.pos = round(i.pos * 256) / 256.0 + base; F.append(i)
        b0 = base - LEAD - getattr(P, 'bshift', 0)
        span = 80 + getattr(P, 'bshift', 0) - (getattr(periods[n + 1], 'bshift', 0) if n + 1 < len(periods) else 0)
        pre = [f"s_add_u32 s{sWr}, s{sRd}, s{sMw}",
               f"s_add_u32 s{sRd}, s{sRd}, {STAGE}",
               f"s_cmp_eq_u32 s{sRd}, {3*STAGE}",
               f"s_cselect_b32 s{sRd}, 0, s{sRd}"] + P.addr
        pi = at(mk(pre), b0 - 5, b0 - 0.1); pi[3].pos = pi[2].pos
        F += pi
        if late:
            for i in P.pre: i.pos = base; F.append(i)
            b0 = base
        if OPT['stamp'] and late: F += at(mk("s_memtime s[50:51]"), b0)
        elif OPT['stamp']: F += at(mk("s_memrealtime s[50:51]" if (OPT['probe'] or OPT['stamp'] == 3) else "s_memtime s[50:51]"), b0 - 0.05)
        bi = at(mk("s_barrier", tag='barwait'), b0)
        if late:
            bi[0].rd = ['a15tok']
            if OPT['stamp']: F[-1].rd = ['a15tok']
        F += bi
        if OPT['stamp']: F += at(mk(["s_mov_b32 m0, s45", "s_add_u32 s45, s45, 1", "v_writelane_b32 v235, s50, m0"]), b0 + 0.01)
        if late:
            for i in P.f: i.pos = round(i.pos * 256) / 256.0 + base; F.append(i)
        G = dma_for(n + 2)
        j = n % 24
        wo = [int(x) for x in OPT['wopf'].split(',') if x != '']
        if n in wo:
            G = G + [[f"buffer_load_dword v{vDum}, v{vPK}, {srd(sWoS)}, s{sPb} offen{OPT['wopfnt']}", f"s_add_u32 s{sPb}, s{sPb}, 8192"]]
            if n == wo[0]: G[-1] = [f"s_mov_b32 s{sPb}, s{sPi}"] + G[-1]
        if not G: continue
        slots = [b0 + 4 + 5 * q for q in range(13)] if len(G) <= 13 else [b0 + 3 + 5 * (q // 2) + (q % 2) for q in range(26)]
        if span != 80: slots = [x for x in [5 * ((b0 + 4) // 5) + 4 + 5 * q for q in range(30)] if x < b0 + span - 12]
        if span < 60: slots = [x for x in [5 * ((b0 + 4) // 5) + 3 + 5 * (q // 2) + (q % 2) for q in range(60)] if x < b0 + span - 10]
        if OPT['uni'] and span == 80 and len(G) == 8 and n + 2 < 48: slots = [b0 + OPT['uni'] + 10 * q for q in range(8)]
        if late: slots = [x for x in [b0 + 3 + 5 * (q // 2) + (q % 2) for q in range(26)] if x < b0 + 55]
        step = len(slots) / len(G)
        if OPT['dense'] and len(G) == 8 and n + 2 < 48:
            slots = [b0 + 3 + 5 * (q // 2) + (q % 2) for q in range(26)] if OPT['dense'] in (1, 3) else slots
            if OPT['dense'] == 3 and (n % 24) >= 9: slots = slots[18:]
            if OPT['dense'] == 4 and (n % 24) >= 9: slots = slots[5:]
            step = 1
        pg = place_groups(G, [slots[int(gi * step)] for gi in range(len(G))], b0)
        if OPT['cap'] and len(G) == 8 and n + 2 < 48 and ((n >= 8 + OPT['capfrom'] and str(n) not in OPT['tun'].split(',')) if g2 else ((n % 24) >= OPT['capfrom'])):
            for i in pg:
                cv = OPT['cap1'] if (OPT['cap1'] and n < (33 if g2 else 24)) else OPT['cap']
                if OPT['dyn']: cv = OPT['dyn']
                if OPT['capp'] and i.kind == 'dma':
                    cv = int(OPT['capp'][[x for x in pg if x.kind == 'dma'].index(i) % len(OPT['capp'])])
                if i.kind == 'dma': i.vm = cv - 1; i.text += f" ; cap{cv}"
            if OPT['dyn']:
                extra = []
                for i in pg:
                    if i.kind == 'dma':
                        t = mk([f"s_bitcmp0_b32 s{sDyn}, 0", "s_cbranch_scc1 TIGHT_#", "TRET_#:"])
                        t[0].op = 's_cmp_bit'; t[0].wr = ['scc']; t[0].rd = [f"s{sDyn}"]
                        t[1].kind = 'salu'; t[1].wr = ['tgt']; t[1].rd = ['scc']
                        t[2].kind = 'glue'; t[2].rd = ['tgt']; t[2].wr = ['tgt2']
                        for x in t: x.pos = i.pos - 1
                        i.rd = i.rd + ['tgt2']
                        extra += t
                sh = mk(f"s_lshr_b32 s{sDyn}, s{sDyn}, 1"); sh[0].pos = max(i.pos for i in pg) + 0.3
                pg = extra + pg + sh
        if OPT['capq'] and len(G) == 13 and n in (22, 23):
            for i in pg:
                if i.kind == 'dma': i.vm = OPT['capq'] - 1; i.text += " ; cap"
        if OPT['capo'] and n in (46, 47, 48, 49):
            for i in pg:
                if i.kind == 'dma': i.vm = OPT['capo'] - 1; i.text += " ; cap"
        F += pg
    def B0(n): return 80 * n - LEAD
    def mem_at(lines, p0, step=5):
        ins = mk(lines)
        for q, i in enumerate(ins): i.pos = p0 + step * q if isinstance(step, (int, float)) else step[q]
        if OPT['wph']:
            last = -1e9
            for i in ins:
                if i.op == 'ds_write_b128':
                    p = math.ceil((i.pos - OPT['wph']) / 5.0) * 5 + OPT['wph'] - 5
                    if p < p0 - 0.01 and isinstance(step, (int, float)): p += 5
                    p = max(p, last + 5); i.pos = p; last = p
        if OPT['w64']:
            out = []
            for i in ins:
                if i.op == 'ds_write_b128':
                    m = re.match(r"ds_write_b128 (v\d+), ([va])\[(\d+):\d+\] offset:(\d+)", i.text)
                    a, t, r, o = m.group(1), m.group(2), int(m.group(3)), int(m.group(4))
                    out += at(mk([f"ds_write_b64 {a}, {t}[{r}:{r+1}] offset:{o}", f"ds_write_b64 {a}, {t}[{r+2}:{r+3}] offset:{o+8}"]), i.pos, i.pos + 2)
                else: out.append(i)
            ins = out
        return ins
    flat = [x for u in (2, 0, 1, 3) for c in range(5) for x in norm_ops(u, c, ('a', Oreg(2 * u, c)) if u < 3 else PK3[c])]
    q1 = 8 if g2 else 24
    fl = spread(flat, 5, 80 * 6 - LEAD)
    for i in fl: i.pos = round(i.pos * 256) / 256.0 + 80 * q1
    F += fl
    for n, k in ((q1 + 6, 2), (q1 + 7, 0), (q1 + 8, 1)):
        F += mem_at([xwr(('a', Oreg(2 * k, c)), k, c) for c in range(5)], B0(n) + 20, 5)
    if g2:
        F += mem_at([xrd(Bfrag(0, u, c), u, c, True) for u in range(3) for c in range(5)], 0, [80 * 31 + 3 + 5 * (q // 2) + (q % 2) for q in range(15)])
        mv = [f"v_accvgpr_mov_b32 a{Qreg(3,c)+i}, a{PK3[c][1]+i}" if PK3[c][0] == 'a' else f"v_accvgpr_write_b32 a{Qreg(3,c)+i}, v{PK3[c][1]+i}" for c in range(5) for i in range(4)]
        F += spread(mv, 80 * 31 + (31 if OPT['a15'] else 41), 80 * 31 + (52 if OPT['a15'] else 62))
        win = [(80 * 31 + 63, 80 * 32 + 5), (80 * 32 + 5, 80 * 32 + 22), (80 * 32 + 22, 80 * 32 + 39.5)]
        if OPT['a15']: win = [(80 * 31 + 54, 80 * 31 + 76), (80 * 31 + 76, 80 * 32 + 18), (80 * 32 + 18, 80 * 32 + 39.5)]
        for u in range(3):
            F += spread([x for c in range(5) for x in norm_ops(u, c, ('v', Preg(0, c)), xk=u)], *win[u])
        F += spread([x for c in range(5) for x in norm_ops(3, c, PK3[c], pk0=Preg(1, c))], 80 * 32 + 41, 80 * 32 + 62)
    else:
        F += op_extras(B0, mem_at)
    return finish(M, F)

def op_extras(B0, mem_at):
    F = []
    if OPT['qn']:
        for n in list(range(OPT['qlo'], OPT['qhi'])) + list(range(OPT['qlo2'], OPT['qhi2'])):
            for q in range(16): F += at(mk(f"s_nop {OPT['qn']}"), 80 * n + 5 * q + 2.5)
    rd47 = [xrd(Bfrag(0, u, c), u, c, True) for u in range(3) for c in range(5)]
    F += mem_at(rd47, 80 * 47 + 3, [80 * 47 + 3 + 5 * (q // 2) + (q % 2) for q in range(15)])
    rd47b = [xrd(Bfrag(1, u, c), u, c, False) for u in (2, 0) for c in range(5)]
    F += mem_at(rd47b, 0, [80 * 47 + 43 + 5 * (q // 3) + (q % 3) for q in range(10)])
    F.append(W([f"a{160+i}" for i in range(60)], 80 * 48 - 0.5))
    F += mem_at([xrd(Bfrag(1, 1, c), 1, c, False) for c in range(5)], 80 * 48 + 5)
    F += mem_at([xwr(PK3[c], 0, c) for c in range(5)], B0(48) + 5)
    nrm = lambda u: [x for c in range(5) for x in norm_ops(u, c, Bfrag(2, u, c))]
    if OPT['a15']:
        F += spread(nrm(0), 80 * 47 + 54, 80 * 48 + 20)
    else: F += spread(nrm(0), 80 * 47 + 63, 80 * 48 + 35)
    F += mem_at([xwr(Bfrag(2, 0, c), 2, c) for c in range(5)], 80 * 48 + 38, 4)
    F += spread(nrm(1), 80 * 48 + (20 if OPT['a15'] else 35), 80 * 49 + (0 if OPT['a15'] else 10))
    F += mem_at([xrd(Bfrag(1, 3, c), 0, c, False) for c in range(5)] + [xrd(Bfrag(3, 0, c), 2, c, False) for c in range(5)], B0(49) + 5)
    F += mem_at([xwr(Bfrag(2, 1, c), 1, c) for c in range(5)], 80 * 49 + 38, 4)
    F += spread(nrm(2), 80 * 49 + (0 if OPT['a15'] else 10), 80 * 49 + 60)
    F += spread(nrm(3), 80 * 49 + 60, 80 * 50 + 35)
    F += mem_at([xrd(Bfrag(3, 1, c), 1, c, False) for c in range(5)] + [xwr(Bfrag(2, 2, c), 0, c) for c in range(5)], B0(50) + 5)
    F += mem_at([xwr(Bfrag(2, 3, c), 2, c) for c in range(5)], 80 * 50 + 38, 4)
    F += mem_at([xrd(Bfrag(3, 2, c), 0, c, False) for c in range(5)] + [xrd(Bfrag(3, 3, c), 2, c, False) for c in range(5)], 0,
                [B0(51) + 3 + 5 * (q // 3) + (q % 3) for q in range(10)])
    eload = f"buffer_load_dword v{vEp}, off, {srd(sDbg)}, s{sSpin2} sc1"
    el = at(mk(eload), 80 * 46 + 30)
    F += el
    F += chk_ops(eload, vEp, f"s_cmp_lg_u32 s{sSpin}, 0", 80 * 47 + 70, "chke")
    late = [f"s_mov_b32 s{sTag}, s{sSpin}", f"s_mov_b32 s{sC}, 0xffff0000"]
    li = at(mk(late), 80 * 47 + 70.5, 80 * 47 + 72); li[0].rd = li[0].rd + ["chke"]
    F += li
    lv = [f"v_mov_b32 v{vTag}, s{sTag}", f"v_mov_b32 v{vTag+1}, s{sTag}",
          f"v_min_u32 v{vF0}, 16, v{vSt}", f"v_lshlrev_b32 v{vF0}, 26, v{vF0}"]
    F += spread(lv, 80 * 50 + 40, 80 * 50 + 60)
    F += spread([f"v_and_b32 v{vOut}, 0xf0, v{vSt}", f"v_lshlrev_b32 v{vOut}, 7, v{vOut}", f"v_lshrrev_b32 v{vOut+1}, 8, v{vSt}", f"v_lshl_add_u32 v{vOut}, v{vOut+1}, 4, v{vOut}"], 80 * 63 + 50, 80 * 63 + 60)
    F += at(mk([f"s_lshr_b32 s{sT1}, s{sWv}, 1", f"s_lshl_b32 s{sT1}, s{sT1}, 8", f"v_add_u32 v{vOb}, s{sT1}, v{vOb}"]), 80 * 51 + 2, 80 * 51 + 10)
    T = lambda x: 80 * x
    PZ = list(range(7 - OPT['pz'], 7))
    if PZ:
        pq = MSG[0]
        F += spread([f"v_mov_b32 v{pq+j}, -1" for j in range(4)], 80 * 48 + 2, 80 * 48 + 6)
        L = []
        for i in PZ:
            L += [f"s_add_u32 s{sT1}, s{sCm}, {i*20480 + 1024}"] + \
                 [f"buffer_store_dwordx4 {vr(pq)}, v{vSt}, {srd(sO)}, s{sT1} offen offset:{(c-1)*1024} sc1" for c in range(1, 5)] + \
                 [f"s_sub_u32 s{sT1}, s{sT1}, 1024", f"buffer_store_dwordx4 {vr(pq)}, v{vSt}, {srd(sO)}, s{sT1} offen sc1"]
        F += at(mk(L), 80 * 48 + 8, 80 * 50 + 70)
    for i, spec in enumerate(OPT['cs'].split(';')):
        q = spec.split(',')
        F += consume(i, *[round(T(float(x))) for x in q[:5]], q[5], i in PZ)
    F += spread([f"v_add_f32 v{acc(2,c)+j}, v{acc(2,c)+j}, v{RREG[c*8+j]}" for c in range(5) for j in range(8)], T(64.3), T(64.85))
    fin = []
    for q, c in enumerate((1, 2, 3, 4, 0) if OPT['fin2'] else range(5)):
        a = acc(2, c)
        L = [f"v_cvt_pk_bf16_f32 v{a+i}, v{a+2*i}, v{a+2*i+1}" for i in range(4)]
        L += [f"s_add_u32 s{sT0}, s{sOutO}, {c*32768}", f"buffer_store_dwordx4 {vr(a)}, v{vOut}, {srd(sOutS)}, s{sT0} offen{OPT['outf']}"]
        if OPT['fin2']: F += at(mk(L), T(65.5) + 8 * (q + 1) - 0.25)
        else: fin += L
    if fin: F += spread(fin, T(66.1), T(67))
    return F

def finish(M, F):
    dr = OPT['drop']
    if 'L' in dr: F = [i for i in F if not (i.kind == 'vld' and 'dwordx4' in i.op)]
    if 'F' in dr: F = [i for i in F if not ((i.kind == 'branch' and 'SPIN' in i.text))]
    if 'G' in dr: F = [i for i in F if not (i.kind == 'vld' and i.op == 'buffer_load_dword' and i.pos > 80 * 48)]
    if 'P' in dr: F = [i for i in F if not (i.kind == 'vst' and 'dwordx4' in i.op and i.pos < 80 * 64)]
    if 'N' in dr: F = [i for i in F if not (i.is_valu() and 80 * 24 + 4 < i.pos < 80 * 30 and i.op not in ('v_add_u32', 'v_writelane_b32'))]
    if 'X' in dr: F = [i for i in F if not (i.op == 'ds_read_b128' and 80 * 24 < i.pos < 80 * 31)]
    if 'Q' in dr: F = [i for i in F if not (i.kind == 'dma' and 80 * 23 < i.pos < 80 * 29)]
    if 'W' in dr: F = [i for i in F if not (i.op == 'ds_read_b64_tr_b16' and 80 * 24 < i.pos < 80 * 31)]
    if 'A' in dr: F = [i for i in F if not (i.op == 'v_add_f32' and 80 * 8 < i.pos < 80 * 48)]
    if 'B' in dr: F = [i for i in F if not (i.kind == 'branch' and 'RARE' in i.text)]
    if 'D' in dr: F = [i for i in F if i.kind != 'dma']
    if 'E' in dr: F = [i for i in F if i.kind != 'trans']
    if 'V' in dr: F = [i for i in F if not (i.kind == 'valu' and i.op in ('v_add_f32', 'v_cvt_pk_bf16_f32'))]
    if 'R' in dr: F = [i for i in F if i.kind != 'dsr']
    if 'S' in dr: F = [i for i in F if i.kind != 'vst']
    if 'C' in dr: F = [i for i in F if not (i.kind == 'branch' or i.kind == 'label')]
    for i in F:
        i.pos = round(i.pos * 256) / 256.0
        if i.kind == 'vld' and i.wr == [f"v{vDum}"]: i.wr = []
    seq = gap_schedule(M, F, OPT['early'], OPT['late']) if OPT['sched'] else merge_global(M, F)
    segs = [[]]
    for i in seq:
        if i.kind == 'barrier': segs.append([])
        segs[-1].append(i)
    return segs

def merge_global(M, F):
    fl = sorted(enumerate(F), key=lambda e: (e[1].pos, e[0]))
    out = []; j = 0
    for k, m in enumerate(M):
        while j < len(fl) and fl[j][1].pos <= k:
            out.append(fl[j][1]); j += 1
        out.append(m)
    out += [e[1] for e in fl[j:]]
    return out

def k1_setup():
    cexp = math.log2(math.e) / math.sqrt(128.0)
    n = OPT['cpf']
    CPF = "" if not n else f"""s_getpc_b64 s[62:63]
s_lshr_b32 s5, s2, 3
s_lshl_b32 s5, s5, 2
v_add_u32 v21, s5, v20
v_mul_u32_u24 v21, {n}, v21
v_min_u32 v22, {n-1}, v0
v_add_u32 v21, v21, v22
v_min_u32 v21, CODE_LINES, v21
v_lshlrev_b32 v21, 7, v21
global_load_dword v{vDum}, v21, s[62:63]"""
    A = mk(f"""
s_cmp_ge_u32 s2, 256
s_cbranch_scc1 K1_END
s_and_b32 s3, s2, 7
s_lshr_b32 s4, s3, 2
s_mul_i32 s4, s4, 40
s_add_u32 s6, s0, s4
s_addc_u32 s7, s1, 0
s_load_dwordx8 s[52:59], s[6:7], 0
s_load_dwordx2 s[60:61], s[0:1], 96
s_load_dwordx2 s[78:79], s[6:7], 32
s_load_dwordx2 s[{sOutS}:{sOutS+1}], s[0:1], 80
s_load_dwordx2 s[{sDbg}:{sDbg+1}], s[0:1], 88
s_memrealtime s[46:47]
v_lshrrev_b32 v20, 6, v0
v_and_b32 v0, 63, v0
v_readfirstlane_b32 s{sWv}, v20
{CPF}
v_lshrrev_b32 v20, 4, v0
v_bfe_u32 v21, v0, 2, 2
v_and_b32 v22, 3, v0
s_lshr_b32 s5, s2, 3
s_bfe_u32 s{62 if OPT['xmap'] == 0 else 63}, s3, 0x10001
s_and_b32 s{63 if OPT['xmap'] == 0 else 62}, s3, 1
s_lshr_b32 s71, s5, 2
s_lshl_b32 s62, s62, 3
s_add_u32 s64, s71, s62
s_and_b32 s4, s5, 3
s_lshl_b32 s65, s4, 1
s_lshl_b32 s63, s63, 4
s_add_u32 s63, s65, s63
s_lshr_b32 s66, s{sWv}, 1
s_and_b32 s67, s{sWv}, 1
s_add_u32 s65, s63, s66
s_lshl_b32 s{sMw}, s{sWv}, 12
s_lshl_b32 s{sMx}, s{sWv}, 10
s_add_u32 s{sMx}, s{sMx}, {XOFF}
s_lshl_b32 s{sWo}, s65, 8
s_lshl_b32 s68, s67, 17
s_add_u32 s{sWo}, s{sWo}, s68
s_mul_i32 s69, s64, 163840
s_mul_i32 s68, s{sWv}, 40960
s_add_u32 s{sKi}, s69, s68
s_lshl_b32 s70, s4, 1
s_add_u32 s70, s70, s71
s_and_b32 s70, s70, 7
s_mov_b32 s{sVi}, s3
v_lshlrev_b32 v25, 4, v22
v_lshl_add_u32 v25, v20, 6, v25
v_lshl_add_u32 v{vDkv0}, v21, 8, v25
v_xor_b32 v{vDkv1}, 32, v{vDkv0}
v_lshl_add_u32 v{vDw[0]}, v21, 13, v25
v_add_u32 v{vDw[1]}, {31744}, v{vDw[0]}
v_add_u32 v{vDw[2]}, {2*31744}, v{vDw[0]}
v_add_u32 v{vDw[3]}, {3*31744}, v{vDw[0]}
v_lshrrev_b32 v24, 5, v0
v_lshlrev_b32 v25, 1, v24
v_xor_b32 v25, v25, v22
v_lshlrev_b32 v25, 4, v25
v_and_b32 v23, 1, v20
v_lshl_add_u32 v25, v23, 6, v25
v_lshl_add_u32 v25, v21, 10, v25
v_lshl_add_u32 v{vDx[0]}, v24, 12, v25
v_add_u32 v{vDx[1]}, 7168, v{vDx[0]}
v_add_u32 v{vDx[2]}, {2*7168}, v{vDx[0]}
v_add_u32 v{vDx[3]}, {3*7168}, v{vDx[0]}
s_mov_b32 s{sX+2}, 2621440
s_mov_b32 s{sX+3}, 0x20000
s_mov_b32 s{sW+2}, 4194304
s_mov_b32 s{sW+3}, 0x20000
s_lshr_b32 s{sG2}, s2, 5
s_mul_i32 s{sG2}, s{sG2}, 5
s_and_b32 s{sG2}, s{sG2}, 7
s_cmp_lt_u32 s{sG2}, {OPT['g2thr'] if OPT['g2'] else 0}
s_cselect_b32 s{sG2}, 1, 0
s_lshl_b32 s68, s{sG2}, 11
s_add_u32 s{sWo}, s{sWo}, s68
s_mul_i32 s68, s{sG2}, {STAGE}
s_add_u32 s{sWr}, s{sMw}, s68
s_waitcnt lgkmcnt(0)
s_mov_b32 s{sX}, s52
s_mov_b32 s{sX+1}, s53
s_mov_b32 s{sW}, s58
s_mov_b32 s{sW+1}, s59
s_mov_b32 s{sXb}, s{sKi}
s_mov_b32 s{sXc}, 0
s_mov_b32 s{sQr}, s70
s_mov_b32 s71, s{sVi}
""") + (mk(rot_ops()) if OPT['qrot0'] else [])
    for i in A:
        if i.kind == 'vld': i.wr = []
    pf = []
    D0 = mk([x for g in dma_qp() for x in g])
    D1 = mk(f"s_add_u32 s{sWr}, s{sWr}, {STAGE}", tag='vmreset') + mk([x for g in dma_qp() for x in g])
    B = mk(f"""
s_mul_i32 s68, s{sG2}, {2*STAGE}
s_sub_u32 s{sRd}, {2*STAGE}, s68
s_lshl_b32 s68, s64, 5
s_add_u32 s68, s68, s65
s_lshl_b32 s{sPb}, s68, 17
s_lshl_b32 s68, s67, 12
s_add_u32 s{sKVb}, s{sPb}, s68
s_mul_i32 s{sKi}, s2, {OPT['rot']*0x2000*OPT['ra']}
s_lshr_b32 s68, s2, {OPT['rsh']}
s_mul_i32 s68, s68, {OPT['rot']*0x2000*OPT['rb']}
s_add_u32 s{sKi}, s{sKi}, s68
s_and_b32 s{sKi}, s{sKi}, 0x1ffff
s_mov_b32 s{sVi}, s{sKi}
s_lshr_b32 s62, s71, 2
s_lshl_b32 s68, s62, 4
s_add_u32 s68, s68, s64
s_lshl_b32 s{sSpin2}, s68, 3
s_mul_i32 s{sMb}, s68, {8*163840}
s_mul_i32 s4, s67, 10240
s_add_u32 s{sMb}, s{sMb}, s4
s_lshl_b32 s{sFb}, s68, 14
s_lshl_b32 s4, s67, 7
s_add_u32 s{sFb}, s{sFb}, s4
s_add_u32 s{sFb}, s{sFb}, {FLAGB}
{"s_and_b32 s68, s71, 1" if OPT['xmap'] == 0 else "s_bfe_u32 s68, s71, 0x10001"}
s_lshl_b32 s68, s68, 2
s_and_b32 s4, s5, 3
s_add_u32 s{sSig}, s68, s4
s_mul_i32 s4, s64, {OPT['orot']}
s_add_u32 s{sSig}, s{sSig}, s4
s_and_b32 s{sSig}, s{sSig}, 7
s_mul_i32 s{sCm}, s{sSig}, 163840
s_add_u32 s{sCm}, s{sCm}, s{sMb}
s_mul_i32 s4, s66, 5120
s_add_u32 s{sCm}, s{sCm}, s4
s_lshl_b32 s{sCf}, s{sSig}, 11
s_add_u32 s{sCf}, s{sCf}, s{sFb}
s_lshl_b32 s4, s66, 2
s_add_u32 s{sCf}, s{sCf}, s4
s_lshl_b32 s4, s64, 1
s_add_u32 s4, s4, s67
s_mul_i32 s{sOutO}, s4, {80*2048}
s_lshl_b32 s4, s62, 10
s_add_u32 s{sOutO}, s{sOutO}, s4
s_lshl_b32 s4, s{sSig}, 7
s_add_u32 s{sOutO}, s{sOutO}, s4
s_lshl_b32 s4, s66, 6
s_add_u32 s{sOutO}, s{sOutO}, s4
s_lshl_b32 s{sOpB}, s65, 17
s_lshl_b32 s68, s67, 16
s_add_u32 s{sOpB}, s{sOpB}, s68
s_add_u32 s4, s{sSig}, s66
s_add_u32 s4, s4, 1
s_and_b32 s4, s4, 7
s_lshl_b32 s4, s4, 7
s_add_u32 s{sOp}, s{sOpB}, s4
s_lshl_b32 s68, s66, 18
s_sub_u32 s{sOpd}, 0x20000, s68
s_lshl_b32 s68, s66, 15
s_sub_u32 s{sPd}, 0x4000, s68
s_mov_b32 s{sC}, {f2h(cexp)}
s_mov_b32 s{sTh}, {f2h(OPT['thresh'])}
s_mov_b32 s{sRound}, 0
{"s_mul_i32 s%d, s%d, %d" % (sDyn, sG2, OPT['m2'] - OPT['m1']) if OPT['dyn'] else ""}
{"s_add_u32 s%d, s%d, %d" % (sDyn, sDyn, OPT['m1']) if OPT['dyn'] else ""}
s_lshl_b32 s69, s66, 13
s_mul_i32 s70, s67, 10240
s_add_u32 s70, s70, {XOFF}
v_and_b32 v23, 1, v21
v_lshlrev_b32 v23, 1, v23
v_xor_b32 v23, v23, v20
v_lshlrev_b32 v23, 4, v23
v_lshl_add_u32 v23, v22, 6, v23
v_lshl_add_u32 v{vKb}, v21, 10, v23
v_add_u32 v{vKb}, s69, v{vKb}
v_lshl_add_u32 v{vXb}, v21, 9, v23
v_add_u32 v{vXb}, s70, v{vXb}
v_and_b32 v23, 1, v20
v_lshlrev_b32 v23, 5, v23
v_lshlrev_b32 v24, 3, v22
v_xor_b32 v23, v23, v24
v_lshl_add_u32 v23, v21, 6, v23
v_lshl_add_u32 v23, v20, 10, v23
v_add_u32 v{vV0b}, s69, v23
v_xor_b32 v{vV1b}, 32, v{vV0b}
v_lshlrev_b32 v23, 4, v22
v_lshl_add_u32 v23, v21, 6, v23
v_lshl_add_u32 v23, v20, 11, v23
v_add_u32 v{vWb}, s69, v23
{"v_mov_b32 v%d, v%d" % (vWb, vV0b) if OPT['wcf'] else ""}
v_lshlrev_b32 v{vSt}, 4, v0
v_lshlrev_b32 v{vPK}, 7, v0
v_and_b32 v23, 1, v20
v_lshlrev_b32 v23, 1, v23
v_xor_b32 v23, v23, v22
v_lshlrev_b32 v23, 4, v23
v_lshl_add_u32 v23, v21, 6, v23
v_lshl_add_u32 v23, v20, 9, v23
s_lshl_b32 s69, s66, 14
v_add_u32 v{vOb}, s69, v23
s_mul_i32 s69, s{sWv}, 5120
s_add_u32 s69, s69, {XOFF}
v_add_u32 v{vXo0}, s69, v{vSt}
v_add_u32 v{vXo2}, {2*STAGE}, v{vXo0}
s_xor_b32 s69, s{sWv}, 2
s_mul_i32 s69, s69, 5120
s_add_u32 s69, s69, {XOFF}
v_add_u32 v{vXp0}, s69, v{vSt}
v_add_u32 v{vXp2}, {2*STAGE}, v{vXp0}
s_mov_b32 s{sWoS}, s78
s_mov_b32 s{sWoS+1}, s79
s_mov_b32 s{sWoS+2}, 4194304
s_mov_b32 s{sWoS+3}, 0x20000
s_mov_b32 s{sK}, s54
s_mov_b32 s{sK+1}, s55
s_mov_b32 s{sK+2}, 67108864
s_mov_b32 s{sK+3}, 0x20000
s_mov_b32 s{sV}, s56
s_mov_b32 s{sV+1}, s57
s_mov_b32 s{sV+2}, 67108864
s_mov_b32 s{sV+3}, 0x20000
s_mov_b32 s{sO}, s60
s_mov_b32 s{sO+1}, s61
s_mov_b32 s{sO+2}, {FLAGB + 524288}
s_mov_b32 s{sO+3}, 0x20000
s_mov_b32 s{sOutS+2}, 5242880
s_mov_b32 s{sOutS+3}, 0x20000
s_mov_b32 s{sDbg+2}, 256
s_mov_b32 s{sDbg+3}, 0x20000
s_add_u32 s4, s{sSig}, s{sWv}
s_cmp_lg_u32 s4, 0
s_cbranch_scc1 K1_NOEP
s_or_b32 s4, s46, 1
v_mov_b32 v24, s4
v_lshlrev_b32 v25, 20, v0
buffer_store_dword v24, v25, {srd(sDbg)}, s{sSpin2} offen sc1 ; nc
K1_NOEP:
""")
    def stp(k): return mk(["s_memtime s[50:51]", "s_waitcnt lgkmcnt(0)", f"v_writelane_b32 v246, s50, {k}"]) if OPT['stamp'] == 2 else []
    return A + stp(2) + pf + D0 + stp(3) + (B + stp(4) + D1 if OPT['d1late'] else D1 + B) + stp(5) + (mk("s_waitcnt vmcnt(13)") if OPT['stamp'] == 2 else []) + stp(6)

def rare(name):
    par = min(name, 1)
    L = [f"RARE{name}:", "s_nop 15"]
    d, t2, f = TMP, TMP + 1, TMP + 2
    for c in range(5):
        L += colmax_ops(par, c, d, t2)
        L += [f"v_max_f32 v{d}, 0, v{d}", f"v_ceil_f32 v{d}, v{d}", f"v_exp_f32 v{f}, -v{d}"]
        if name == 2:
            for i in range(4):
                x = Preg(0, c) + i
                L += [f"v_lshlrev_b32 v{TMP+4}, 16, v{x}", f"v_and_b32 v{TMP+5}, 0xffff0000, v{x}", f"v_mul_f32 v{TMP+4}, v{TMP+4}, v{f}",
                      f"v_mul_f32 v{TMP+5}, v{TMP+5}, v{f}", f"v_cvt_pk_bf16_f32 v{x}, v{TMP+4}, v{TMP+5}"]
        L += [f"v_sub_f32 v{Mreg(c)+i}, v{Mreg(c)+i}, v{d}" for i in range(4)]
        L += [f"v_sub_f32 v{blk(c)+i}, v{blk(c)+i}, v{d}" for i in range(16)]
        L += [f"v_mul_f32 v{Lreg(c)}, v{Lreg(c)}, v{f}"]
        for t in range(8):
            L += [f"v_accvgpr_read_b32 v{TMP+4+i}, a{Oreg(t,c)+i}" for i in range(4)]
            L += [f"v_mul_f32 v{TMP+4+i}, v{TMP+4+i}, v{f}" for i in range(4)]
            L += [f"v_accvgpr_write_b32 a{Oreg(t,c)+i}, v{TMP+4+i}" for i in range(4)]
    L += softmax_ops(par)
    L += ["s_nop 3", f"s_setpc_b64 s[{sRet}:{sRet+1}]"]
    seq = mk(L); analyze_trace(seq)
    return seq

def segtext(s): return "\n".join(i.text for i in s)

def emit_k1():
    segs = build_k1()
    pre = segs[0]; S = segs[1:]
    assert len(S) == 64
    T = [segtext(s) for s in S]
    G2 = OPT['g2']
    if G2:
        segs2 = build_k1(True); pre2 = segs2[0]; S2 = segs2[1:]; T2 = [segtext(x) for x in S2]
    TWO = bool(OPT['cap1']) and G2
    k1 = 20
    while k1 < 24 and (TWO or T[k1] == T[k1 + 24]) and (not G2 or T2[k1 + 8] == T[k1]): k1 += 1
    k0 = 13
    while k0 > 0 and (TWO or T[k0 - 1] == T[k0 - 1 + 24]) and (not G2 or (T2[k0 - 1 + 8] == T[k0 - 1] and T2[k0 - 1 + 24] == T[k0 - 1 + 24])): k0 -= 1
    if not TWO and T[13] != T[37]: k0 = k1 = 22
    for k in range(k0, k1):
        assert (TWO or T[k] == T[k + 24]) and (not G2 or T2[k + 8] == T[k]), k
    if G2:
        assert T2[13 + 24] == T[13 + 24]
        j0 = 8 + k0
        while j0 > 8 and T2[j0 - 1] == T[j0 - 1 + 16]: j0 -= 1
    prog = []; trace = []
    lab = [0]; stubs = []
    tl = [0]
    def fixlabels(seq):
        for i in seq:
            if '#' in i.text:
                if i.text.startswith('s_cbranch'): tl[0] += 1
                i.text = i.text.replace('#', str(tl[0]))
                if i.kind == 'glue': i.kind = 'label'
            if '@' in i.text:
                if i.kind == 'label' and 'B' in OPT['drop']: lab[0] += 1
                if i.kind == 'branch':
                    lab[0] += 1
                    tgt = i.text.split()[1].split('_')[0]
                    stubs.append((tgt, lab[0]))
                i.text = i.text.replace('@', str(lab[0]))
    def fold(lo, hi, S=S, T=T):
        p = []; t = []; k = lo
        while k < hi:
            done = False
            for L in (1, 2, 4):
                n = 1
                while k + (n + 1) * L <= hi and all(T[k + j] == T[k + n * L + j] for j in range(L)): n += 1
                if n >= 2:
                    body = [i for j in range(L) for i in S[k + j]]
                    fixlabels(body)
                    lab[0] += 1; ln = f"LP{lab[0]}"
                    init = mk(f"s_mov_b32 s{sCnt}, {n}")
                    tail = mk([f"s_sub_u32 s{sCnt}, s{sCnt}, 1", f"s_cmp_lg_u32 s{sCnt}, 0", f"s_cbranch_scc1 {ln}"])
                    p += init + mk(ln + ":") + body + tail
                    t += init + (body + tail) * min(n, 3)
                    print(f"  loop segs {k}..{k+n*L-1} L={L} n={n}", file=sys.stderr)
                    k += n * L; done = True; break
            if not done:
                fixlabels(S[k]); p += S[k]; t += S[k]; k += 1
        return p, t
    setup = k1_setup()
    p1, t1 = fold(0, k0)
    p2, t2 = fold(k0, k1)
    js = (j0 + 16) if G2 else 24 + k0
    p3, t3 = fold(k1, js)
    p3b, t3b = fold(js, 24 + k0)
    p4, t4 = fold(24 + (k0 if TWO else k1), 64)
    br = mk([f"s_cmp_eq_u32 s{sRound}, 1", "s_cbranch_scc1 K1_FINAL"])
    back = mk([f"s_add_u32 s{sRound}, s{sG2}, 1", "s_branch K1_OUTER"])
    if G2:
        br2 = mk([f"s_cmp_eq_u32 s{sRound}, 2", "s_cbranch_scc1 K1_TRANS"])
        sel = mk([f"s_cmp_lg_u32 s{sG2}, 0", "s_cbranch_scc1 K1_G2"])
        q1, u1 = fold(0, j0, S2, T2); jn = mk("s_branch K1_JOIN")
        q2, u2 = fold(8 + k1, 24 + k0, S2, T2); back2 = mk([f"s_mov_b32 s{sRound}, 1", "s_branch K1_OUTER"])
        print(f"  G2: j0={j0}", [model_cycles(x) for x in S2], file=sys.stderr)
    if OPT['stamp']:
        st0 = mk(["s_memtime s[72:73]", "s_memrealtime s[74:75]", "s_mov_b32 s45, 0", "v_mov_b32 v235, 0", "v_mov_b32 v246, 0"])
        setup = setup[:2] + st0 + setup[2:]
        st1 = mk(["s_memtime s[50:51]", "s_waitcnt lgkmcnt(0)", "v_writelane_b32 v246, s50, 0", "s_waitcnt vmcnt(0)", "s_memtime s[50:51]", "s_memrealtime s[66:67]", "s_waitcnt lgkmcnt(0)",
                  "v_writelane_b32 v246, s50, 1", "v_writelane_b32 v246, s72, 60", "v_writelane_b32 v246, s74, 61", "v_writelane_b32 v246, s66, 62",
                  f"s_lshl_b32 s50, s2, 2", f"s_add_u32 s50, s50, s{sWv}", "s_lshl_b32 s50, s50, 9", f"s_add_u32 s50, s50, {48<<20}",
                  f"v_lshrrev_b32 v245, 2, v{vSt}", f"s_mov_b32 s{sO+2}, {64<<20}",
                  f"buffer_store_dword v235, v245, {srd(sO)}, s50 offen", f"buffer_store_dword v246, v245, {srd(sO)}, s50 offen offset:256"])
        if OPT['probe']:
            pa, pb = OPT['probe'].split(',')
            L = ["s_cmp_lg_u32 s2, 9", "s_cbranch_scc1 K1_END", "s_memrealtime s[66:67]", "s_waitcnt lgkmcnt(0)"]
            L += [f"v_readlane_b32 s50, v235, {pa}"] if pa != 's' else ["s_mov_b32 s50, s74"]
            L += [f"v_readlane_b32 s51, v235, {pb}"] if pb != 'e' else ["s_mov_b32 s51, s76"]
            L += ["s_nop 3", "s_sub_u32 s50, s51, s50", "s_lshl_b32 s50, s50, 2", "PROBE_L:", "s_memrealtime s[72:73]", "s_waitcnt lgkmcnt(0)",
                  "s_sub_u32 s72, s72, s76", "s_cmp_lt_u32 s72, s50", "s_cbranch_scc1 PROBE_L"]
            st1 = mk(L)
        if OPT['dbg']:
            L = ["s_memtime s[50:51]", "s_memrealtime s[66:67]", "s_waitcnt lgkmcnt(0)",
                 "s_sub_u32 s50, s50, s72", "s_sub_u32 s76, s76, s74", "v_writelane_b32 v246, s50, 14", "v_writelane_b32 v246, s76, 15"]
            for q, ln in enumerate([0, 1, 4, 8, 9, 16, 24, 32, 33, 40, 48, 52, 56, 63]):
                L += [f"v_readlane_b32 s50, v235, {ln}", "s_nop 3", "s_sub_u32 s50, s50, s72", f"v_writelane_b32 v246, s50, {q}"]
            L += [f"s_lshl_b32 s50, s2, 2", f"s_add_u32 s50, s50, s{sWv}", f"s_cmp_lg_u32 s50, {OPT['dbg']-1}", "s_cbranch_scc1 K1_END",
                  f"s_mov_b32 s{sO+2}, {64<<20}", f"s_mov_b32 s50, {48<<20}",
                  f"v_lshrrev_b32 v245, 2, v{vSt}", f"buffer_store_dword v246, v245, {srd(sO)}, s50 offen"]
            st1 = mk(L)
        p4 += st1; t4 += st1
    if TWO:
        brg = mk([f"s_cmp_lg_u32 s{sG2}, 0", "s_cbranch_scc1 K1_TRANS"])
        brh = mk([f"s_cmp_lg_u32 s{sG2}, 0", "s_cbranch_scc1 K1_OUTER"])
        tf = mk("s_branch K1_FINAL")
        prog = setup + sel + pre + p1 + mk("K1_OUTER:") + p2 + brg + p3 + mk("K1_JOIN:") + p3b + brh + mk("K1_FINAL:") + p4 + mk(["K1_END0:", "s_endpgm"]) + \
               mk("K1_G2:") + pre2 + q1 + jn + mk("K1_TRANS:") + q2 + tf + mk(["K1_END:", "s_endpgm"])
        for _ in range(2):
            analyze_trace(setup + sel + pre + t1 + t2 + brg + t3 + t3b + brh + t4)
            analyze_trace(setup + sel + pre2 + u1 + jn + t3b + brh + t2 + brg + u2 + tf + t4)
    elif G2:
        prog = setup + sel + pre + p1 + mk("K1_OUTER:") + p2 + br + br2 + p3 + mk("K1_JOIN:") + p3b + back + \
               mk("K1_G2:") + pre2 + q1 + jn + mk("K1_TRANS:") + q2 + back2 + mk("K1_FINAL:") + p4 + mk(["K1_END:", "s_endpgm"])
        for _ in range(2):
            analyze_trace(setup + sel + pre + t1 + t2 + br + br2 + t3 + t3b + back + t2 + br + t4)
            analyze_trace(setup + sel + pre2 + u1 + jn + t3b + back + t2 + br + br2 + u2 + back2 + t2 + br + t4)
    else:
        prog = setup + pre + p1 + mk("K1_OUTER:") + p2 + br + p3 + p3b + back + mk("K1_FINAL:") + p4 + mk(["K1_END:", "s_endpgm"])
        analyze_trace(setup + pre + t1 + t2 + br + t3 + t3b + back + t2 + br + t4)
    out = emit(prog) + "\n"
    for tgt, n in stubs:
        out += f"{tgt}_{n}:\n  s_call_b64 s[{sRet}:{sRet+1}], {tgt}\n  s_branch RET_{n}\n"
    for k in range(1, tl[0] + 1):
        out += f"TIGHT_{k}:\n  s_waitcnt vmcnt({OPT['cap']-1})\n  s_branch TRET_{k}\n"
    for k, (load, cmpop) in enumerate(spins):
        reg = load.split()[1].rstrip(',')
        out += f"""SPIN{k}:
  s_mov_b32 s{sSc}, 0
SPINL{k}:
  s_sleep 2
  {load}
  s_add_u32 s{sSc}, s{sSc}, 1
  s_waitcnt vmcnt(0)
  v_readfirstlane_b32 s{sSpin}, {reg}
  s_cmp_gt_u32 s{sSc}, 0x8000
  s_cbranch_scc1 SRET{k}
  {cmpop}
  s_cbranch_scc0 SPINL{k}
  s_branch SRET{k}
"""
    for i, ldt, chk in pzspin:
        seq = mk([f"PZSPIN{i}:", f"s_mov_b32 s{sSc}, 0", f"PZL{i}:", "s_sleep 1"] + ldt + [f"s_add_u32 s{sSc}, s{sSc}, 1", "s_waitcnt vmcnt(0)"] + chk +
                 [f"s_cmp_gt_u32 s{sSc}, 0x8000", f"s_cbranch_scc1 PZRET{i}", f"s_cbranch_vccnz PZL{i}", f"s_branch PZRET{i}"])
        analyze_trace(seq); out += emit(seq) + "\n"
    out += emit(rare(0)) + "\n" + emit(rare(1)) + "\n" + (emit(rare(2)) + "\n" if OPT['a15'] else "")
    print(f"  k0={k0} k1={k1}", file=sys.stderr)
    print("  model cycles/seg:", [model_cycles(x) for x in S], file=sys.stderr)
    return out

def kd(name, vg=512, acc=256):
    return f""".amdhsa_kernel {name}
  .amdhsa_next_free_vgpr {vg}
  .amdhsa_next_free_sgpr 102
  .amdhsa_accum_offset {acc}
  .amdhsa_group_segment_fixed_size 0
  .amdhsa_kernarg_size 104
  .amdhsa_user_sgpr_count 2
  .amdhsa_user_sgpr_kernarg_segment_ptr 1
  .amdhsa_system_sgpr_workgroup_id_x 1
.end_amdhsa_kernel
"""

K1 = NAME + "_kernel"
hdr = open("cdna_kernels/" + NAME + ".s.ref").read().split("; Override launch")[0]
o = hdr
o += f"; @launch grid=(256,1,1) block=(256,1,1) lds={3*STAGE}\n"
o += '.amdgcn_target "amdgcn-amd-amdhsa--gfx950"\n.text\n'
o += f".globl {K1}\n.p2align 8\n.type {K1},@function\n{K1}:\n" + emit_k1()
o += '.section .rodata,"a"\n.p2align 6\n' + kd(K1)
import subprocess, re
if "CODE_LINES" in o:
    open("_g.s", "w").write(o.replace("CODE_LINES", "0x100"))
    subprocess.run(["clang", "-x", "assembler", "-target", "amdgcn-amd-amdhsa", "-mcpu=gfx950", "-c", "_g.s", "-o", "_g.o"], check=True)
    t = subprocess.run(["llvm-objdump", "-t", "_g.o"], capture_output=True, text=True).stdout
    end = int([l for l in t.split("\n") if l.endswith(" K1_END")][0].split()[0], 16)
    print("  K1 main code bytes", end, file=sys.stderr)
    o = o.replace("CODE_LINES", hex(end // 128))
open(sys.argv[1], "w").write(o)
```
